```python
import torch

def _softmax(x, axis=-1):
    return torch.softmax(x, dim=axis)
def _gelu(x):
    return torch.nn.functional.gelu(x, approximate="tanh")
def _silu(x):
    return torch.nn.functional.silu(x)
def _sigmoid(x):
    return torch.sigmoid(x)
def _layernorm(x, axis=-1, eps=1e-5):
    m = x.mean(dim=axis, keepdim=True)
    v = x.var(dim=axis, keepdim=True, unbiased=False)
    return (x - m) / torch.sqrt(v + eps)
def _scatter_add(tgt, idx, src, axis=0):
    return tgt.clone().index_add_(axis, idx, src)
def _segment_sum(src, seg, n):
    out = torch.zeros((n,) + src.shape[1:], dtype=src.dtype)
    return out.index_add_(0, seg, src)
def _pad(x, pw):
    flat = tuple(v for pair in reversed(pw) for v in pair)
    return torch.nn.functional.pad(x, flat)

kernel_name = 'concat_heads__mha_block_cached__mha_block_cached__near_ridge'

def setup_inputs():

    _w = (lambda a: (lambda t: t.to(torch.bfloat16) if t.is_floating_point() else t)(torch.as_tensor(a)))
    def _A_setup():
        B, Sq, D = 8, 144, 512
        H, Sk, Dh = 32, 512, 128
        return {
            "x": _w((lambda *s: torch.randn(*s, dtype=torch.bfloat16) * 0.8)(B, Sq, D)),
            "k_cache": _w((lambda *s: torch.randn(*s, dtype=torch.bfloat16) * 0.8)(B, H, Sk, Dh)),
            "v_cache": _w((lambda *s: torch.randn(*s, dtype=torch.bfloat16) * 0.05)(B, H, Sk, Dh)),
            "wq": _w((lambda *s: torch.randn(*s, dtype=torch.bfloat16) * 0.8)(D, H * Dh) * (D ** -0.5)),
            "wo": _w((lambda *s: torch.randn(*s, dtype=torch.bfloat16) * 0.05)(H * Dh, D) * ((H * Dh) ** -0.5)),
        }
    _A_in = _A_setup()

    def _B_setup():
        B, Sq, D = 8, 144, 512
        H, Sk, Dh = 32, 512, 128
        return {
            "x": _w((lambda *s: torch.randn(*s, dtype=torch.bfloat16) * 0.8)(B, Sq, D)),
            "k_cache": _w((lambda *s: torch.randn(*s, dtype=torch.bfloat16) * 0.8)(B, H, Sk, Dh)),
            "v_cache": _w((lambda *s: torch.randn(*s, dtype=torch.bfloat16) * 0.05)(B, H, Sk, Dh)),
            "wq": _w((lambda *s: torch.randn(*s, dtype=torch.bfloat16) * 0.8)(D, H * Dh) * (D ** -0.5)),
            "wo": _w((lambda *s: torch.randn(*s, dtype=torch.bfloat16) * 0.05)(H * Dh, D) * ((H * Dh) ** -0.5)),
        }
    _B_in = _B_setup()

    return {
        "A_x": _A_in["x"],
        "A_k_cache": _A_in["k_cache"],
        "A_v_cache": _A_in["v_cache"],
        "A_wq": _A_in["wq"],
        "A_wo": _A_in["wo"],
        "B_x": _B_in["x"],
        "B_k_cache": _B_in["k_cache"],
        "B_v_cache": _B_in["v_cache"],
        "B_wq": _B_in["wq"],
        "B_wo": _B_in["wo"],
    }

def reference(A_x, A_k_cache, A_v_cache, A_wq, A_wo, B_x, B_k_cache, B_v_cache, B_wq, B_wo):
    def _A_ref(x, k_cache, v_cache, wq, wo):
        B, Sq, D = x.shape
        H, Dh = 32, 128
        q = (lambda x, *d: x.permute(*d))((x @ wq).reshape(B, Sq, H, Dh), 0, 2, 1, 3)
        scores = torch.einsum("bhqd,bhkd->bhqk", q, k_cache) * (Dh ** -0.5)
        p = _softmax(scores, axis=-1)
        o = torch.einsum("bhqk,bhkd->bhqd", p, v_cache)
        return (lambda x, *d: x.permute(*d))(o, 0, 2, 1, 3).reshape(B, Sq, H * Dh) @ wo

    def _B_ref(x, k_cache, v_cache, wq, wo):
        B, Sq, D = x.shape
        H, Dh = 32, 128
        q = (lambda x, *d: x.permute(*d))((x @ wq).reshape(B, Sq, H, Dh), 0, 2, 1, 3)
        scores = torch.einsum("bhqd,bhkd->bhqk", q, k_cache) * (Dh ** -0.5)
        p = _softmax(scores, axis=-1)
        o = torch.einsum("bhqk,bhkd->bhqd", p, v_cache)
        return (lambda x, *d: x.permute(*d))(o, 0, 2, 1, 3).reshape(B, Sq, H * Dh) @ wo

    a = _A_ref(A_x, A_k_cache, A_v_cache, A_wq, A_wo)
    b = _B_ref(B_x, B_k_cache, B_v_cache, B_wq, B_wo)
    return torch.concatenate([a, b], axis=-1)
```

```python
import re


def V(a, n=1):
    return f"v{a}" if n == 1 else f"v[{a}:{a + n - 1}]"


def S(a, n=1):
    return f"s{a}" if n == 1 else f"s[{a}:{a + n - 1}]"


_RE1 = re.compile(r"^-?\|?([vs])(\d+)\|?$")
_RE2 = re.compile(r"^-?([vs])\[(\d+):(\d+)\]$")


def regs_of(op):
    if not isinstance(op, str):
        return set()
    op = op.strip()
    m = _RE1.match(op)
    if m:
        return {(m.group(1), int(m.group(2)))}
    m = _RE2.match(op)
    if m:
        return {(m.group(1), i) for i in range(int(m.group(2)), int(m.group(3)) + 1)}
    if op == "m0":
        return {("m0", 0)}
    if op == "vcc":
        return {("vcc", 0)}
    if op == "exec":
        return {("exec", 0)}
    return set()


TRANS = ("v_exp_f32", "v_log_f32", "v_rcp_f32", "v_rsq_f32", "v_sqrt_f32", "v_sin_f32", "v_cos_f32")


class Ins:
    __slots__ = ("kind", "w", "r", "name", "pos", "c", "d", "ab", "wide")

    def __init__(self, kind, name, w, r):
        self.kind = kind
        self.name = name
        self.w = w
        self.r = r
        self.pos = 0
        self.c = set()
        self.d = set()
        self.ab = set()
        self.wide = False


class Asm:
    def __init__(self):
        self.lines = []
        self.hist = []
        self.pos = 0
        self.lgkm = []
        self.vm = []
        self.ninstr = 0
        self.maxv = 0

    def raw(self, text):
        self.lines.append(text)

    def comment(self, text):
        self.lines.append("    ; " + text)

    def label(self, name):
        self.lines.append(name + ":")

    def _need(self, I):
        need = 0
        for P in reversed(self.hist):
            dist = self.pos - P.pos - 1
            if dist >= 12:
                break
            req = 0
            pw = P.w
            if P.kind == "mfma":
                if I.kind == "mfma":
                    if I.c & P.d:
                        req = max(req, 0 if I.c == P.d else 6)
                    if I.ab & P.d:
                        req = max(req, 8)
                    if (I.d & P.d) and not (I.c == P.d):
                        req = max(req, 6)
                else:
                    if (I.r | I.w) & P.d:
                        req = max(req, 8)
                    if I.kind == "valu" and (I.w & P.c):
                        req = max(req, 3)
            elif P.kind == "valu":
                vw = {x for x in pw if x[0] == "v"}
                sw = {x for x in pw if x[0] in ("s", "vcc")}
                if I.kind == "mfma" and (I.r & vw):
                    req = max(req, 2)
                if I.kind == "valu":
                    if P.name in TRANS and I.name not in TRANS and (I.r & vw):
                        req = max(req, 1)
                    if I.name.startswith("v_permlane") and ((I.r | I.w) & vw):
                        req = max(req, 2)
                    if I.name.startswith("v_readfirstlane") or I.name.startswith("v_readlane"):
                        if I.r & vw:
                            req = max(req, 1)
                    if I.r & sw:
                        req = max(req, 2)
                if I.kind in ("vmem", "dma") and (I.r & sw):
                    req = max(req, 5)
                if I.kind == "salu" and (I.r & sw):
                    req = max(req, 1)
            elif P.kind == "salu":
                if ("m0", 0) in pw and I.kind == "dma":
                    req = max(req, 1)
            elif P.kind == "vmem":
                if P.wide and (I.w & P.r):
                    req = max(req, 2)
            need = max(need, req - dist)
        return need

    def _waits(self, I):
        regs = I.r | I.w
        idx = -1
        for i, d in enumerate(self.lgkm):
            if d & regs:
                idx = i
        lg = None
        if idx >= 0:
            lg = len(self.lgkm) - 1 - idx
        idx = -1
        for i, d in enumerate(self.vm):
            if d & regs:
                idx = i
        vmn = None
        if idx >= 0:
            vmn = len(self.vm) - 1 - idx
        if lg is not None or vmn is not None:
            self.waitcnt(vm=vmn, lgkm=lg)

    def waitcnt(self, vm=None, lgkm=None):
        parts = []
        if vm is not None:
            vm = min(vm, 63)
            parts.append(f"vmcnt({vm})")
            if len(self.vm) > vm:
                self.vm = self.vm[len(self.vm) - vm:] if vm > 0 else []
        if lgkm is not None:
            lgkm = min(lgkm, 15)
            parts.append(f"lgkmcnt({lgkm})")
            if len(self.lgkm) > lgkm:
                self.lgkm = self.lgkm[len(self.lgkm) - lgkm:] if lgkm > 0 else []
        I = Ins("misc", "s_waitcnt", set(), set())
        self._push(I, "s_waitcnt " + " ".join(parts))

    def _push(self, I, text, states=1):
        I.pos = self.pos
        self.pos += states
        self.hist.append(I)
        if len(self.hist) > 40:
            self.hist = self.hist[-30:]
        self.lines.append("    " + text)
        self.ninstr += 1
        for x in I.w | I.r:
            if x[0] == "v":
                self.maxv = max(self.maxv, x[1])

    def nop(self, n):
        while n > 0:
            k = min(n, 16)
            I = Ins("misc", "s_nop", set(), set())
            self._push(I, f"s_nop {k - 1}", states=k)
            n -= k

    def emit(self, I, text):
        self._waits(I)
        n = self._need(I)
        if n > 0:
            self.nop(n)
        self._push(I, text)

    def flush(self):
        self.waitcnt(lgkm=0)
        self.nop(10)

    def valu(self, name, dst, *srcs, mods=""):
        w = set()
        for d in (dst if isinstance(dst, (list, tuple)) else [dst]):
            w |= regs_of(d)
        r = set()
        for s in srcs:
            r |= regs_of(s)
        if name.startswith("v_permlane") or name.startswith("v_fmac"):
            r |= w
            if name.startswith("v_permlane"):
                w |= r
        if name.startswith("v_cndmask") and len(srcs) == 2:
            r |= {("vcc", 0)}
        I = Ins("valu", name, w, r)
        dsts = ", ".join(dst) if isinstance(dst, (list, tuple)) else dst
        ops = ", ".join([dsts] + [str(s) for s in srcs])
        self.emit(I, f"{name} {ops}{(' ' + mods) if mods else ''}")

    def salu(self, name, dst, *srcs):
        w = regs_of(dst) if dst is not None else set()
        r = set()
        for s in srcs:
            r |= regs_of(s)
        I = Ins("salu", name, w, r)
        ops = ", ".join(([dst] if dst is not None else []) + [str(s) for s in srcs])
        self.emit(I, f"{name} {ops}")

    def mfma(self, d, a, b, c):
        I = Ins("mfma", "mfma", regs_of(d), regs_of(a) | regs_of(b) | regs_of(c))
        I.c = regs_of(c)
        I.d = regs_of(d)
        I.ab = regs_of(a) | regs_of(b)
        self.emit(I, f"v_mfma_f32_16x16x32_bf16 {d}, {a}, {b}, {c}")

    def ds_read(self, name, dst, addr, off=0):
        I = Ins("ds", name, regs_of(dst), regs_of(addr))
        assert 0 <= off < 65536, off
        self.emit(I, f"{name} {dst}, {addr}" + (f" offset:{off}" if off else ""))
        self.lgkm.append(regs_of(dst))

    def ds_write(self, name, addr, data, off=0):
        I = Ins("ds", name, set(), regs_of(addr) | regs_of(data))
        assert 0 <= off < 65536, off
        self.emit(I, f"{name} {addr}, {data}" + (f" offset:{off}" if off else ""))
        self.lgkm.append(set())

    def bload(self, name, dst, voff, srd, soff, off=0, flags=""):
        I = Ins("vmem", name, regs_of(dst), regs_of(voff) | regs_of(srd) | regs_of(soff))
        assert 0 <= off < 4096, off
        self.emit(I, f"{name} {dst}, {voff}, {srd}, {soff} offen" + (f" offset:{off}" if off else "") + (" " + flags if flags else ""))
        self.vm.append(regs_of(dst))

    def bstore(self, name, data, voff, srd, soff, off=0, flags=""):
        I = Ins("vmem", name, set(), regs_of(data) | regs_of(voff) | regs_of(srd) | regs_of(soff))
        I.wide = name.endswith("x4") or name.endswith("x3")
        assert 0 <= off < 4096, off
        self.emit(I, f"{name} {data}, {voff}, {srd}, {soff} offen" + (f" offset:{off}" if off else "") + (" " + flags if flags else ""))
        self.vm.append(set())

    def dma(self, voff, srd, soff, flags=""):
        I = Ins("dma", "dma", set(), regs_of(voff) | regs_of(srd) | regs_of(soff) | {("m0", 0)})
        self.emit(I, f"buffer_load_dwordx4 {voff}, {srd}, {soff} offen" + (" " + flags if flags else "") + " lds")
        self.vm.append(set())

    def misc(self, text):
        I = Ins("misc", text.split()[0], set(), set())
        self.emit(I, text)

    def barrier(self):
        self.misc("s_barrier")

    def text(self):
        return "\n".join(self.lines) + "\n"
```

```python
import struct
from asmlib import Asm, V, S

RING = 16384
SLOT = 16384
WB = 0
LDS_K1 = 81920

CSCALE = 1.4426950408889634 / (128.0 ** 0.5)


def f32bits(x):
    return struct.unpack("<I", struct.pack("<f", x))[0]


def OA(r, dt):
    return (r * 8 + dt) * 4


def QF(r, t):
    return 96 + (r * 4 + t) * 4


def SS(r, kt):
    return 144 + (r * 4 + kt) * 4


def S9(kt):
    return 176 + kt * 4


FR = 184
NFR = 8
AK = 216
AV = 220
DK = 228
DV = 229
MM = 230
LL = 233
TMP = 236

sX, sWQ, sK, sV, sO = 16, 20, 24, 28, 32
sW = 36
sC = 37
sT0 = 38
sT1 = 39
sWQoff = 48
sDM0 = 49
sN9 = 50
sT2 = 51
sT3 = 52


def gen_k1(name):
    a = Asm()
    a.vmn = 0
    a.label(name)

    def dma(voff, srd, soff):
        a.dma(voff, srd, soff)
        a.vmn += 1

    def bload(*x, **k):
        a.bload(*x, **k)
        a.vmn += 1

    def bstore(*x, **k):
        a.bstore(*x, **k)
        a.vmn += 1

    a.salu("s_cmp_ge_u32", None, "s2", 512)
    a.misc(f"s_cbranch_scc1 {name}_done")
    a.misc("s_load_dwordx8 s[4:11], s[0:1], 0")
    a.misc("s_load_dwordx8 s[40:47], s[0:1], 40")
    a.misc("s_load_dwordx2 s[12:13], s[0:1], 96")
    T = TMP
    vL, vG, vI = T, T + 1, T + 2
    a.valu("v_and_b32", V(vL), 63, "v0")
    a.valu("v_lshrrev_b32", V(T + 3), 6, "v0")
    a.valu("v_lshrrev_b32", V(vG), 4, V(vL))
    a.valu("v_and_b32", V(vI), 15, V(vL))
    a.valu("v_readfirstlane_b32", S(sW), V(T + 3))
    a.misc("s_waitcnt lgkmcnt(0)")
    a.salu("s_lshr_b32", S(sT0), "s2", 8)
    a.salu("s_cmp_eq_u32", None, S(sT0), 0)
    for i in range(8):
        a.salu("s_cselect_b32", S(4 + i), S(4 + i), S(40 + i))
    a.salu("s_lshr_b32", S(sT1), "s2", 5)
    a.salu("s_and_b32", S(sT1), S(sT1), 7)
    a.salu("s_mul_i32", S(sT2), S(sT1), 147456)
    a.salu("s_add_u32", S(sX), "s4", S(sT2))
    a.salu("s_addc_u32", S(sX + 1), "s5", 0)
    a.salu("s_mov_b32", S(sX + 2), 147456)
    a.salu("s_mov_b32", S(sX + 3), "0x00020000")
    a.salu("s_mov_b32", S(sWQ), "s10")
    a.salu("s_mov_b32", S(sWQ + 1), "s11")
    a.salu("s_mov_b32", S(sWQ + 2), 4194304)
    a.salu("s_mov_b32", S(sWQ + 3), "0x00020000")
    a.salu("s_and_b32", S(sT2), "s2", 255)
    a.salu("s_lshl_b32", S(sT2), S(sT2), 17)
    a.salu("s_add_u32", S(sK), "s6", S(sT2))
    a.salu("s_addc_u32", S(sK + 1), "s7", 0)
    a.salu("s_mov_b32", S(sK + 2), 131072)
    a.salu("s_mov_b32", S(sK + 3), "0x00020000")
    a.salu("s_add_u32", S(sV), "s8", S(sT2))
    a.salu("s_addc_u32", S(sV + 1), "s9", 0)
    a.salu("s_mov_b32", S(sV + 2), 131072)
    a.salu("s_mov_b32", S(sV + 3), "0x00020000")
    a.salu("s_mul_i32", S(sT2), S(sT0), 9437184)
    a.salu("s_mul_i32", S(sT3), S(sT1), 1179648)
    a.salu("s_add_u32", S(sT2), S(sT2), S(sT3))
    a.salu("s_add_u32", S(sO), "s12", S(sT2))
    a.salu("s_addc_u32", S(sO + 1), "s13", 0)
    a.salu("s_mov_b32", S(sO + 2), 1179648)
    a.salu("s_mov_b32", S(sO + 3), "0x00020000")
    a.salu("s_and_b32", S(sT2), "s2", 31)
    a.salu("s_lshl_b32", S(sWQoff), S(sT2), 8)
    a.salu("s_mov_b32", S(sC), hex(f32bits(CSCALE)))
    a.salu("s_lshl_b32", S(sDM0), S(sW), 10)
    a.salu("s_lshr_b32", S(sN9), S(sW), 1)

    t0, t1, t2 = T + 4, T + 5, T + 6
    a.salu("s_lshl_b32", S(sT2), S(sW), 2)
    a.valu("v_add_u32", V(t0), S(sT2), V(vG))
    a.valu("v_xor_b32", V(t1), V(vI), V(t0))
    a.valu("v_lshlrev_b32", V(t1), 4, V(t1))
    a.valu("v_lshl_add_u32", V(DK), V(t0), 8, V(t1))
    a.valu("v_and_b32", V(t1), 7, V(t0))
    a.valu("v_lshlrev_b32", V(t1), 1, V(t1))
    a.valu("v_xor_b32", V(t1), V(vI), V(t1))
    a.valu("v_lshlrev_b32", V(t1), 4, V(t1))
    a.valu("v_lshl_add_u32", V(DV), V(t0), 8, V(t1))

    dma_last = {}

    def issue_dma_piece(tile, i):
        srd = S(sK, 4) if tile % 2 == 0 else S(sV, 4)
        voff = V(DK) if tile % 2 == 0 else V(DV)
        goff = (tile // 2) * 16384 + i * 4096
        loff = RING + (tile % 4) * SLOT + i * 4096
        a.salu("s_add_u32", "m0", S(sDM0), loff)
        a.salu("s_mov_b32", S(sT3), goff)
        dma(voff, srd, S(sT3))
        dma_last[tile] = a.vmn

    def issue_dma_tile(tile):
        for i in range(4):
            issue_dma_piece(tile, i)

    def wait_tile(tile):
        a.waitcnt(vm=a.vmn - dma_last[tile], lgkm=0)

    for t in range(4):
        a.valu("v_add_u32", V(t0), 4 * t, V(vG))
        a.valu("v_xor_b32", V(t0), V(t0), V(vI))
        a.valu("v_lshlrev_b32", V(t0), 4, V(t0))
        a.valu("v_lshl_add_u32", V(AK + t), V(vI), 8, V(t0))
        a.valu("v_add_u32", V(AK + t), RING, V(AK + t))
    a.valu("v_lshrrev_b32", V(t0), 2, V(vI))
    a.valu("v_lshl_add_u32", V(t0), V(vG), 2, V(t0))
    a.valu("v_and_b32", V(t1), 7, V(t0))
    a.valu("v_and_b32", V(t2), 3, V(vI))
    a.valu("v_lshlrev_b32", V(t2), 3, V(t2))
    a.valu("v_lshl_add_u32", V(t2), V(t0), 8, V(t2))
    a.valu("v_add_u32", V(t2), RING, V(t2))
    for dt in range(8):
        a.valu("v_xor_b32", V(t0), dt, V(t1))
        a.valu("v_lshl_add_u32", V(AV + dt), V(t0), 5, V(t2))

    QA = lambda Tt, r: (Tt * 2 + r) * 4
    QA9 = lambda o: 64 + o * 4
    AF = 72
    XF = 112
    WS = 160
    AW = 184
    WW = 194
    XA = 195
    WQA = 198
    DX = 3
    DW = 2
    a.valu("v_lshrrev_b32", V(t0), 2, V(vI))
    a.valu("v_lshl_add_u32", V(t1), V(vG), 3, V(t0))
    a.valu("v_and_b32", V(t2), 3, V(vI))
    a.valu("v_lshlrev_b32", V(t2), 4, V(t2))
    a.valu("v_lshl_add_u32", V(t2), V(t1), 8, V(t2))
    t3, t4, t5 = T + 7, T + 8, T + 9
    a.valu("v_and_b32", V(t3), 1, V(t0))
    a.valu("v_lshrrev_b32", V(t4), 3, V(vI))
    a.valu("v_and_b32", V(t5), 1, V(vG))
    a.valu("v_lshl_add_u32", V(t4), V(t5), 1, V(t4))
    for Tt in range(10):
        if Tt < 8:
            t, o = Tt >> 1, Tt & 1
            a.valu("v_xor_b32", V(t0), t, V(t4))
        else:
            o = Tt & 1
            a.valu("v_xor_b32", V(t0), S(sW), V(t4))
        a.valu("v_lshl_add_u32", V(t0), V(t0), 6, V(t2))
        a.valu("v_xor_b32", V(t1), o, V(t3))
        a.valu("v_lshl_add_u32", V(AW + Tt), V(t1), 3, V(t0))
    a.salu("s_lshl_b32", S(sT2), S(sW), 3)
    a.valu("v_lshl_add_u32", V(t0), V(vG), 1, S(sT2))
    a.salu("s_and_b32", S(sT3), S(sW), 1)
    a.salu("s_lshl_b32", S(sT3), S(sT3), 3)
    a.valu("v_lshl_add_u32", V(t1), V(t5), 2, S(sT3))
    a.valu("v_xor_b32", V(t1), V(t1), V(vI))
    a.valu("v_lshlrev_b32", V(t1), 4, V(t1))
    a.valu("v_lshl_add_u32", V(WW), V(t0), 8, V(t1))
    a.valu("v_lshlrev_b32", V(t1), 4, V(vI))
    a.valu("v_lshl_add_u32", V(WQA), V(t0), 13, V(t1))
    a.valu("v_add_u32", V(WQA + 1), 8192, V(WQA))
    a.salu("s_lshl_b32", S(sT2), S(sW), 5)
    a.valu("v_add_u32", V(t0), S(sT2), V(vI))
    a.valu("v_lshlrev_b32", V(t1), 4, V(vG))
    a.valu("v_lshl_add_u32", V(XA), V(t0), 10, V(t1))
    a.valu("v_add_u32", V(XA + 1), 16384, V(XA))
    a.valu("v_add_u32", V(t0), 128, V(vI))
    a.valu("v_lshl_add_u32", V(XA + 2), V(t0), 10, V(t1))

    def load_wq(j):
        if j >= 16:
            return
        base = WS + (j % (DW + 1)) * 8
        a.salu("s_add_u32", S(sT2), S(sWQoff), j * 32 * 8192)
        bload("buffer_load_dwordx4", V(base, 4), V(WQA), S(sWQ, 4), S(sT2))
        bload("buffer_load_dwordx4", V(base + 4, 4), V(WQA + 1), S(sWQ, 4), S(sT2))

    def load_x(j):
        if j >= 16:
            return
        base = XF + (j % (DX + 1)) * 12
        for r in range(3):
            bload("buffer_load_dwordx4", V(base + 4 * r, 4), V(XA + r), S(sX, 4), "0", off=64 * j)

    def write_wq(j):
        if j >= 16:
            return
        base = WS + (j % (DW + 1)) * 8
        boff = WB + (j & 1) * 8192
        a.ds_write("ds_write_b128", V(WW), V(base, 4), off=boff)
        a.ds_write("ds_write_b64", V(WW), V(base + 4, 2), off=boff + 256 + 8)
        a.ds_write("ds_write_b64", V(WW), V(base + 6, 2), off=boff + 256)

    load_wq(0)
    load_x(0)
    for j in range(1, DW + 1):
        load_wq(j)
    for j in range(1, DX):
        load_x(j)
    write_wq(0)
    a.waitcnt(lgkm=0)
    a.barrier()
    for i in range(16):
        load_wq(i + 1 + DW)
        load_x(i + DX)
        issue_dma_piece(i // 4, i % 4)
        write_wq(i + 1)
        boff = WB + (i & 1) * 8192
        xb = XF + (i % (DX + 1)) * 12
        order = [0, 1, 2, 3, 8, 4, 5, 6, 7, 9]
        for Tt in order:
            a.ds_read("ds_read_b64_tr_b16", V(AF + Tt * 4, 2), V(AW + Tt), off=boff)
            a.ds_read("ds_read_b64_tr_b16", V(AF + Tt * 4 + 2, 2), V(AW + Tt), off=boff + 1024)
        for Tt in order:
            if Tt < 8:
                for r in range(2):
                    d = V(QA(Tt, r), 4)
                    a.mfma(d, V(AF + Tt * 4, 4), V(xb + 4 * r, 4), d if i else "0")
            else:
                d = V(QA9(Tt & 1), 4)
                a.mfma(d, V(AF + Tt * 4, 4), V(xb + 8, 4), d if i else "0")
        a.waitcnt(lgkm=0)
        a.barrier()

    for r in range(2):
        for t in range(4):
            q = QF(r, t)
            lo, hi = QA(2 * t, r), QA(2 * t + 1, r)
            a.valu("v_cvt_pk_bf16_f32", V(q), V(lo), V(lo + 1))
            a.valu("v_cvt_pk_bf16_f32", V(q + 1), V(lo + 2), V(lo + 3))
            a.valu("v_cvt_pk_bf16_f32", V(q + 2), V(hi), V(hi + 1))
            a.valu("v_cvt_pk_bf16_f32", V(q + 3), V(hi + 2), V(hi + 3))
    x0 = FR
    lo, hi = QA9(0), QA9(1)
    a.valu("v_cvt_pk_bf16_f32", V(x0), V(lo), V(lo + 1))
    a.valu("v_cvt_pk_bf16_f32", V(x0 + 1), V(lo + 2), V(lo + 3))
    a.valu("v_cvt_pk_bf16_f32", V(x0 + 2), V(hi), V(hi + 1))
    a.valu("v_cvt_pk_bf16_f32", V(x0 + 3), V(hi + 2), V(hi + 3))
    a.valu("v_lshlrev_b32", V(t0), 4, V(vL))
    a.valu("v_add_u32", V(t1), S(sDM0), V(t0))
    a.ds_write("ds_write_b128", V(t1), V(x0, 4), off=WB)
    a.waitcnt(lgkm=0)
    a.barrier()
    for t in range(4):
        a.ds_read("ds_read_b128", V(QF(2, t), 4), V(t0), off=WB + t * 1024)
    for r in range(3):
        a.valu("v_mov_b32", V(MM + r), "0xff800000")
        a.valu("v_mov_b32", V(LL + r), 0)
    a.salu("s_and_b32", S(sT1), S(sW), 1)
    a.salu("s_lshl_b32", S(sT1), S(sT1), 13)

    def softmax(tiles, first):
        seqs = []
        for (sb, n, r, tb) in tiles:
            q = []
            ta, tb1, tc = tb, tb + 1, tb + 2
            q.append(lambda sb=sb, ta=ta: a.valu("v_max3_f32", V(ta), V(sb), V(sb + 1), V(sb + 2)))
            k = 3
            while k + 1 < n:
                q.append(lambda sb=sb, ta=ta, k=k: a.valu("v_max3_f32", V(ta), V(ta), V(sb + k), V(sb + k + 1)))
                k += 2
            if k < n:
                q.append(lambda sb=sb, ta=ta, k=k: a.valu("v_max_f32", V(ta), V(ta), V(sb + k)))
            for pl in ("v_permlane16_swap_b32", "v_permlane32_swap_b32"):
                q.append(lambda ta=ta, tb1=tb1: a.valu("v_mov_b32", V(tb1), V(ta)))
                q.append(lambda ta=ta, tb1=tb1, pl=pl: a.valu(pl, V(ta), V(tb1)))
                q.append(lambda ta=ta, tb1=tb1: a.valu("v_max_f32", V(ta), V(ta), V(tb1)))
            if first:
                q.append(lambda ta=ta, r=r: a.valu("v_mov_b32", V(MM + r), V(ta)))
            else:
                q.append(lambda ta=ta, r=r: a.valu("v_max_f32", V(ta), V(ta), V(MM + r)))
                q.append(lambda ta=ta, tb1=tb1, r=r: a.valu("v_sub_f32", V(tb1), V(MM + r), V(ta)))
                q.append(lambda ta=ta, r=r: a.valu("v_mov_b32", V(MM + r), V(ta)))
                q.append(lambda tb1=tb1: a.valu("v_mul_f32", V(tb1), S(sC), V(tb1)))
                q.append(lambda tb1=tb1: a.valu("v_exp_f32", V(tb1), V(tb1)))
            q.append(lambda ta=ta, tc=tc: a.valu("v_mul_f32", V(tc), S(sC), V(ta)))
            for k in range(n):
                q.append(lambda sb=sb, k=k, tc=tc: a.valu("v_fma_f32", V(sb + k), V(sb + k), S(sC), "-" + V(tc)))
            for k in range(n):
                q.append(lambda sb=sb, k=k: a.valu("v_exp_f32", V(sb + k), V(sb + k)))
            if not first:
                q.append(lambda r=r, tb1=tb1: a.valu("v_mul_f32", V(LL + r), V(LL + r), V(tb1)))
                for dt in range(8):
                    for e in range(4):
                        q.append(lambda r=r, dt=dt, e=e, tb1=tb1: a.valu("v_mul_f32", V(OA(r, dt) + e), V(OA(r, dt) + e), V(tb1)))
            for k in range(n):
                q.append(lambda sb=sb, k=k, r=r: a.valu("v_add_f32", V(LL + r), V(LL + r), V(sb + k)))
            for u in range(n // 8):
                b0 = sb + 8 * u
                for e in range(4):
                    q.append(lambda b0=b0, e=e: a.valu("v_cvt_pk_bf16_f32", V(b0 + e), V(b0 + 2 * e), V(b0 + 2 * e + 1)))
            seqs.append(q)
        mx = max(len(q) for q in seqs)
        for k in range(mx):
            for q in seqs:
                if k < len(q):
                    q[k]()

    def pipeline(items, depth):
        n = len(items)
        for k in range(min(depth, n)):
            items[k][0](k % NFR)
        for k in range(n):
            items[k][1](k % NFR)
            if k + depth < n:
                items[k + depth][0]((k + depth) % NFR)

    lbl = [0]

    for s in range(8):
        jK, jV = 2 * s, 2 * s + 1
        kslot = (jK % 4) * SLOT
        vslot = (jV % 4) * SLOT
        wait_tile(jK)
        a.barrier()
        if jK >= 1 and jK + 3 <= 15:
            issue_dma_tile(jK + 3)
        items = []
        for kt in range(4):
            for t in range(4):
                def iss(sl, kt=kt, t=t):
                    a.ds_read("ds_read_b128", V(FR + 4 * sl, 4), V(AK + t), off=kslot + kt * 4096)

                def use(sl, kt=kt, t=t):
                    for r in range(2):
                        d = V(SS(r, kt), 4)
                        a.mfma(d, V(FR + 4 * sl, 4), V(QF(r, t), 4), d if t else "0")
                items.append((iss, use))
        pipeline(items, 6)
        lbl[0] += 1
        L = f"{name}_n{lbl[0]}"
        a.flush()
        a.salu("s_cmp_lg_u32", None, S(sN9), s & 1)
        a.misc(f"s_cbranch_scc1 {L}")
        for t in range(4):
            a.valu("v_add_u32", V(T + 10 + t), S(sT1), V(AK + t))
        items = []
        for kt in range(2):
            for t in range(4):
                def iss(sl, kt=kt, t=t):
                    a.ds_read("ds_read_b128", V(FR + 4 * sl, 4), V(T + 10 + t), off=kslot + kt * 4096)

                def use(sl, kt=kt, t=t):
                    d = V(S9(kt), 4)
                    a.mfma(d, V(FR + 4 * sl, 4), V(QF(2, t), 4), d if t else "0")
                items.append((iss, use))
        pipeline(items, 8)
        a.flush()
        a.label(L)
        wait_tile(jV)
        a.barrier()
        if jV + 3 <= 15:
            issue_dma_tile(jV + 3)
        softmax([(SS(0, 0), 16, 0, T + 4), (SS(1, 0), 16, 1, T + 7)], first=(s == 0))
        items = []
        for u in range(2):
            for dt in range(8):
                def iss(sl, u=u, dt=dt):
                    a.ds_read("ds_read_b64_tr_b16", V(FR + 4 * sl, 2), V(AV + dt), off=vslot + u * 8192)
                    a.ds_read("ds_read_b64_tr_b16", V(FR + 4 * sl + 2, 2), V(AV + dt), off=vslot + u * 8192 + 4096)

                def use(sl, u=u, dt=dt):
                    for r in range(2):
                        d = V(OA(r, dt), 4)
                        a.mfma(d, V(FR + 4 * sl, 4), V(SS(r, 2 * u), 4), d if (s or u) else "0")
                items.append((iss, use))
        pipeline(items, 6)
        lbl[0] += 1
        L = f"{name}_n{lbl[0]}"
        a.flush()
        a.salu("s_cmp_lg_u32", None, S(sN9), s & 1)
        a.misc(f"s_cbranch_scc1 {L}")
        softmax([(S9(0), 8, 2, T + 4)], first=(s < 2))
        items = []
        for dt in range(8):
            def iss(sl, dt=dt):
                a.valu("v_add_u32", V(T + 10 + (dt & 3)), S(sT1), V(AV + dt))
                a.ds_read("ds_read_b64_tr_b16", V(FR + 4 * sl, 2), V(T + 10 + (dt & 3)), off=vslot)
                a.ds_read("ds_read_b64_tr_b16", V(FR + 4 * sl + 2, 2), V(T + 10 + (dt & 3)), off=vslot + 4096)

            def use(sl, dt=dt):
                d = V(OA(2, dt), 4)
                a.mfma(d, V(FR + 4 * sl, 4), V(S9(0), 4), d if s >= 2 else "0")
            items.append((iss, use))
        pipeline(items, 8)
        a.flush()
        a.label(L)

    for r in range(3):
        for pl in ("v_permlane16_swap_b32", "v_permlane32_swap_b32"):
            a.valu("v_mov_b32", V(t0), V(LL + r))
            a.valu(pl, V(LL + r), V(t0))
            a.valu("v_add_f32", V(LL + r), V(LL + r), V(t0))
    vSt = T + 10
    a.valu("v_lshlrev_b32", V(t0), 3, V(vG))
    a.valu("v_lshl_add_u32", V(vSt), V(vI), 13, V(t0))
    for r in range(2):
        a.valu("v_rcp_f32", V(t1), V(LL + r))
        a.salu("s_lshl_b32", S(sT2), S(sW), 18)
        a.salu("s_add_u32", S(sT2), S(sT2), S(sWQoff))
        a.salu("s_add_u32", S(sT2), S(sT2), r * 131072)
        for dt in range(8):
            o = OA(r, dt)
            for e in range(4):
                a.valu("v_mul_f32", V(o + e), V(o + e), V(t1))
            a.valu("v_cvt_pk_bf16_f32", V(o), V(o), V(o + 1))
            a.valu("v_cvt_pk_bf16_f32", V(o + 1), V(o + 2), V(o + 3))
            bstore("buffer_store_dwordx2", V(o, 2), V(vSt), S(sO, 4), S(sT2), off=dt * 32)
    a.waitcnt(lgkm=0)
    a.barrier()
    CB = 0
    PB = 4096
    a.valu("v_mov_b32", V(t2), V(MM + 2))
    a.valu("v_mov_b32", V(t3), V(LL + 2))
    a.salu("s_lshl_b32", S(sT2), S(sW), 7)
    a.valu("v_lshlrev_b32", V(t0), 3, V(vI))
    a.valu("v_add_u32", V(t1), S(sT2), V(t0))
    assert t3 == t2 + 1 and t2 % 2 == 0
    a.ds_write("ds_write_b64", V(t1), V(t2, 2), off=CB)
    a.waitcnt(lgkm=0)
    a.barrier()
    ml = FR
    for w in range(4):
        a.ds_read("ds_read_b64", V(ml + 2 * w, 2), V(t0), off=CB + w * 128)
    a.valu("v_max3_f32", V(t1), V(ml), V(ml + 2), V(ml + 4))
    a.valu("v_max_f32", V(t1), V(t1), V(ml + 6))
    a.valu("v_mov_b32", V(t2), 0)
    for w in range(4):
        a.valu("v_sub_f32", V(t3), V(ml + 2 * w), V(t1))
        a.valu("v_mul_f32", V(t3), S(sC), V(t3))
        a.valu("v_exp_f32", V(t3), V(t3))
        a.valu("v_fma_f32", V(t2), V(t3), V(ml + 2 * w + 1), V(t2))
    a.valu("v_sub_f32", V(t3), V(MM + 2), V(t1))
    a.valu("v_mul_f32", V(t3), S(sC), V(t3))
    a.valu("v_exp_f32", V(t3), V(t3))
    a.valu("v_rcp_f32", V(t2), V(t2))
    a.valu("v_mul_f32", V(t3), V(t3), V(t2))
    a.salu("s_lshl_b32", S(sT2), S(sW), 13)
    a.valu("v_lshlrev_b32", V(t0), 4, V(vL))
    a.valu("v_add_u32", V(t1), S(sT2), V(t0))
    for dt in range(8):
        o = OA(2, dt)
        for e in range(4):
            a.valu("v_mul_f32", V(o + e), V(o + e), V(t3))
        a.ds_write("ds_write_b128", V(t1), V(o, 4), off=PB + dt * 1024)
    a.waitcnt(lgkm=0)
    a.barrier()
    a.salu("s_lshl_b32", S(sT2), S(sW), 11)
    a.valu("v_add_u32", V(t1), S(sT2), V(t0))
    for j in range(2):
        for w in range(4):
            a.ds_read("ds_read_b128", V(FR + (j * 4 + w) * 4, 4), V(t1), off=PB + w * 8192 + j * 1024)
    a.salu("s_lshl_b32", S(sT2), S(sW), 6)
    a.salu("s_add_u32", S(sT2), S(sT2), S(sWQoff))
    a.salu("s_add_u32", S(sT2), S(sT2), 8 * 131072)
    for j in range(2):
        b0 = FR + j * 16
        for e in range(4):
            a.valu("v_add_f32", V(b0 + e), V(b0 + e), V(b0 + 4 + e))
            a.valu("v_add_f32", V(b0 + 8 + e), V(b0 + 8 + e), V(b0 + 12 + e))
        for e in range(4):
            a.valu("v_add_f32", V(b0 + e), V(b0 + e), V(b0 + 8 + e))
        a.valu("v_cvt_pk_bf16_f32", V(b0), V(b0), V(b0 + 1))
        a.valu("v_cvt_pk_bf16_f32", V(b0 + 1), V(b0 + 2), V(b0 + 3))
        bstore("buffer_store_dwordx2", V(b0, 2), V(vSt), S(sO, 4), S(sT2), off=j * 32)
    a.label(f"{name}_done")
    a.misc("s_endpgm")
    return a
```

```python
from asmlib import Asm, V, S

WS_P = 0x1300000
STAGE = 69632
LDS_K2 = 2 * STAGE


def gen_k2(name):
    a = Asm()
    a.label(name)
    sO, sWO, sP = 16, 20, 24
    sW, sT0, sT1, sT2, sT3 = 28, 29, 30, 31, 32
    sKS, sNQ, sB, sBLK = 33, 34, 35, 36
    sDM0, sObase, sWObase = 37, 38, 39
    ACC = lambda nt, qt: (nt * 9 + qt) * 4
    BF = 72
    AF = 144
    AK = 160
    AWo = 164
    DO = 172
    DW = 173
    T = 174
    vL, vG, vI = T, T + 1, T + 2
    t0, t1, t2, t3 = T + 4, T + 5, T + 6, T + 7

    a.salu("s_cmp_ge_u32", None, "s2", 256)
    a.misc(f"s_cbranch_scc1 {name}_done")
    a.misc("s_load_dwordx2 s[4:5], s[0:1], 32")
    a.misc("s_load_dwordx2 s[6:7], s[0:1], 72")
    a.misc("s_load_dwordx2 s[12:13], s[0:1], 96")
    a.valu("v_and_b32", V(vL), 63, "v0")
    a.valu("v_lshrrev_b32", V(T + 3), 6, "v0")
    a.valu("v_lshrrev_b32", V(vG), 4, V(vL))
    a.valu("v_and_b32", V(vI), 15, V(vL))
    a.valu("v_readfirstlane_b32", S(sW), V(T + 3))
    a.misc("s_waitcnt lgkmcnt(0)")
    a.salu("s_and_b32", S(sKS), "s2", 3)
    a.salu("s_lshr_b32", S(sNQ), "s2", 2)
    a.salu("s_and_b32", S(sNQ), S(sNQ), 3)
    a.salu("s_lshr_b32", S(sB), "s2", 4)
    a.salu("s_and_b32", S(sB), S(sB), 7)
    a.salu("s_lshr_b32", S(sBLK), "s2", 7)
    a.salu("s_cmp_eq_u32", None, S(sBLK), 0)
    a.salu("s_cselect_b32", S(sWO), "s4", "s6")
    a.salu("s_cselect_b32", S(sWO + 1), "s5", "s7")
    a.salu("s_mov_b32", S(sWO + 2), 4194304)
    a.salu("s_mov_b32", S(sWO + 3), "0x00020000")
    a.salu("s_mul_i32", S(sT0), S(sBLK), 9437184)
    a.salu("s_mul_i32", S(sT1), S(sB), 1179648)
    a.salu("s_add_u32", S(sT0), S(sT0), S(sT1))
    a.salu("s_add_u32", S(sO), "s12", S(sT0))
    a.salu("s_addc_u32", S(sO + 1), "s13", 0)
    a.salu("s_mov_b32", S(sO + 2), 1179648)
    a.salu("s_mov_b32", S(sO + 3), "0x00020000")
    a.salu("s_lshl_b32", S(sT0), S(sKS), 1)
    a.salu("s_add_u32", S(sT0), S(sT0), S(sBLK))
    a.salu("s_mul_i32", S(sT0), S(sT0), 1152 * 2048)
    a.salu("s_mul_i32", S(sT1), S(sB), 144 * 2048)
    a.salu("s_add_u32", S(sT0), S(sT0), S(sT1))
    a.salu("s_add_u32", S(sT0), S(sT0), WS_P)
    a.salu("s_add_u32", S(sP), "s12", S(sT0))
    a.salu("s_addc_u32", S(sP + 1), "s13", 0)
    a.salu("s_mov_b32", S(sP + 2), 144 * 2048)
    a.salu("s_mov_b32", S(sP + 3), "0x00020000")
    a.salu("s_lshl_b32", S(sDM0), S(sW), 10)
    a.salu("s_lshl_b32", S(sObase), S(sKS), 11)
    a.salu("s_lshl_b32", S(sWObase), S(sKS), 20)
    a.salu("s_lshl_b32", S(sT0), S(sNQ), 8)
    a.salu("s_add_u32", S(sWObase), S(sWObase), S(sT0))
    a.salu("s_lshl_b32", S(sT0), S(sW), 2)
    a.valu("v_add_u32", V(t0), S(sT0), V(vG))
    a.valu("v_xor_b32", V(t1), V(vI), V(t0))
    a.valu("v_lshlrev_b32", V(t1), 4, V(t1))
    a.valu("v_lshl_add_u32", V(DO), V(t0), 13, V(t1))
    a.salu("s_lshr_b32", S(sT0), S(sW), 1)
    a.salu("s_lshl_b32", S(sT0), S(sT0), 2)
    a.valu("v_add_u32", V(t1), S(sT0), V(vG))
    a.valu("v_lshlrev_b32", V(t1), 1, V(t1))
    a.valu("v_xor_b32", V(t1), V(vI), V(t1))
    a.valu("v_lshlrev_b32", V(t1), 4, V(t1))
    a.valu("v_lshl_add_u32", V(DW), V(t0), 10, V(t1))
    for t in range(4):
        a.valu("v_add_u32", V(t0), 4 * t, V(vG))
        a.valu("v_xor_b32", V(t0), V(t0), V(vI))
        a.valu("v_lshlrev_b32", V(t0), 4, V(t0))
        a.valu("v_lshl_add_u32", V(AK + t), V(vI), 8, V(t0))
    a.valu("v_lshrrev_b32", V(t0), 2, V(vI))
    a.valu("v_lshl_add_u32", V(t1), V(vG), 3, V(t0))
    a.valu("v_and_b32", V(t2), 1, V(vG))
    a.valu("v_lshl_add_u32", V(t2), V(t2), 2, V(t0))
    a.valu("v_and_b32", V(t3), 3, V(vI))
    a.valu("v_lshlrev_b32", V(t3), 3, V(t3))
    a.valu("v_lshl_add_u32", V(t3), V(t1), 8, V(t3))
    a.salu("s_lshl_b32", S(sT0), S(sW), 1)
    for nt in range(2):
        a.salu("s_add_u32", S(sT1), S(sT0), nt)
        a.valu("v_xor_b32", V(t0), S(sT1), V(t2))
        a.valu("v_lshl_add_u32", V(AWo + nt), V(t0), 5, V(t3))

    for j in range(6):
        a.valu("v_add_u32", V(AK + 6 + j), STAGE, V(AK + j))

    def issue(kt):
        st = (kt & 1) * STAGE
        for i in range(9):
            a.salu("s_add_u32", "m0", S(sDM0), st + i * 4096)
            a.salu("s_add_u32", S(sT3), S(sObase), i * 16 * 8192 + kt * 256)
            a.dma(V(DO), S(sO, 4), S(sT3))
        for i in range(8):
            a.salu("s_add_u32", "m0", S(sDM0), st + 36864 + i * 4096)
            a.salu("s_add_u32", S(sT3), S(sWObase), (kt * 128 + 16 * i) * 1024)
            a.dma(V(DW), S(sWO, 4), S(sT3))

    issue(0)
    for kt in range(8):
        sa = (kt & 1) * 6
        a.waitcnt(vm=0, lgkm=0)
        a.barrier()
        if kt + 1 < 8:
            issue(kt + 1)

        def rd(u):
            bb = BF + (u & 1) * 36
            ab = AF + (u & 1) * 8
            for nt in range(2):
                a.ds_read("ds_read_b64_tr_b16", V(ab + 4 * nt, 2), V(AWo + sa + nt), off=36864 + u * 8192)
                a.ds_read("ds_read_b64_tr_b16", V(ab + 4 * nt + 2, 2), V(AWo + sa + nt), off=36864 + u * 8192 + 1024)
            for qt in range(9):
                a.ds_read("ds_read_b128", V(bb + 4 * qt, 4), V(AK + sa + u), off=qt * 4096)

        rd(0)
        for u in range(4):
            if u + 1 < 4:
                rd(u + 1)
            bb = BF + (u & 1) * 36
            ab = AF + (u & 1) * 8
            for qt in range(9):
                for nt in range(2):
                    d = V(ACC(nt, qt), 4)
                    a.mfma(d, V(ab + 4 * nt, 4), V(bb + 4 * qt, 4), d if (kt or u) else "0")
    a.valu("v_lshlrev_b32", V(t0), 4, V(vG))
    a.valu("v_lshl_add_u32", V(t0), V(vI), 11, V(t0))
    a.salu("s_lshl_b32", S(sT0), S(sNQ), 9)
    a.salu("s_lshl_b32", S(sT1), S(sW), 7)
    a.salu("s_add_u32", S(sT0), S(sT0), S(sT1))
    for qt in range(9):
        a.salu("s_add_u32", S(sT1), S(sT0), qt * 16 * 2048)
        for nt in range(2):
            a.bstore("buffer_store_dwordx4", V(ACC(nt, qt), 4), V(t0), S(sP, 4), S(sT1), off=nt * 64)
    a.label(f"{name}_done")
    a.misc("s_endpgm")
    return a


def gen_k3(name):
    a = Asm()
    a.label(name)
    a.salu("s_cmp_ge_u32", None, "s2", 576)
    a.misc(f"s_cbranch_scc1 {name}_done")
    a.misc("s_load_dwordx2 s[4:5], s[0:1], 80")
    a.misc("s_load_dwordx2 s[12:13], s[0:1], 96")
    a.salu("s_lshl_b32", "s3", "s2", 8)
    a.valu("v_add_u32", "v1", "s3", "v0")
    a.valu("v_lshrrev_b32", "v2", 7, "v1")
    a.valu("v_and_b32", "v3", 127, "v1")
    a.valu("v_lshrrev_b32", "v4", 6, "v3")
    a.valu("v_and_b32", "v5", 63, "v3")
    a.misc("s_waitcnt lgkmcnt(0)")
    a.salu("s_add_u32", "s8", "s12", WS_P)
    a.salu("s_addc_u32", "s9", "s13", 0)
    a.salu("s_mov_b32", "s10", 18874368)
    a.salu("s_mov_b32", "s11", "0x00020000")
    a.salu("s_mov_b32", "s16", "s4")
    a.salu("s_mov_b32", "s17", "s5")
    a.salu("s_mov_b32", "s18", 2359296)
    a.salu("s_mov_b32", "s19", "0x00020000")
    a.salu("s_mov_b32", "s20", 1152)
    a.valu("v_mul_lo_u32", "v6", "v4", "s20")
    a.valu("v_add_u32", "v6", "v6", "v2")
    a.valu("v_lshlrev_b32", "v7", 5, "v5")
    a.valu("v_lshl_add_u32", "v6", "v6", 11, "v7")
    a.valu("v_lshlrev_b32", "v8", 4, "v1")
    for ks in range(4):
        a.salu("s_mov_b32", S(21 + ks), ks * 2 * 1152 * 2048)
    for ks in range(4):
        a.bload("buffer_load_dwordx4", V(16 + ks * 8, 4), "v6", "s[8:11]", S(21 + ks))
        a.bload("buffer_load_dwordx4", V(20 + ks * 8, 4), "v6", "s[8:11]", S(21 + ks), off=16)
    for e in range(8):
        a.valu("v_add_f32", V(16 + e), V(16 + e), V(24 + e))
    for e in range(8):
        a.valu("v_add_f32", V(32 + e), V(32 + e), V(40 + e))
    for e in range(8):
        a.valu("v_add_f32", V(16 + e), V(16 + e), V(32 + e))
    for e in range(4):
        a.valu("v_cvt_pk_bf16_f32", V(48 + e), V(16 + 2 * e), V(17 + 2 * e))
    a.bstore("buffer_store_dwordx4", "v[48:51]", "v8", "s[16:19]", "0")
    a.label(f"{name}_done")
    a.misc("s_endpgm")
    return a
```

```python
import sys
sys.path.insert(0, "gen")
import importlib
import k1, k2
NAME = "concat_heads__mha_block_cached__mha_block_cached__near_ridge"
def desc(name, nv, ns=102):
    acc = (nv + 3)//4*4
    return f""".amdhsa_kernel {name}
  .amdhsa_next_free_vgpr {nv}
  .amdhsa_next_free_sgpr {ns}
  .amdhsa_accum_offset {acc}
  .amdhsa_group_segment_fixed_size 0
  .amdhsa_kernarg_size 104
  .amdhsa_user_sgpr_count 2
  .amdhsa_user_sgpr_kernarg_segment_ptr 1
  .amdhsa_system_sgpr_workgroup_id_x 1
.end_amdhsa_kernel
"""
def build(out, stamps=False):
    ks = [("attn_kernel", (lambda n: k1.gen_k1(n, stamps)), 512, k1.LDS_K1),
          ("oproj_kernel", k2.gen_k2, 256, k2.LDS_K2),
          ("reduce_kernel", k2.gen_k3, 576, 0)]
    hdr = open(f"cdna_kernels/{NAME}.s.ref").read().split("\n")
    head = [l for l in hdr if l.startswith(";") and "@launch" not in l and "Override launch" not in l and "grid=ceil" not in l]
    txt = "\n".join(head) + "\n"
    for n, g, grid, lds in ks:
        txt += f"; @launch kernel={n} grid=({grid},1,1) block=(256,1,1) lds={lds}\n"
    txt += '.amdgcn_target "amdgcn-amd-amdhsa--gfx950"\n.text\n'
    descs = ""
    for n, g, grid, lds in ks:
        a = g(n)
        txt += f".globl {n}\n.p2align 8\n.type {n},@function\n" + a.text()
        print(n, "instrs", a.ninstr, "maxv", a.maxv)
        descs += ".p2align 6\n" + desc(n, a.maxv + 1)
    txt += '.section .rodata,"a"\n' + descs
    open(out, "w").write(txt)
if __name__ == "__main__":
    build(sys.argv[1] if len(sys.argv) > 1 else f"cdna_kernels/{NAME}.s", len(sys.argv) > 2)
```

```python
import struct
from asmlib import Asm, V, S

RING = 16384
SLOT = 16384
WB = 0
LDS_K1 = 81920

CSCALE = 1.4426950408889634 / (128.0 ** 0.5)


def f32bits(x):
    return struct.unpack("<I", struct.pack("<f", x))[0]


def OA(r, dt):
    return (r * 8 + dt) * 4


def QF(r, t):
    return 96 + (r * 4 + t) * 4


def SS(r, kt):
    return 144 + (r * 4 + kt) * 4


def S9(kt):
    return 176 + kt * 4


FR = 184
NFR = 8
AK = 216
AV = 220
DK = 228
DV = 229
MM = 230
LL = 233
TMP = 236

sX, sWQ, sK, sV, sO = 16, 20, 24, 28, 32
sW = 36
sC = 37
sT0 = 38
sT1 = 39
sWQoff = 48
sDM0 = 49
sN9 = 50
sT2 = 51
sT3 = 52


def gen_k1(name, stamps=False):
    a = Asm()
    a.vmn = 0
    nst = [0]

    def stamp(real=False):
        if not stamps:
            return
        a.waitcnt(lgkm=0)
        a.misc(f"{'s_memrealtime' if real else 's_memtime'} s[{60 + 2 * nst[0]}:{61 + 2 * nst[0]}]")
        a.misc("s_waitcnt lgkmcnt(0)")
        nst[0] += 1

    a.label(name)

    def seg(k):
        if not stamps:
            return
        a.waitcnt(lgkm=0)
        a.misc("s_memtime s[96:97]")
        a.misc("s_waitcnt lgkmcnt(0)")
        a.salu("s_sub_u32", "s98", "s96", "s99")
        a.salu("s_add_u32", S(80 + k), S(80 + k), "s98")
        a.salu("s_mov_b32", "s99", "s96")

    def dma(voff, srd, soff):
        a.dma(voff, srd, soff, flags='nt')
        a.vmn += 1

    def bload(*x, **k):
        a.bload(*x, **k)
        a.vmn += 1

    def bstore(*x, **k):
        a.bstore(*x, **k)
        a.vmn += 1

    a.salu("s_cmp_ge_u32", None, "s2", 512)
    a.misc(f"s_cbranch_scc1 {name}_done")
    a.misc("s_load_dwordx8 s[4:11], s[0:1], 0")
    a.misc("s_load_dwordx8 s[40:47], s[0:1], 40")
    a.misc("s_load_dwordx2 s[12:13], s[0:1], 96")
    T = TMP
    vL, vG, vI = T, T + 1, T + 2
    a.valu("v_and_b32", V(vL), 63, "v0")
    a.valu("v_lshrrev_b32", V(T + 3), 6, "v0")
    a.valu("v_lshrrev_b32", V(vG), 4, V(vL))
    a.valu("v_and_b32", V(vI), 15, V(vL))
    a.valu("v_readfirstlane_b32", S(sW), V(T + 3))
    a.misc("s_waitcnt lgkmcnt(0)")
    sH = 53
    a.salu("s_lshr_b32", S(sT0), "s2", 2)
    a.salu("s_and_b32", S(sT0), S(sT0), 1)
    a.salu("s_cmp_eq_u32", None, S(sT0), 0)
    for i in range(8):
        a.salu("s_cselect_b32", S(4 + i), S(4 + i), S(40 + i))
    a.salu("s_lshr_b32", S(sT1), "s2", 7)
    a.salu("s_and_b32", S(sT2), "s2", 2)
    a.salu("s_lshl_b32", S(sT2), S(sT2), 1)
    a.salu("s_add_u32", S(sT1), S(sT1), S(sT2))
    a.salu("s_lshr_b32", S(sH), "s2", 3)
    a.salu("s_and_b32", S(sH), S(sH), 15)
    a.salu("s_and_b32", S(sT2), "s2", 1)
    a.salu("s_lshl_b32", S(sT2), S(sT2), 4)
    a.salu("s_add_u32", S(sH), S(sH), S(sT2))
    a.salu("s_mul_i32", S(sT2), S(sT1), 147456)
    a.salu("s_add_u32", S(sX), "s4", S(sT2))
    a.salu("s_addc_u32", S(sX + 1), "s5", 0)
    a.salu("s_mov_b32", S(sX + 2), 147456)
    a.salu("s_mov_b32", S(sX + 3), "0x00020000")
    a.salu("s_mov_b32", S(sWQ), "s10")
    a.salu("s_mov_b32", S(sWQ + 1), "s11")
    a.salu("s_mov_b32", S(sWQ + 2), 4194304)
    a.salu("s_mov_b32", S(sWQ + 3), "0x00020000")
    a.salu("s_lshl_b32", S(sT3), S(sT1), 5)
    a.salu("s_add_u32", S(sT3), S(sT3), S(sH))
    a.salu("s_lshl_b32", S(sT2), S(sT3), 17)
    a.salu("s_add_u32", S(sK), "s6", S(sT2))
    a.salu("s_addc_u32", S(sK + 1), "s7", 0)
    a.salu("s_mov_b32", S(sK + 2), 131072)
    a.salu("s_mov_b32", S(sK + 3), "0x00020000")
    a.salu("s_add_u32", S(sV), "s8", S(sT2))
    a.salu("s_addc_u32", S(sV + 1), "s9", 0)
    a.salu("s_mov_b32", S(sV + 2), 131072)
    a.salu("s_mov_b32", S(sV + 3), "0x00020000")
    a.salu("s_mul_i32", S(sT2), S(sT0), 9437184)
    a.salu("s_mul_i32", S(sT3), S(sT3), 36864)
    a.salu("s_add_u32", S(sT2), S(sT2), S(sT3))
    a.salu("s_add_u32", S(sO), "s12", S(sT2))
    a.salu("s_addc_u32", S(sO + 1), "s13", 0)
    a.salu("s_mov_b32", S(sO + 2), 36864)
    a.salu("s_mov_b32", S(sO + 3), "0x00020000")
    a.salu("s_lshl_b32", S(sWQoff), S(sH), 8)
    a.salu("s_mov_b32", S(sC), hex(f32bits(CSCALE)))
    a.salu("s_lshl_b32", S(sDM0), S(sW), 10)
    a.salu("s_lshr_b32", S(sN9), S(sW), 1)

    t0, t1, t2 = T + 4, T + 5, T + 6
    a.salu("s_lshl_b32", S(sT2), S(sW), 2)
    a.valu("v_add_u32", V(t0), S(sT2), V(vG))
    a.valu("v_xor_b32", V(t1), V(vI), V(t0))
    a.valu("v_lshlrev_b32", V(t1), 4, V(t1))
    a.valu("v_lshl_add_u32", V(DK), V(t0), 8, V(t1))
    a.valu("v_and_b32", V(t1), 7, V(t0))
    a.valu("v_lshlrev_b32", V(t1), 1, V(t1))
    a.valu("v_xor_b32", V(t1), V(vI), V(t1))
    a.valu("v_lshlrev_b32", V(t1), 4, V(t1))
    a.valu("v_lshl_add_u32", V(DV), V(t0), 8, V(t1))

    dma_last = {}

    def issue_dma_piece(tile, i):
        srd = S(sK, 4) if tile % 2 == 0 else S(sV, 4)
        voff = V(DK) if tile % 2 == 0 else V(DV)
        goff = (tile // 2) * 16384 + i * 4096
        loff = RING + (tile % 4) * SLOT + i * 4096
        a.salu("s_add_u32", "m0", S(sDM0), loff)
        a.salu("s_mov_b32", S(sT3), goff)
        dma(voff, srd, S(sT3))
        dma_last[tile] = a.vmn

    def issue_dma_tile(tile):
        for i in range(4):
            issue_dma_piece(tile, i)

    def wait_tile(tile):
        a.waitcnt(vm=a.vmn - dma_last[tile], lgkm=0)

    for t in range(4):
        a.valu("v_add_u32", V(t0), 4 * t, V(vG))
        a.valu("v_xor_b32", V(t0), V(t0), V(vI))
        a.valu("v_lshlrev_b32", V(t0), 4, V(t0))
        a.valu("v_lshl_add_u32", V(AK + t), V(vI), 8, V(t0))
        a.valu("v_add_u32", V(AK + t), RING, V(AK + t))
    a.valu("v_lshrrev_b32", V(t0), 2, V(vI))
    a.valu("v_lshl_add_u32", V(t0), V(vG), 2, V(t0))
    a.valu("v_and_b32", V(t1), 7, V(t0))
    a.valu("v_and_b32", V(t2), 3, V(vI))
    a.valu("v_lshlrev_b32", V(t2), 3, V(t2))
    a.valu("v_lshl_add_u32", V(t2), V(t0), 8, V(t2))
    a.valu("v_add_u32", V(t2), RING, V(t2))
    for dt in range(8):
        a.valu("v_xor_b32", V(t0), dt, V(t1))
        a.valu("v_lshl_add_u32", V(AV + dt), V(t0), 5, V(t2))

    QA = lambda Tt, r: (Tt * 2 + r) * 4
    QA9 = lambda o: 64 + o * 4
    AF = 72
    XF = 112
    WS = 160
    AW = 192
    WW = 202
    XA = 203
    WQA = 206
    DX = 3
    DW = 3
    a.valu("v_lshrrev_b32", V(t0), 2, V(vI))
    a.valu("v_lshl_add_u32", V(t1), V(vG), 3, V(t0))
    a.valu("v_and_b32", V(t2), 3, V(vI))
    a.valu("v_lshlrev_b32", V(t2), 4, V(t2))
    a.valu("v_lshl_add_u32", V(t2), V(t1), 8, V(t2))
    t3, t4, t5 = T + 7, T + 8, T + 9
    a.valu("v_and_b32", V(t3), 1, V(t0))
    a.valu("v_lshrrev_b32", V(t4), 3, V(vI))
    a.valu("v_and_b32", V(t5), 1, V(vG))
    a.valu("v_lshl_add_u32", V(t4), V(t5), 1, V(t4))
    for Tt in range(10):
        if Tt < 8:
            t, o = Tt >> 1, Tt & 1
            a.valu("v_xor_b32", V(t0), t, V(t4))
        else:
            o = Tt & 1
            a.valu("v_xor_b32", V(t0), S(sW), V(t4))
        a.valu("v_lshl_add_u32", V(t0), V(t0), 6, V(t2))
        a.valu("v_xor_b32", V(t1), o, V(t3))
        a.valu("v_lshl_add_u32", V(AW + Tt), V(t1), 3, V(t0))
    a.salu("s_lshl_b32", S(sT2), S(sW), 3)
    a.valu("v_lshl_add_u32", V(t0), V(vG), 1, S(sT2))
    a.salu("s_and_b32", S(sT3), S(sW), 1)
    a.salu("s_lshl_b32", S(sT3), S(sT3), 3)
    a.valu("v_lshl_add_u32", V(t1), V(t5), 2, S(sT3))
    a.valu("v_xor_b32", V(t1), V(t1), V(vI))
    a.valu("v_lshlrev_b32", V(t1), 4, V(t1))
    a.valu("v_lshl_add_u32", V(WW), V(t0), 8, V(t1))
    a.valu("v_lshlrev_b32", V(t1), 4, V(vI))
    a.valu("v_lshl_add_u32", V(WQA), V(t0), 13, V(t1))
    a.valu("v_add_u32", V(WQA + 1), 8192, V(WQA))
    a.salu("s_lshl_b32", S(sT2), S(sW), 5)
    a.valu("v_add_u32", V(t0), S(sT2), V(vI))
    a.valu("v_lshlrev_b32", V(t1), 4, V(vG))
    a.valu("v_lshl_add_u32", V(XA), V(t0), 10, V(t1))
    a.valu("v_add_u32", V(XA + 1), 16384, V(XA))
    a.valu("v_add_u32", V(t0), 128, V(vI))
    a.valu("v_lshl_add_u32", V(XA + 2), V(t0), 10, V(t1))

    sWQrun, sXrun, sIt, sKg, sKl, sVg = 54, 55, 56, 57, 58, 59

    def load_wq(j):
        base = WS + (j % (DW + 1)) * 8
        bload("buffer_load_dwordx4", V(base, 4), V(WQA), S(sWQ, 4), S(sWQrun))
        bload("buffer_load_dwordx4", V(base + 4, 4), V(WQA + 1), S(sWQ, 4), S(sWQrun))
        a.salu("s_add_u32", S(sWQrun), S(sWQrun), 32 * 8192)

    def load_x(j):
        base = XF + (j % (DX + 1)) * 12
        for r in range(3):
            bload("buffer_load_dwordx4", V(base + 4 * r, 4), V(XA + r), S(sX, 4), S(sXrun))
        a.salu("s_add_u32", S(sXrun), S(sXrun), 64)

    def write_wq(j):
        base = WS + (j % (DW + 1)) * 8
        boff = WB + (j & 1) * 8192
        a.ds_write("ds_write_b128", V(WW), V(base, 4), off=boff)
        a.ds_write("ds_write_b64", V(WW), V(base + 4, 2), off=boff + 256 + 8)
        a.ds_write("ds_write_b64", V(WW), V(base + 6, 2), off=boff + 256)

    stamp(True)
    if stamps:
        a.misc(f"s_getreg_b32 s{60 + 2 * nst[0]}, hwreg(HW_REG_HW_ID)")
        nst[0] += 1
        a.misc(f"s_getreg_b32 s{60 + 2 * nst[0]}, hwreg(HW_REG_XCC_ID)")
        nst[0] += 1
    stamp()
    a.salu("s_mov_b32", S(sWQrun), S(sWQoff))
    a.salu("s_mov_b32", S(sXrun), 0)
    assert DW == DX
    load_wq(0)
    for j in range(DX):
        load_wq(j + 1)
        load_x(j)
    for i in range(72):
        a.valu("v_mov_b32", V(i), 0)
    write_wq(0)
    a.salu("s_mov_b32", S(sIt), 0)
    a.salu("s_mov_b32", S(sKg), 0)
    a.salu("s_mov_b32", S(sVg), 0)
    a.waitcnt(lgkm=0)
    a.barrier()
    a.flush()
    a.vm = [set(x) for x in a.vm]
    vm_entry = None
    a.label(f"{name}_qloop")
    def qbody():
        a.salu("s_lshr_b32", S(sKl), S(sIt), 1)
        a.salu("s_lshl_b32", S(sKl), S(sKl), 15)
        a.salu("s_and_b32", S(sT2), S(sIt), 1)
        a.salu("s_lshl_b32", S(sT2), S(sT2), 13)
        a.salu("s_add_u32", S(sKl), S(sKl), S(sT2))
        a.salu("s_add_u32", S(sKl), S(sKl), S(sDM0))
        for i in range(4):
            load_wq(i + 1 + DW)
            load_x(i + DX)
            if i < 2:
                a.salu("s_add_u32", "m0", S(sKl), RING + i * 4096)
                dma(V(DK), S(sK, 4), S(sKg))
                a.salu("s_add_u32", S(sKg), S(sKg), 4096)
            elif i == 2:
                a.salu("s_add_u32", S(sT2), S(sVg), S(sDM0))
                a.salu("s_add_u32", "m0", S(sT2), RING + SLOT)
                dma(V(DV), S(sV, 4), S(sVg))
                a.salu("s_add_u32", S(sVg), S(sVg), 4096)
            write_wq(i + 1)
            boff = WB + (i & 1) * 8192
            xb = XF + (i % (DX + 1)) * 12
            order = [0, 1, 2, 3, 8, 4, 5, 6, 7, 9]
            for Tt in order:
                a.ds_read("ds_read_b64_tr_b16", V(AF + Tt * 4, 2), V(AW + Tt), off=boff)
                a.ds_read("ds_read_b64_tr_b16", V(AF + Tt * 4 + 2, 2), V(AW + Tt), off=boff + 1024)
            for Tt in order:
                if Tt < 8:
                    for r in range(2):
                        d = V(QA(Tt, r), 4)
                        a.mfma(d, V(AF + Tt * 4, 4), V(xb + 4 * r, 4), d)
                else:
                    d = V(QA9(Tt & 1), 4)
                    a.mfma(d, V(AF + Tt * 4, 4), V(xb + 8, 4), d)
            a.waitcnt(lgkm=0)
            a.barrier()
        a.salu("s_add_u32", S(sIt), S(sIt), 1)
        a.salu("s_cmp_lt_u32", None, S(sIt), 4)
        a.flush()

    qbody()
    a.misc(f"s_cbranch_scc1 {name}_qloop")
    stamp()
    for r in range(2):
        for t in range(4):
            q = QF(r, t)
            lo, hi = QA(2 * t, r), QA(2 * t + 1, r)
            a.valu("v_cvt_pk_bf16_f32", V(q), V(lo), V(lo + 1))
            a.valu("v_cvt_pk_bf16_f32", V(q + 1), V(lo + 2), V(lo + 3))
            a.valu("v_cvt_pk_bf16_f32", V(q + 2), V(hi), V(hi + 1))
            a.valu("v_cvt_pk_bf16_f32", V(q + 3), V(hi + 2), V(hi + 3))
    x0 = FR
    lo, hi = QA9(0), QA9(1)
    a.valu("v_cvt_pk_bf16_f32", V(x0), V(lo), V(lo + 1))
    a.valu("v_cvt_pk_bf16_f32", V(x0 + 1), V(lo + 2), V(lo + 3))
    a.valu("v_cvt_pk_bf16_f32", V(x0 + 2), V(hi), V(hi + 1))
    a.valu("v_cvt_pk_bf16_f32", V(x0 + 3), V(hi + 2), V(hi + 3))
    a.valu("v_lshlrev_b32", V(t0), 4, V(vL))
    a.valu("v_add_u32", V(t1), S(sDM0), V(t0))
    a.ds_write("ds_write_b128", V(t1), V(x0, 4), off=WB)
    a.waitcnt(lgkm=0)
    a.barrier()
    for t in range(4):
        a.ds_read("ds_read_b128", V(QF(2, t), 4), V(t0), off=WB + t * 1024)
    for r in range(3):
        a.valu("v_mov_b32", V(MM + r), "0xff800000")
        a.valu("v_mov_b32", V(LL + r), 0)
    a.salu("s_and_b32", S(sT1), S(sW), 1)
    a.salu("s_lshl_b32", S(sT1), S(sT1), 13)

    def softmax(tiles, first):
        seqs = []
        for (sb, n, r, tb) in tiles:
            q = []
            ta, tb1, tc = tb, tb + 1, tb + 2
            q.append(lambda sb=sb, ta=ta: a.valu("v_max3_f32", V(ta), V(sb), V(sb + 1), V(sb + 2)))
            k = 3
            while k + 1 < n:
                q.append(lambda sb=sb, ta=ta, k=k: a.valu("v_max3_f32", V(ta), V(ta), V(sb + k), V(sb + k + 1)))
                k += 2
            if k < n:
                q.append(lambda sb=sb, ta=ta, k=k: a.valu("v_max_f32", V(ta), V(ta), V(sb + k)))
            for pl in ("v_permlane16_swap_b32", "v_permlane32_swap_b32"):
                q.append(lambda ta=ta, tb1=tb1: a.valu("v_mov_b32", V(tb1), V(ta)))
                q.append(lambda ta=ta, tb1=tb1, pl=pl: a.valu(pl, V(ta), V(tb1)))
                q.append(lambda ta=ta, tb1=tb1: a.valu("v_max_f32", V(ta), V(ta), V(tb1)))
            if first:
                q.append(lambda ta=ta, r=r: a.valu("v_mov_b32", V(MM + r), V(ta)))
            else:
                q.append(lambda ta=ta, r=r: a.valu("v_max_f32", V(ta), V(ta), V(MM + r)))
                q.append(lambda ta=ta, tb1=tb1, r=r: a.valu("v_sub_f32", V(tb1), V(MM + r), V(ta)))
                q.append(lambda ta=ta, r=r: a.valu("v_mov_b32", V(MM + r), V(ta)))
                q.append(lambda tb1=tb1: a.valu("v_mul_f32", V(tb1), S(sC), V(tb1)))
                q.append(lambda tb1=tb1: a.valu("v_exp_f32", V(tb1), V(tb1)))
            q.append(lambda ta=ta, tc=tc: a.valu("v_mul_f32", V(tc), S(sC), V(ta)))
            for k in range(n):
                q.append(lambda sb=sb, k=k, tc=tc: a.valu("v_fma_f32", V(sb + k), V(sb + k), S(sC), "-" + V(tc)))
            for k in range(n):
                q.append(lambda sb=sb, k=k: a.valu("v_exp_f32", V(sb + k), V(sb + k)))
            if not first:
                q.append(lambda r=r, tb1=tb1: a.valu("v_mul_f32", V(LL + r), V(LL + r), V(tb1)))
                for dt in range(8):
                    for e in range(4):
                        q.append(lambda r=r, dt=dt, e=e, tb1=tb1: a.valu("v_mul_f32", V(OA(r, dt) + e), V(OA(r, dt) + e), V(tb1)))
            for k in range(n):
                q.append(lambda sb=sb, k=k, r=r: a.valu("v_add_f32", V(LL + r), V(LL + r), V(sb + k)))
            for u in range(n // 8):
                b0 = sb + 8 * u
                for e in range(4):
                    q.append(lambda b0=b0, e=e: a.valu("v_cvt_pk_bf16_f32", V(b0 + e), V(b0 + 2 * e), V(b0 + 2 * e + 1)))
            seqs.append(q)
        mx = max(len(q) for q in seqs)
        for k in range(mx):
            for q in seqs:
                if k < len(q):
                    q[k]()

    def pipeline(items, depth):
        n = len(items)
        for k in range(min(depth, n)):
            items[k][0](k % NFR)
        for k in range(n):
            items[k][1](k % NFR)
            if k + depth < n:
                items[k + depth][0]((k + depth) % NFR)

    lbl = [0]
    for i in range(96):
        a.valu("v_mov_b32", V(i), 0)
    a.salu("s_mov_b32", S(sIt), 0)
    a.salu("s_mov_b32", S(sVg), 16384)
    a.salu("s_mov_b32", S(sKg), 32768)

    def issue_tile(isv, slot):
        for i in range(4):
            a.salu("s_add_u32", "m0", S(sDM0), RING + slot * SLOT + i * 4096)
            g = sVg if isv else sKg
            dma(V(DV) if isv else V(DK), S(sV, 4) if isv else S(sK, 4), S(g))
            a.salu("s_add_u32", S(g), S(g), 4096)

    if stamps:
        for k in range(10):
            a.salu("s_mov_b32", S(80 + k), 0)
    seg(9)
    a.flush()
    a.label(f"{name}_aloop")
    for s in range(2):
        jK, jV = 2 * s, 2 * s + 1
        kslot = (jK % 4) * SLOT
        vslot = (jV % 4) * SLOT
        a.waitcnt(vm=8, lgkm=0)
        seg(0)
        a.barrier()
        seg(1)
        issue_tile(True, (jK + 3) % 4)
        items = []
        for kt in range(4):
            for t in range(4):
                def iss(sl, kt=kt, t=t):
                    a.ds_read("ds_read_b128", V(FR + 4 * sl, 4), V(AK + t), off=kslot + kt * 4096)

                def use(sl, kt=kt, t=t):
                    for r in range(2):
                        d = V(SS(r, kt), 4)
                        a.mfma(d, V(FR + 4 * sl, 4), V(QF(r, t), 4), d if t else "0")
                items.append((iss, use))
        pipeline(items, 6)
        lbl[0] += 1
        L = f"{name}_n{lbl[0]}"
        a.flush()
        a.salu("s_cmp_lg_u32", None, S(sN9), s & 1)
        a.misc(f"s_cbranch_scc1 {L}")
        for t in range(4):
            a.valu("v_add_u32", V(T + 10 + t), S(sT1), V(AK + t))
        items = []
        for kt in range(2):
            for t in range(4):
                def iss(sl, kt=kt, t=t):
                    a.ds_read("ds_read_b128", V(FR + 4 * sl, 4), V(T + 10 + t), off=kslot + kt * 4096)

                def use(sl, kt=kt, t=t):
                    d = V(S9(kt), 4)
                    a.mfma(d, V(FR + 4 * sl, 4), V(QF(2, t), 4), d if t else "0")
                items.append((iss, use))
        pipeline(items, 8)
        a.flush()
        a.label(L)
        seg(2)
        a.waitcnt(vm=8, lgkm=0)
        seg(3)
        a.barrier()
        seg(4)
        issue_tile(False, (jV + 3) % 4)
        softmax([(SS(0, 0), 16, 0, T + 4), (SS(1, 0), 16, 1, T + 7)], first=False)
        seg(5)
        items = []
        for u in range(2):
            for dt in range(8):
                def iss(sl, u=u, dt=dt):
                    a.ds_read("ds_read_b64_tr_b16", V(FR + 4 * sl, 2), V(AV + dt), off=vslot + u * 8192)
                    a.ds_read("ds_read_b64_tr_b16", V(FR + 4 * sl + 2, 2), V(AV + dt), off=vslot + u * 8192 + 4096)

                def use(sl, u=u, dt=dt):
                    for r in range(2):
                        d = V(OA(r, dt), 4)
                        a.mfma(d, V(FR + 4 * sl, 4), V(SS(r, 2 * u), 4), d)
                items.append((iss, use))
        pipeline(items, 6)
        seg(6)
        lbl[0] += 1
        L = f"{name}_n{lbl[0]}"
        a.flush()
        a.salu("s_cmp_lg_u32", None, S(sN9), s & 1)
        a.misc(f"s_cbranch_scc1 {L}")
        softmax([(S9(0), 8, 2, T + 4)], first=False)
        items = []
        for dt in range(8):
            def iss(sl, dt=dt):
                a.valu("v_add_u32", V(T + 10 + (dt & 3)), S(sT1), V(AV + dt))
                a.ds_read("ds_read_b64_tr_b16", V(FR + 4 * sl, 2), V(T + 10 + (dt & 3)), off=vslot)
                a.ds_read("ds_read_b64_tr_b16", V(FR + 4 * sl + 2, 2), V(T + 10 + (dt & 3)), off=vslot + 4096)

            def use(sl, dt=dt):
                d = V(OA(2, dt), 4)
                a.mfma(d, V(FR + 4 * sl, 4), V(S9(0), 4), d)
            items.append((iss, use))
        pipeline(items, 8)
        a.flush()
        a.label(L)
        seg(7)
    a.salu("s_add_u32", S(sIt), S(sIt), 1)
    a.salu("s_cmp_lt_u32", None, S(sIt), 4)
    a.misc(f"s_cbranch_scc1 {name}_aloop")
    a.waitcnt(vm=0, lgkm=0)

    stamp()
    for r in range(3):
        for pl in ("v_permlane16_swap_b32", "v_permlane32_swap_b32"):
            a.valu("v_mov_b32", V(t0), V(LL + r))
            a.valu(pl, V(LL + r), V(t0))
            a.valu("v_add_f32", V(LL + r), V(LL + r), V(t0))
    vSt = T + 10
    a.valu("v_lshlrev_b32", V(t0), 3, V(vG))
    a.valu("v_lshl_add_u32", V(vSt), V(vI), 8, V(t0))
    for r in range(2):
        a.valu("v_rcp_f32", V(t1), V(LL + r))
        a.salu("s_lshl_b32", S(sT2), S(sW), 13)
        a.salu("s_add_u32", S(sT2), S(sT2), r * 4096)
        for dt in range(8):
            o = OA(r, dt)
            for e in range(4):
                a.valu("v_mul_f32", V(o + e), V(o + e), V(t1))
            a.valu("v_cvt_pk_bf16_f32", V(o), V(o), V(o + 1))
            a.valu("v_cvt_pk_bf16_f32", V(o + 1), V(o + 2), V(o + 3))
            bstore("buffer_store_dwordx2", V(o, 2), V(vSt), S(sO, 4), S(sT2), off=dt * 32)
    a.waitcnt(lgkm=0)
    a.barrier()
    CB = 0
    PB = 4096
    a.valu("v_mov_b32", V(t2), V(MM + 2))
    a.valu("v_mov_b32", V(t3), V(LL + 2))
    a.salu("s_lshl_b32", S(sT2), S(sW), 7)
    a.valu("v_lshlrev_b32", V(t0), 3, V(vI))
    a.valu("v_add_u32", V(t1), S(sT2), V(t0))
    assert t3 == t2 + 1 and t2 % 2 == 0
    a.ds_write("ds_write_b64", V(t1), V(t2, 2), off=CB)
    a.waitcnt(lgkm=0)
    a.barrier()
    ml = FR
    for w in range(4):
        a.ds_read("ds_read_b64", V(ml + 2 * w, 2), V(t0), off=CB + w * 128)
    a.valu("v_max3_f32", V(t1), V(ml), V(ml + 2), V(ml + 4))
    a.valu("v_max_f32", V(t1), V(t1), V(ml + 6))
    a.valu("v_mov_b32", V(t2), 0)
    for w in range(4):
        a.valu("v_sub_f32", V(t3), V(ml + 2 * w), V(t1))
        a.valu("v_mul_f32", V(t3), S(sC), V(t3))
        a.valu("v_exp_f32", V(t3), V(t3))
        a.valu("v_fma_f32", V(t2), V(t3), V(ml + 2 * w + 1), V(t2))
    a.valu("v_sub_f32", V(t3), V(MM + 2), V(t1))
    a.valu("v_mul_f32", V(t3), S(sC), V(t3))
    a.valu("v_exp_f32", V(t3), V(t3))
    a.valu("v_rcp_f32", V(t2), V(t2))
    a.valu("v_mul_f32", V(t3), V(t3), V(t2))
    a.salu("s_lshl_b32", S(sT2), S(sW), 13)
    a.valu("v_lshlrev_b32", V(t0), 4, V(vL))
    a.valu("v_add_u32", V(t1), S(sT2), V(t0))
    for dt in range(8):
        o = OA(2, dt)
        for e in range(4):
            a.valu("v_mul_f32", V(o + e), V(o + e), V(t3))
        a.ds_write("ds_write_b128", V(t1), V(o, 4), off=PB + dt * 1024)
    a.waitcnt(lgkm=0)
    a.barrier()
    a.salu("s_lshl_b32", S(sT2), S(sW), 11)
    a.valu("v_add_u32", V(t1), S(sT2), V(t0))
    for j in range(2):
        for w in range(4):
            a.ds_read("ds_read_b128", V(FR + (j * 4 + w) * 4, 4), V(t1), off=PB + w * 8192 + j * 1024)
    a.salu("s_lshl_b32", S(sT2), S(sW), 6)
    a.salu("s_add_u32", S(sT2), S(sT2), 8 * 4096)
    for j in range(2):
        b0 = FR + j * 16
        for e in range(4):
            a.valu("v_add_f32", V(b0 + e), V(b0 + e), V(b0 + 4 + e))
            a.valu("v_add_f32", V(b0 + 8 + e), V(b0 + 8 + e), V(b0 + 12 + e))
        for e in range(4):
            a.valu("v_add_f32", V(b0 + e), V(b0 + e), V(b0 + 8 + e))
        a.valu("v_cvt_pk_bf16_f32", V(b0), V(b0), V(b0 + 1))
        a.valu("v_cvt_pk_bf16_f32", V(b0 + 1), V(b0 + 2), V(b0 + 3))
        bstore("buffer_store_dwordx2", V(b0, 2), V(vSt), S(sO, 4), S(sT2), off=j * 32)
    if stamps:
        stamp()
        stamp(True)
        a.salu("s_add_u32", S(sX), "s12", 0x3000000)
        a.salu("s_addc_u32", S(sX + 1), "s13", 0)
        a.salu("s_mov_b32", S(sX + 2), 0x100000)
        a.salu("s_lshl_b32", S(sT2), "s2", 10)
        a.salu("s_lshl_b32", S(sT3), S(sW), 8)
        a.salu("s_add_u32", S(sT2), S(sT2), S(sT3))
        a.salu("s_mov_b64", "exec", 1)
        a.valu("v_mov_b32", V(t1), 0)
        for i in range(nst[0]):
            a.valu("v_mov_b32", V(t0), S(60 + 2 * i))
            a.bstore("buffer_store_dword", V(t0), V(t1), S(sX, 4), S(sT2), off=4 * i)
        for i in range(8):
            a.valu("v_mov_b32", V(t0), S(80 + i))
            a.bstore("buffer_store_dword", V(t0), V(t1), S(sX, 4), S(sT2), off=128 + 4 * i)
    a.label(f"{name}_done")
    a.misc("s_endpgm")
    return a
```

```python
from asmlib import Asm, V, S

WS_P = 0x1300000
STAGE = 69632
LDS_K2 = 2 * STAGE


def gen_k2(name):
    a = Asm()
    a.label(name)
    sO, sWO, sP = 16, 20, 24
    sW, sT0, sT1, sT2, sT3 = 28, 29, 30, 31, 32
    sKS, sNQ, sB, sBLK = 33, 34, 35, 36
    sDM0, sObase, sWObase = 37, 38, 39
    ACC = lambda nt, qt: (nt * 9 + qt) * 4
    BF = 72
    AF = 144
    AK = 160
    AWo = 164
    DO = 172
    DW = 173
    T = 174
    vL, vG, vI = T, T + 1, T + 2
    t0, t1, t2, t3 = T + 4, T + 5, T + 6, T + 7

    a.salu("s_cmp_ge_u32", None, "s2", 256)
    a.misc(f"s_cbranch_scc1 {name}_done")
    a.misc("s_load_dwordx2 s[4:5], s[0:1], 32")
    a.misc("s_load_dwordx2 s[6:7], s[0:1], 72")
    a.misc("s_load_dwordx2 s[12:13], s[0:1], 96")
    a.valu("v_and_b32", V(vL), 63, "v0")
    a.valu("v_lshrrev_b32", V(T + 3), 6, "v0")
    a.valu("v_lshrrev_b32", V(vG), 4, V(vL))
    a.valu("v_and_b32", V(vI), 15, V(vL))
    a.valu("v_readfirstlane_b32", S(sW), V(T + 3))
    a.misc("s_waitcnt lgkmcnt(0)")
    a.salu("s_and_b32", S(sKS), "s2", 3)
    a.salu("s_lshr_b32", S(sNQ), "s2", 2)
    a.salu("s_and_b32", S(sNQ), S(sNQ), 3)
    a.salu("s_lshr_b32", S(sB), "s2", 4)
    a.salu("s_and_b32", S(sB), S(sB), 7)
    a.salu("s_lshr_b32", S(sBLK), "s2", 7)
    a.salu("s_cmp_eq_u32", None, S(sBLK), 0)
    a.salu("s_cselect_b32", S(sWO), "s4", "s6")
    a.salu("s_cselect_b32", S(sWO + 1), "s5", "s7")
    a.salu("s_mov_b32", S(sWO + 2), 4194304)
    a.salu("s_mov_b32", S(sWO + 3), "0x00020000")
    a.salu("s_mul_i32", S(sT0), S(sBLK), 9437184)
    a.salu("s_mul_i32", S(sT1), S(sB), 1179648)
    a.salu("s_add_u32", S(sT0), S(sT0), S(sT1))
    a.salu("s_add_u32", S(sO), "s12", S(sT0))
    a.salu("s_addc_u32", S(sO + 1), "s13", 0)
    a.salu("s_mov_b32", S(sO + 2), 1179648)
    a.salu("s_mov_b32", S(sO + 3), "0x00020000")
    a.salu("s_lshl_b32", S(sT0), S(sKS), 1)
    a.salu("s_add_u32", S(sT0), S(sT0), S(sBLK))
    a.salu("s_mul_i32", S(sT0), S(sT0), 1152 * 2048)
    a.salu("s_mul_i32", S(sT1), S(sB), 144 * 2048)
    a.salu("s_add_u32", S(sT0), S(sT0), S(sT1))
    a.salu("s_add_u32", S(sT0), S(sT0), WS_P)
    a.salu("s_add_u32", S(sP), "s12", S(sT0))
    a.salu("s_addc_u32", S(sP + 1), "s13", 0)
    a.salu("s_mov_b32", S(sP + 2), 144 * 2048)
    a.salu("s_mov_b32", S(sP + 3), "0x00020000")
    a.salu("s_lshl_b32", S(sDM0), S(sW), 10)
    a.salu("s_mul_i32", S(sObase), S(sKS), 8 * 36864)
    a.salu("s_lshl_b32", S(sWObase), S(sKS), 20)
    a.salu("s_lshl_b32", S(sT0), S(sNQ), 8)
    a.salu("s_add_u32", S(sWObase), S(sWObase), S(sT0))
    a.salu("s_lshl_b32", S(sT0), S(sW), 2)
    a.valu("v_add_u32", V(t0), S(sT0), V(vG))
    a.valu("v_xor_b32", V(t1), V(vI), V(t0))
    a.valu("v_lshlrev_b32", V(t1), 4, V(t1))
    a.valu("v_lshl_add_u32", V(DO), V(t0), 8, V(t1))
    a.salu("s_lshr_b32", S(sT0), S(sW), 1)
    a.salu("s_lshl_b32", S(sT0), S(sT0), 2)
    a.valu("v_add_u32", V(t1), S(sT0), V(vG))
    a.valu("v_lshlrev_b32", V(t1), 1, V(t1))
    a.valu("v_xor_b32", V(t1), V(vI), V(t1))
    a.valu("v_lshlrev_b32", V(t1), 4, V(t1))
    a.valu("v_lshl_add_u32", V(DW), V(t0), 10, V(t1))
    for t in range(4):
        a.valu("v_add_u32", V(t0), 4 * t, V(vG))
        a.valu("v_xor_b32", V(t0), V(t0), V(vI))
        a.valu("v_lshlrev_b32", V(t0), 4, V(t0))
        a.valu("v_lshl_add_u32", V(AK + t), V(vI), 8, V(t0))
    a.valu("v_lshrrev_b32", V(t0), 2, V(vI))
    a.valu("v_lshl_add_u32", V(t1), V(vG), 3, V(t0))
    a.valu("v_and_b32", V(t2), 1, V(vG))
    a.valu("v_lshl_add_u32", V(t2), V(t2), 2, V(t0))
    a.valu("v_and_b32", V(t3), 3, V(vI))
    a.valu("v_lshlrev_b32", V(t3), 3, V(t3))
    a.valu("v_lshl_add_u32", V(t3), V(t1), 8, V(t3))
    a.salu("s_lshl_b32", S(sT0), S(sW), 1)
    for nt in range(2):
        a.salu("s_add_u32", S(sT1), S(sT0), nt)
        a.valu("v_xor_b32", V(t0), S(sT1), V(t2))
        a.valu("v_lshl_add_u32", V(AWo + nt), V(t0), 5, V(t3))

    for j in range(6):
        a.valu("v_add_u32", V(AK + 6 + j), STAGE, V(AK + j))

    sOr, sWr, sIt = 40, 41, 42

    def issue(par):
        st = par * STAGE
        for i in range(9):
            a.salu("s_add_u32", "m0", S(sDM0), st + i * 4096)
            a.salu("s_add_u32", S(sT3), S(sOr), i * 4096)
            a.dma(V(DO), S(sO, 4), S(sT3))
        for i in range(8):
            a.salu("s_add_u32", "m0", S(sDM0), st + 36864 + i * 4096)
            a.salu("s_add_u32", S(sT3), S(sWr), (16 * i) * 1024)
            a.dma(V(DW), S(sWO, 4), S(sT3))
        a.salu("s_add_u32", S(sOr), S(sOr), 36864)
        a.salu("s_add_u32", S(sWr), S(sWr), 128 * 1024)

    a.salu("s_mov_b32", S(sOr), S(sObase))
    a.salu("s_mov_b32", S(sWr), S(sWObase))
    a.salu("s_mov_b32", S(sIt), 0)
    issue(0)
    for i in range(72):
        a.valu("v_mov_b32", V(i), 0)
    a.flush()
    a.label(f"{name}_loop")
    for kt in range(2):
        sa = (kt & 1) * 6
        a.waitcnt(vm=0, lgkm=0)
        a.barrier()
        if kt == 1:
            a.salu("s_cmp_eq_u32", None, S(sIt), 3)
            a.misc(f"s_cbranch_scc1 {name}_skip")
        issue((kt + 1) & 1)
        if kt == 1:
            a.label(f"{name}_skip")

        def rd(u):
            bb = BF + (u & 1) * 36
            ab = AF + (u & 1) * 8
            for nt in range(2):
                a.ds_read("ds_read_b64_tr_b16", V(ab + 4 * nt, 2), V(AWo + sa + nt), off=36864 + u * 8192)
                a.ds_read("ds_read_b64_tr_b16", V(ab + 4 * nt + 2, 2), V(AWo + sa + nt), off=36864 + u * 8192 + 1024)
            for qt in range(9):
                a.ds_read("ds_read_b128", V(bb + 4 * qt, 4), V(AK + sa + u), off=qt * 4096)

        rd(0)
        for u in range(4):
            if u + 1 < 4:
                rd(u + 1)
            bb = BF + (u & 1) * 36
            ab = AF + (u & 1) * 8
            for qt in range(9):
                for nt in range(2):
                    d = V(ACC(nt, qt), 4)
                    a.mfma(d, V(ab + 4 * nt, 4), V(bb + 4 * qt, 4), d)
    a.salu("s_add_u32", S(sIt), S(sIt), 1)
    a.salu("s_cmp_lt_u32", None, S(sIt), 4)
    a.flush()
    a.misc(f"s_cbranch_scc1 {name}_loop")
    a.valu("v_lshlrev_b32", V(t0), 4, V(vG))
    a.valu("v_lshl_add_u32", V(t0), V(vI), 11, V(t0))
    a.salu("s_lshl_b32", S(sT0), S(sNQ), 9)
    a.salu("s_lshl_b32", S(sT1), S(sW), 7)
    a.salu("s_add_u32", S(sT0), S(sT0), S(sT1))
    for qt in range(9):
        a.salu("s_add_u32", S(sT1), S(sT0), qt * 16 * 2048)
        for nt in range(2):
            a.bstore("buffer_store_dwordx4", V(ACC(nt, qt), 4), V(t0), S(sP, 4), S(sT1), off=nt * 64)
    a.label(f"{name}_done")
    a.misc("s_endpgm")
    return a


def gen_k3(name):
    a = Asm()
    a.label(name)
    a.salu("s_cmp_ge_u32", None, "s2", 576)
    a.misc(f"s_cbranch_scc1 {name}_done")
    a.misc("s_load_dwordx2 s[4:5], s[0:1], 80")
    a.misc("s_load_dwordx2 s[12:13], s[0:1], 96")
    a.salu("s_lshl_b32", "s3", "s2", 8)
    a.valu("v_add_u32", "v1", "s3", "v0")
    a.valu("v_lshrrev_b32", "v2", 7, "v1")
    a.valu("v_and_b32", "v3", 127, "v1")
    a.valu("v_lshrrev_b32", "v4", 6, "v3")
    a.valu("v_and_b32", "v5", 63, "v3")
    a.misc("s_waitcnt lgkmcnt(0)")
    a.salu("s_add_u32", "s8", "s12", WS_P)
    a.salu("s_addc_u32", "s9", "s13", 0)
    a.salu("s_mov_b32", "s10", 18874368)
    a.salu("s_mov_b32", "s11", "0x00020000")
    a.salu("s_mov_b32", "s16", "s4")
    a.salu("s_mov_b32", "s17", "s5")
    a.salu("s_mov_b32", "s18", 2359296)
    a.salu("s_mov_b32", "s19", "0x00020000")
    a.salu("s_mov_b32", "s20", 1152)
    a.valu("v_mul_lo_u32", "v6", "v4", "s20")
    a.valu("v_add_u32", "v6", "v6", "v2")
    a.valu("v_lshlrev_b32", "v7", 5, "v5")
    a.valu("v_lshl_add_u32", "v6", "v6", 11, "v7")
    a.valu("v_lshlrev_b32", "v8", 4, "v1")
    for ks in range(4):
        a.salu("s_mov_b32", S(21 + ks), ks * 2 * 1152 * 2048)
    for ks in range(4):
        a.bload("buffer_load_dwordx4", V(16 + ks * 8, 4), "v6", "s[8:11]", S(21 + ks))
        a.bload("buffer_load_dwordx4", V(20 + ks * 8, 4), "v6", "s[8:11]", S(21 + ks), off=16)
    for e in range(8):
        a.valu("v_add_f32", V(16 + e), V(16 + e), V(24 + e))
    for e in range(8):
        a.valu("v_add_f32", V(32 + e), V(32 + e), V(40 + e))
    for e in range(8):
        a.valu("v_add_f32", V(16 + e), V(16 + e), V(32 + e))
    for e in range(4):
        a.valu("v_cvt_pk_bf16_f32", V(48 + e), V(16 + 2 * e), V(17 + 2 * e))
    a.bstore("buffer_store_dwordx4", "v[48:51]", "v8", "s[16:19]", "0")
    a.label(f"{name}_done")
    a.misc("s_endpgm")
    return a
```

```python
import sys
sys.path.insert(0, "gen")
from asmlib import Asm, V, S
def gen(name, mode, depth):
    a = Asm()
    a.label(name)
    a.salu("s_cmp_ge_u32", None, "s2", 512)
    a.misc(f"s_cbranch_scc1 {name}_done")
    a.misc("s_load_dwordx8 s[4:11], s[0:1], 0")
    a.misc("s_load_dwordx8 s[40:47], s[0:1], 40")
    a.valu("v_lshrrev_b32", "v3", 6, "v0")
    a.valu("v_readfirstlane_b32", "s36", "v3")
    a.misc("s_waitcnt lgkmcnt(0)")
    a.salu("s_lshr_b32", "s38", "s2", 8)
    a.salu("s_cmp_eq_u32", None, "s38", 0)
    for i in range(8):
        a.salu("s_cselect_b32", S(4 + i), S(4 + i), S(40 + i))
    a.salu("s_and_b32", "s39", "s2", 255)
    a.salu("s_lshl_b32", "s39", "s39", 17)
    a.salu("s_add_u32", "s24", "s6", "s39"); a.salu("s_addc_u32", "s25", "s7", 0)
    a.salu("s_mov_b32", "s26", 131072); a.salu("s_mov_b32", "s27", "0x00020000")
    a.salu("s_add_u32", "s28", "s8", "s39"); a.salu("s_addc_u32", "s29", "s9", 0)
    a.salu("s_mov_b32", "s30", 131072); a.salu("s_mov_b32", "s31", "0x00020000")
    a.valu("v_lshlrev_b32", "v1", 4, "v0")
    a.salu("s_lshl_b32", "s49", "s36", 10)
    a.salu("s_mov_b32", "s50", 0)
    a.salu("s_mov_b32", "s51", 0)
    a.label(f"{name}_loop")
    for srd in ("s[24:27]", "s[28:31]"):
        for i in range(4):
            a.salu("s_add_u32", "s52", "s50", i * 4096)
            if mode == "dma":
                a.salu("s_add_u32", "m0", "s49", (i + (4 if srd[2:4]=="28" else 0)) * 4096)
                a.dma("v1", srd, "s52")
            else:
                a.bload("buffer_load_dwordx4", V(8 + 4 * (i + (4 if srd[2:4]=="28" else 0)), 4), "v1", srd, "s52")
        a.misc(f"s_waitcnt vmcnt({depth})")
        a.vm = []
    a.salu("s_add_u32", "s50", "s50", 16384)
    a.salu("s_cmp_lt_u32", None, "s50", 131072)
    a.misc(f"s_cbranch_scc1 {name}_loop")
    a.label(f"{name}_done")
    a.misc("s_endpgm")
    return a
import build
def mk(out, mode, depth, lds):
    n = "bw_kernel"
    txt = f"; @launch kernel={n} grid=(512,1,1) block=(256,1,1) lds={lds}\n"
    txt += '.amdgcn_target "amdgcn-amd-amdhsa--gfx950"\n.text\n'
    a = gen(n, mode, depth)
    txt += f".globl {n}\n.p2align 8\n.type {n},@function\n" + a.text()
    txt += '.section .rodata,"a"\n.p2align 6\n' + build.desc(n, 64)
    open(out, "w").write(txt)
mk("bw_dma8.s", "dma", 8, 81920)
mk("bw_dma8_l32.s", "dma", 8, 32768)
mk("bw_reg8.s", "reg", 8, 81920)
mk("bw_reg8_l0.s", "reg", 8, 0)
```

```python
import struct
from asmlib import Asm, V, S
from sched import interleave

RING = 16384
SLOT = 16384
WB = 0
XB = 24576
XSZ = 18432
LDS_K1 = 81920
THR = 8.0

CSCALE = 1.4426950408889634 / (128.0 ** 0.5)


def f32bits(x):
    return struct.unpack("<I", struct.pack("<f", x))[0]


def OA(r, dt):
    return (r * 8 + dt) * 4


def QF(r, t):
    return 96 + (r * 4 + t) * 4


def SS(r, kt):
    return 144 + (r * 4 + kt) * 4


def S9(kt):
    return 176 + kt * 4


def NM(r):
    return 184 + 4 * r


def LA(r):
    return 196 + 4 * r


ONES = 208
AK = 212
AV = 216
DK = 224
DV = 225
TMP = 226
FR = 232
NFR = 6

sX, sWQ, sK, sV, sO = 16, 20, 24, 28, 32
sW = 36
sC = 37
sT0 = 38
sT1 = 39
sWQoff = 48
sDM0 = 49
sN9 = 50
sT2 = 51
sT3 = 52
sH = 53
sWQrun, sXrun, sIt, sKg, sVg = 54, 55, 56, 57, 58
sThr, sLow, sThr9, sLow9 = 59, 60, 61, 62
sX5g, sX5l = 63, 64
sK9 = 65


def slot_of(tile):
    return (tile + 3) % 4


def gen_k1(name, stamps=False, nt=True):
    a = Asm()
    a.vmn = 0
    nst = [0]
    SB = 70

    def stamp(real=False):
        if not stamps:
            return
        a.waitcnt(lgkm=0)
        a.misc(f"{'s_memrealtime' if real else 's_memtime'} s[{SB + 2 * nst[0]}:{SB + 1 + 2 * nst[0]}]")
        a.misc("s_waitcnt lgkmcnt(0)")
        nst[0] += 1

    def seg(k):
        if not stamps:
            return
        a.waitcnt(lgkm=0)
        a.misc("s_memtime s[98:99]")
        a.misc("s_waitcnt lgkmcnt(0)")
        a.salu("s_sub_u32", "s100", "s98", "s101")
        a.salu("s_add_u32", S(86 + k), S(86 + k), "s100")
        a.salu("s_mov_b32", "s101", "s98")

    a.label(name)

    def dma(voff, srd, soff, flags=""):
        a.dma(voff, srd, soff, flags=flags)
        a.vmn += 1

    def bload(*x, **k):
        a.bload(*x, **k)
        a.vmn += 1

    def bstore(*x, **k):
        a.bstore(*x, **k)
        a.vmn += 1

    KVF = "nt" if nt else ""

    a.salu("s_cmp_ge_u32", None, "s2", 512)
    a.misc(f"s_cbranch_scc1 {name}_done")
    a.misc("s_load_dwordx8 s[4:11], s[0:1], 0")
    a.misc("s_load_dwordx8 s[40:47], s[0:1], 40")
    a.misc("s_load_dwordx2 s[12:13], s[0:1], 96")
    vL, vG, vI = 10, 11, 12
    t0, t1, t2, t3, t4, t5 = 14, 15, 16, 17, 18, 19
    a.valu("v_and_b32", V(vL), 63, "v0")
    a.valu("v_lshrrev_b32", V(t0), 6, "v0")
    a.valu("v_lshrrev_b32", V(vG), 4, V(vL))
    a.valu("v_and_b32", V(vI), 15, V(vL))
    a.valu("v_readfirstlane_b32", S(sW), V(t0))
    a.misc("s_waitcnt lgkmcnt(0)")
    a.salu("s_lshr_b32", S(sT0), "s2", 2)
    a.salu("s_and_b32", S(sT0), S(sT0), 1)
    a.salu("s_cmp_eq_u32", None, S(sT0), 0)
    for i in range(8):
        a.salu("s_cselect_b32", S(4 + i), S(4 + i), S(40 + i))
    a.salu("s_lshr_b32", S(sT1), "s2", 7)
    a.salu("s_and_b32", S(sT2), "s2", 2)
    a.salu("s_lshl_b32", S(sT2), S(sT2), 1)
    a.salu("s_add_u32", S(sT1), S(sT1), S(sT2))
    a.salu("s_lshr_b32", S(sH), "s2", 3)
    a.salu("s_and_b32", S(sH), S(sH), 15)
    a.salu("s_and_b32", S(sT2), "s2", 1)
    a.salu("s_lshl_b32", S(sT2), S(sT2), 4)
    a.salu("s_add_u32", S(sH), S(sH), S(sT2))
    a.salu("s_mul_i32", S(sT2), S(sT1), 147456)
    a.salu("s_add_u32", S(sX), "s4", S(sT2))
    a.salu("s_addc_u32", S(sX + 1), "s5", 0)
    a.salu("s_mov_b32", S(sX + 2), 147456)
    a.salu("s_mov_b32", S(sX + 3), "0x00020000")
    a.salu("s_mov_b32", S(sWQ), "s10")
    a.salu("s_mov_b32", S(sWQ + 1), "s11")
    a.salu("s_mov_b32", S(sWQ + 2), 4194304)
    a.salu("s_mov_b32", S(sWQ + 3), "0x00020000")
    a.salu("s_lshl_b32", S(sT3), S(sT1), 5)
    a.salu("s_add_u32", S(sT3), S(sT3), S(sH))
    a.salu("s_lshl_b32", S(sT2), S(sT3), 17)
    a.salu("s_add_u32", S(sK), "s6", S(sT2))
    a.salu("s_addc_u32", S(sK + 1), "s7", 0)
    a.salu("s_mov_b32", S(sK + 2), 131072)
    a.salu("s_mov_b32", S(sK + 3), "0x00020000")
    a.salu("s_add_u32", S(sV), "s8", S(sT2))
    a.salu("s_addc_u32", S(sV + 1), "s9", 0)
    a.salu("s_mov_b32", S(sV + 2), 131072)
    a.salu("s_mov_b32", S(sV + 3), "0x00020000")
    a.salu("s_mul_i32", S(sT2), S(sT0), 9437184)
    a.salu("s_mul_i32", S(sT3), S(sT3), 36864)
    a.salu("s_add_u32", S(sT2), S(sT2), S(sT3))
    a.salu("s_add_u32", S(sO), "s12", S(sT2))
    a.salu("s_addc_u32", S(sO + 1), "s13", 0)
    a.salu("s_mov_b32", S(sO + 2), 36864)
    a.salu("s_mov_b32", S(sO + 3), "0x00020000")
    a.salu("s_lshl_b32", S(sWQoff), S(sH), 8)
    a.salu("s_mov_b32", S(sC), hex(f32bits(CSCALE)))
    a.salu("s_lshl_b32", S(sDM0), S(sW), 10)
    a.salu("s_lshr_b32", S(sN9), S(sW), 1)
    a.salu("s_and_b32", S(sK9), S(sW), 1)
    a.salu("s_lshl_b32", S(sK9), S(sK9), 13)

    a.salu("s_lshl_b32", S(sT2), S(sW), 2)
    a.valu("v_add_u32", V(t0), S(sT2), V(vG))
    a.valu("v_xor_b32", V(t1), V(vI), V(t0))
    a.valu("v_lshlrev_b32", V(t1), 4, V(t1))
    a.valu("v_lshl_add_u32", V(DK), V(t0), 8, V(t1))
    a.valu("v_and_b32", V(t1), 7, V(t0))
    a.valu("v_lshlrev_b32", V(t1), 1, V(t1))
    a.valu("v_xor_b32", V(t1), V(vI), V(t1))
    a.valu("v_lshlrev_b32", V(t1), 4, V(t1))
    a.valu("v_lshl_add_u32", V(DV), V(t0), 8, V(t1))

    def issue_tile(isv, slot):
        for i in range(4):
            a.salu("s_add_u32", "m0", S(sDM0), RING + slot * SLOT + i * 4096)
            g = sVg if isv else sKg
            dma(V(DV) if isv else V(DK), S(sV, 4) if isv else S(sK, 4), S(g), KVF)
            a.salu("s_add_u32", S(g), S(g), 4096)

    a.salu("s_mov_b32", S(sKg), 0)
    a.salu("s_mov_b32", S(sVg), 0)

    for t in range(4):
        a.valu("v_add_u32", V(t0), 4 * t, V(vG))
        a.valu("v_xor_b32", V(t0), V(t0), V(vI))
        a.valu("v_lshlrev_b32", V(t0), 4, V(t0))
        a.valu("v_lshl_add_u32", V(AK + t), V(vI), 8, V(t0))
        a.valu("v_add_u32", V(AK + t), RING, V(AK + t))
    a.valu("v_lshrrev_b32", V(t0), 2, V(vI))
    a.valu("v_lshl_add_u32", V(t0), V(vG), 2, V(t0))
    a.valu("v_and_b32", V(t1), 7, V(t0))
    a.valu("v_and_b32", V(t2), 3, V(vI))
    a.valu("v_lshlrev_b32", V(t2), 3, V(t2))
    a.valu("v_lshl_add_u32", V(t2), V(t0), 8, V(t2))
    a.valu("v_add_u32", V(t2), RING, V(t2))
    for dt in range(8):
        a.valu("v_xor_b32", V(t0), dt, V(t1))
        a.valu("v_lshl_add_u32", V(AV + dt), V(t0), 5, V(t2))

    QA = lambda Tt, r: (Tt * 2 + r) * 4
    QA9 = lambda o: 64 + o * 4
    AFs = lambda p: 72 + 52 * p
    XFs = lambda p: 72 + 52 * p + 40
    WS = 176
    AW = 226
    WW = 236
    XA = 237
    WQA = 243
    DXv = 245
    a.valu("v_lshrrev_b32", V(t0), 2, V(vI))
    a.valu("v_lshl_add_u32", V(t1), V(vG), 3, V(t0))
    a.valu("v_and_b32", V(t2), 3, V(vI))
    a.valu("v_lshlrev_b32", V(t2), 4, V(t2))
    a.valu("v_lshl_add_u32", V(t2), V(t1), 8, V(t2))
    a.valu("v_and_b32", V(t3), 1, V(t0))
    a.valu("v_lshrrev_b32", V(t4), 3, V(vI))
    a.valu("v_and_b32", V(t5), 1, V(vG))
    a.valu("v_lshl_add_u32", V(t4), V(t5), 1, V(t4))
    for Tt in range(10):
        if Tt < 8:
            t, o = Tt >> 1, Tt & 1
            a.valu("v_xor_b32", V(t0), t, V(t4))
        else:
            o = Tt & 1
            a.valu("v_xor_b32", V(t0), S(sW), V(t4))
        a.valu("v_lshl_add_u32", V(t0), V(t0), 6, V(t2))
        a.valu("v_xor_b32", V(t1), o, V(t3))
        a.valu("v_lshl_add_u32", V(AW + Tt), V(t1), 3, V(t0))
    a.salu("s_lshl_b32", S(sT2), S(sW), 3)
    a.valu("v_lshl_add_u32", V(t0), V(vG), 1, S(sT2))
    a.salu("s_and_b32", S(sT3), S(sW), 1)
    a.salu("s_lshl_b32", S(sT3), S(sT3), 3)
    a.valu("v_lshl_add_u32", V(t1), V(t5), 2, S(sT3))
    a.valu("v_xor_b32", V(t1), V(t1), V(vI))
    a.valu("v_lshlrev_b32", V(t1), 4, V(t1))
    a.valu("v_lshl_add_u32", V(WW), V(t0), 8, V(t1))
    a.valu("v_lshlrev_b32", V(t1), 4, V(vI))
    a.valu("v_lshl_add_u32", V(WQA), V(t0), 13, V(t1))
    a.valu("v_add_u32", V(WQA + 1), 8192, V(WQA))
    a.valu("v_lshrrev_b32", V(t0), 1, V(vI))
    a.salu("s_lshl_b32", S(sT2), S(sW), 12)
    for e in range(2):
        a.valu("v_add_u32", V(t1), 4 * e, V(vG))
        a.valu("v_xor_b32", V(t1), V(t1), V(t0))
        a.valu("v_lshlrev_b32", V(t1), 4, V(t1))
        a.valu("v_lshl_add_u32", V(t1), V(vI), 7, V(t1))
        a.valu("v_add_u32", V(t1), XB, V(t1))
        a.valu("v_add_u32", V(XA + 3 * e), S(sT2), V(t1))
        a.valu("v_add_u32", V(XA + 3 * e + 1), 2048, V(XA + 3 * e))
        a.valu("v_add_u32", V(XA + 3 * e + 2), 128 * 128, V(t1))
    a.valu("v_lshrrev_b32", V(t0), 3, V(vL))
    a.salu("s_and_b32", S(sT2), S(sW), 1)
    a.salu("s_lshl_b32", S(sT2), S(sT2), 2)
    a.valu("v_add_u32", V(t1), S(sT2), V(vG))
    a.valu("v_and_b32", V(t2), 7, V(vL))
    a.valu("v_xor_b32", V(t1), V(t1), V(t2))
    a.valu("v_lshlrev_b32", V(t1), 4, V(t1))
    a.valu("v_lshl_add_u32", V(DXv), V(t0), 10, V(t1))
    a.salu("s_and_b32", S(sT2), S(sW), 1)
    a.salu("s_add_u32", S(sT2), S(sT2), 16)
    a.salu("s_lshl_b32", S(sX5g), S(sT2), 13)
    a.salu("s_lshl_b32", S(sX5l), S(sT2), 10)
    a.salu("s_lshl_b32", S(sT0), S(sW), 13)

    def load_wq_ops(j):
        base = WS + (j % 4) * 8
        return [
            lambda: a.salu("s_add_u32", S(sT2), S(sWQoff), j * 32 * 8192),
            lambda: bload("buffer_load_dwordx4", V(base, 4), V(WQA), S(sWQ, 4), S(sT2)),
            lambda: bload("buffer_load_dwordx4", V(base + 4, 4), V(WQA + 1), S(sWQ, 4), S(sT2)),
        ]

    xlast = {}

    def issue_x_ops(c):
        lb = XB + (c & 1) * XSZ
        ops = []
        for i in range(5):
            def f(i=i):
                if i < 4:
                    a.salu("s_add_u32", "m0", S(sDM0), lb + i * 4096)
                    a.salu("s_add_u32", S(sT3), S(sT0), i * 32768 + c * 128)
                else:
                    a.salu("s_add_u32", "m0", S(sX5l), lb)
                    a.salu("s_add_u32", S(sT3), S(sX5g), c * 128)
                dma(V(DXv), S(sX, 4), S(sT3))
                xlast[c] = a.vmn
            ops.append(f)
        return ops

    def write_wq_ops(j):
        base = WS + (j % 4) * 8
        boff = WB + (j % 3) * 8192
        return [
            lambda: a.ds_write("ds_write_b128", V(WW), V(base, 4), off=boff),
            lambda: a.ds_write("ds_write_b64", V(WW), V(base + 4, 2), off=boff + 256 + 8),
            lambda: a.ds_write("ds_write_b64", V(WW), V(base + 6, 2), off=boff + 256),
        ]

    order = [0, 1, 2, 3, 8, 4, 5, 6, 7, 9]

    def frag_read_ops(i):
        p = i & 1
        boff = WB + (i % 3) * 8192
        xoff = ((i // 2) & 1) * XSZ
        ops = []
        for r in range(3):
            ops.append(lambda r=r: a.ds_read("ds_read_b128", V(XFs(p) + 4 * r, 4), V(XA + 3 * (i & 1) + r), off=xoff))
        for Tt in order:
            ops.append(lambda Tt=Tt: a.ds_read("ds_read_b64_tr_b16", V(AFs(p) + Tt * 4, 2), V(AW + Tt), off=boff))
            ops.append(lambda Tt=Tt: a.ds_read("ds_read_b64_tr_b16", V(AFs(p) + Tt * 4 + 2, 2), V(AW + Tt), off=boff + 1024))
        return ops

    def run(ops):
        for f in ops:
            f()

    stamp(True)
    if stamps:
        a.misc(f"s_getreg_b32 s{SB + 2 * nst[0]}, hwreg(HW_REG_HW_ID)")
        nst[0] += 1
        a.misc(f"s_getreg_b32 s{SB + 2 * nst[0]}, hwreg(HW_REG_XCC_ID)")
        nst[0] += 1
    stamp()
    run(load_wq_ops(0))
    run(load_wq_ops(1))
    run(issue_x_ops(0))
    run(load_wq_ops(2))
    run(load_wq_ops(3))
    run(issue_x_ops(1))
    for i in range(72):
        a.valu("v_mov_b32", V(i), 0)
    run(write_wq_ops(0))
    run(write_wq_ops(1))
    run(load_wq_ops(4))
    issue_tile(False, slot_of(0))
    a.waitcnt(vm=a.vmn - xlast[0], lgkm=0)
    a.barrier()
    run(frag_read_ops(0))
    for i in range(16):
        p = i & 1
        main = []
        for Tt in order:
            if Tt < 8:
                for r in range(2):
                    main.append(lambda Tt=Tt, r=r: a.mfma(V(QA(Tt, r), 4), V(AFs(p) + Tt * 4, 4), V(XFs(p) + 4 * r, 4), V(QA(Tt, r), 4)))
            else:
                main.append(lambda Tt=Tt: a.mfma(V(QA9(Tt & 1), 4), V(AFs(p) + Tt * 4, 4), V(XFs(p) + 8, 4), V(QA9(Tt & 1), 4)))
        g = []
        if i % 2 == 1 and (i + 3) // 2 < 8:
            g += issue_x_ops((i + 3) // 2)
        wr = []
        if i + 2 < 16:
            wr = write_wq_ops(i + 2)
        if i + 5 < 16:
            g2 = load_wq_ops(i + 5)
        else:
            g2 = []
        rd = frag_read_ops(i + 1) if i + 1 < 16 else []
        streams = [[(0, 18, f) for f in rd],
                   [(1, 18, f) for f in g],
                   [(8, 18, f) for f in wr] + [(12, 18, f) for f in g2]]
        interleave(main, streams, budget=3)
        c = (i + 2) // 2
        if i % 2 == 0 and c < 8:
            a.waitcnt(vm=a.vmn - xlast[c], lgkm=0)
        else:
            a.waitcnt(lgkm=0)
        a.barrier()
    issue_tile(True, slot_of(1))
    issue_tile(False, slot_of(2))
    stamp()
    vL, t0, t1 = 176, 177, 178
    a.valu("v_mbcnt_lo_u32_b32", V(vL), -1, 0)
    a.valu("v_mbcnt_hi_u32_b32", V(vL), -1, V(vL))
    for i in range(72):
        a.valu("v_mul_f32", V(i), S(sC), V(i))
    for r in range(2):
        for t in range(4):
            q = QF(r, t)
            lo, hi = QA(2 * t, r), QA(2 * t + 1, r)
            a.valu("v_cvt_pk_bf16_f32", V(q), V(lo), V(lo + 1))
            a.valu("v_cvt_pk_bf16_f32", V(q + 1), V(lo + 2), V(lo + 3))
            a.valu("v_cvt_pk_bf16_f32", V(q + 2), V(hi), V(hi + 1))
            a.valu("v_cvt_pk_bf16_f32", V(q + 3), V(hi + 2), V(hi + 3))
    x0 = FR
    lo, hi = QA9(0), QA9(1)
    a.valu("v_cvt_pk_bf16_f32", V(x0), V(lo), V(lo + 1))
    a.valu("v_cvt_pk_bf16_f32", V(x0 + 1), V(lo + 2), V(lo + 3))
    a.valu("v_cvt_pk_bf16_f32", V(x0 + 2), V(hi), V(hi + 1))
    a.valu("v_cvt_pk_bf16_f32", V(x0 + 3), V(hi + 2), V(hi + 3))
    a.valu("v_lshlrev_b32", V(t0), 4, V(vL))
    a.valu("v_add_u32", V(t1), S(sDM0), V(t0))
    a.ds_write("ds_write_b128", V(t1), V(x0, 4), off=WB)
    a.waitcnt(lgkm=0)
    a.barrier()
    for t in range(4):
        a.ds_read("ds_read_b128", V(QF(2, t), 4), V(t0), off=WB + t * 1024)
    for i in range(96):
        a.valu("v_mov_b32", V(i), 0)
    for i in range(24):
        a.valu("v_mov_b32", V(NM(0) + i), 0)
    for i in range(4):
        a.valu("v_mov_b32", V(ONES + i), "0x3f803f80")
    a.salu("s_mov_b32", S(sThr), "0xff800000")
    a.salu("s_mov_b32", S(sLow), "0xff800000")
    a.salu("s_mov_b32", S(sThr9), "0xff800000")
    a.salu("s_mov_b32", S(sLow9), "0xff800000")

    T = TMP
    lbl = [0]

    def newlabel():
        lbl[0] += 1
        return f"{name}_n{lbl[0]}"

    def max_ops(sb, n, ta, first):
        ops = []
        j = 0
        if first:
            ops.append(lambda: a.valu("v_max3_f32", V(ta), V(sb), V(sb + 1), V(sb + 2)))
            j = 3
        while j + 1 < n:
            ops.append(lambda j=j: a.valu("v_max3_f32", V(ta), V(ta), V(sb + j), V(sb + j + 1)))
            j += 2
        if j < n:
            ops.append(lambda j=j: a.valu("v_max_f32", V(ta), V(ta), V(sb + j)))
        return ops

    def check(tiles, thr, low):
        if len(tiles) == 2:
            a.valu("v_max_f32", V(T + 3), V(tiles[0][3]), V(tiles[1][3]))
            a.valu("v_cmp_lt_f32", "vcc", S(thr), V(T + 3))
        else:
            a.valu("v_cmp_lt_f32", "vcc", S(thr), V(tiles[0][3]))
        L = newlabel()
        a.nop(5)
        a.misc(f"s_cbranch_vccz {L}")
        a.nop(8)
        for (sb, n, r, ta) in tiles:
            tb = T + 3
            for pl in ("v_permlane16_swap_b32", "v_permlane32_swap_b32"):
                a.valu("v_mov_b32", V(tb), V(ta))
                a.valu(pl, V(ta), V(tb))
                a.valu("v_max_f32", V(ta), V(ta), V(tb))
            a.valu("v_max_f32", V(ta), S(low), V(ta))
            for j in range(n):
                a.valu("v_sub_f32", V(sb + j), V(sb + j), V(ta))
            for e in range(4):
                a.valu("v_sub_f32", V(NM(r) + e), V(NM(r) + e), V(ta))
            a.valu("v_max_f32", V(tb), 0, V(ta))
            a.valu("v_exp_f32", V(tb), "-" + V(tb))
            for e in range(4):
                a.valu("v_mul_f32", V(LA(r) + e), V(LA(r) + e), V(tb))
            for dt in range(8):
                for e in range(4):
                    a.valu("v_mul_f32", V(OA(r, dt) + e), V(OA(r, dt) + e), V(tb))
        a.salu("s_mov_b32", S(thr), hex(f32bits(THR)))
        a.salu("s_mov_b32", S(low), 0)
        a.nop(4)
        a.label(L)

    def exp_ops(bases):
        ops = []
        for j in range(8):
            for b0 in bases:
                ops.append(lambda b0=b0, j=j: a.valu("v_exp_f32", V(b0 + j), V(b0 + j)))
        for e in range(4):
            for b0 in bases:
                ops.append(lambda b0=b0, e=e: a.valu("v_cvt_pk_bf16_f32", V(b0 + e), V(b0 + 2 * e), V(b0 + 2 * e + 1)))
        return ops

    def tile_ops(isv, slot):
        ops = []
        for i in range(4):
            def f(i=i):
                a.salu("s_add_u32", "m0", S(sDM0), RING + slot * SLOT + i * 4096)
                g = sVg if isv else sKg
                dma(V(DV) if isv else V(DK), S(sV, 4) if isv else S(sK, 4), S(g), KVF)
                a.salu("s_add_u32", S(g), S(g), 4096)
            ops.append(f)
        return ops

    LEAD = 4

    def frag_stream(items):
        st = []
        for k, (fu, lu, fn) in enumerate(items):
            rel = 0 if k < NFR else items[k - NFR][1] + 1
            dl = max(rel, fu - LEAD)
            st.append((rel, dl, (lambda fn=fn, k=k: fn(k % NFR))))
        return st

    A9 = T + 4

    def step(s, ninth):
        jK, jV = 2 * s, 2 * s + 1
        kslot = slot_of(jK) * SLOT
        vslot = slot_of(jV) * SLOT
        a.waitcnt(vm=8, lgkm=0)
        a.barrier()
        main, items = [], []
        for kt in range(4):
            for t in range(4):
                k = len(items)
                items.append((len(main), len(main) + 1,
                              lambda sl, kt=kt, t=t: a.ds_read("ds_read_b128", V(FR + 4 * sl, 4), V(AK + t), off=kslot + kt * 4096)))
                for r in range(2):
                    main.append(lambda kt=kt, t=t, r=r, k=k: a.mfma(V(SS(r, kt), 4), V(FR + 4 * (k % NFR), 4), V(QF(r, t), 4),
                                                                 V(SS(r, kt), 4) if t else V(NM(r), 4)))
        if ninth:
            for kt in range(2):
                for t in range(4):
                    k = len(items)

                    def rd(sl, kt=kt, t=t):
                        a.valu("v_add_u32", V(A9 + (t & 1)), S(sK9), V(AK + t))
                        a.ds_read("ds_read_b128", V(FR + 4 * sl, 4), V(A9 + (t & 1)), off=kslot + kt * 4096)
                    items.append((len(main), len(main), rd))
                    main.append(lambda kt=kt, t=t, k=k: a.mfma(V(S9(kt), 4), V(FR + 4 * (k % NFR), 4), V(QF(2, t), 4),
                                                            V(S9(kt), 4) if t else V(NM(2), 4)))
        n = len(main)
        mx = []
        for kt in range(4):
            rel = 8 * kt + 8 + 5
            for r in range(2):
                mx += [(rel, n, f) for f in max_ops(SS(r, kt), 4, T + r, kt == 0)]
        if ninth:
            mx += [(n, n, f) for f in max_ops(S9(0), 8, T + 2, True)]
        fs = frag_stream(items)
        for k in range(NFR):
            fs[k][2]()
        fs = fs[NFR:]
        for f in tile_ops(True, slot_of(jK + 3)):
            f()
        interleave(main, [fs, mx], budget=2)
        check([(SS(0, 0), 16, 0, T), (SS(1, 0), 16, 1, T + 1)], sThr, sLow)
        if ninth:
            check([(S9(0), 8, 2, T + 2)], sThr9, sLow9)
        a.waitcnt(vm=8, lgkm=0)
        a.barrier()
        main, items = [], []
        for u in range(2):
            for dt in range(8):
                k = len(items)

                def rd(sl, u=u, dt=dt):
                    a.ds_read("ds_read_b64_tr_b16", V(FR + 4 * sl, 2), V(AV + dt), off=vslot + u * 8192)
                    a.ds_read("ds_read_b64_tr_b16", V(FR + 4 * sl + 2, 2), V(AV + dt), off=vslot + u * 8192 + 4096)
                if dt == 0:
                    for r in range(2):
                        main.append(lambda u=u, r=r: a.mfma(V(LA(r), 4), V(ONES, 4), V(SS(r, 2 * u), 4), V(LA(r), 4)))
                items.append((len(main), len(main) + 1, rd))
                for r in range(2):
                    main.append(lambda u=u, dt=dt, r=r, k=k: a.mfma(V(OA(r, dt), 4), V(FR + 4 * (k % NFR), 4), V(SS(r, 2 * u), 4), V(OA(r, dt), 4)))
        n_main = len(main)
        if ninth:
            main.append(lambda: a.mfma(V(LA(2), 4), V(ONES, 4), V(S9(0), 4), V(LA(2), 4)))
            for dt in range(8):
                k = len(items)

                def rd(sl, dt=dt):
                    a.valu("v_add_u32", V(A9 + (dt & 1)), S(sK9), V(AV + dt))
                    a.ds_read("ds_read_b64_tr_b16", V(FR + 4 * sl, 2), V(A9 + (dt & 1)), off=vslot)
                    a.ds_read("ds_read_b64_tr_b16", V(FR + 4 * sl + 2, 2), V(A9 + (dt & 1)), off=vslot + 4096)
                items.append((len(main), len(main), rd))
                main.append(lambda dt=dt, k=k: a.mfma(V(OA(2, dt), 4), V(FR + 4 * (k % NFR), 4), V(S9(0), 4), V(OA(2, dt), 4)))
        fs = frag_stream(items)
        for k in range(NFR):
            fs[k][2]()
        fs = fs[NFR:]
        for f in exp_ops([SS(0, 0), SS(1, 0)]):
            f()
        ex = [(0, 17, f) for f in exp_ops([SS(0, 2), SS(1, 2)])]
        if ninth:
            ex += [(18, n_main - 1, f) for f in exp_ops([S9(0)])]
        dm = [(18, len(main), f) for f in tile_ops(False, slot_of(jV + 3))]
        interleave(main, [fs, ex, dm], budget=3)

    a.salu("s_mov_b32", S(sIt), 0)
    a.flush()
    a.label(f"{name}_aloop")
    for s in range(2):
        L1, L2 = newlabel(), newlabel()
        a.salu("s_cmp_lg_u32", None, S(sN9), s & 1)
        a.misc(f"s_cbranch_scc1 {L1}")
        step(s, True)
        a.flush()
        a.misc(f"s_branch {L2}")
        a.label(L1)
        step(s, False)
        a.flush()
        a.label(L2)
    a.salu("s_add_u32", S(sIt), S(sIt), 1)
    a.salu("s_cmp_lt_u32", None, S(sIt), 4)
    a.misc(f"s_cbranch_scc1 {name}_aloop")
    a.waitcnt(vm=0, lgkm=0)
    stamp()

    E = SS(0, 0)
    vL, vG, vI = E, E + 1, E + 2
    t0, t1, t2, t3 = E + 4, E + 5, E + 6, E + 7
    vSt = E + 8
    a.valu("v_mbcnt_lo_u32_b32", V(vL), -1, 0)
    a.valu("v_mbcnt_hi_u32_b32", V(vL), -1, V(vL))
    a.valu("v_lshrrev_b32", V(vG), 4, V(vL))
    a.valu("v_and_b32", V(vI), 15, V(vL))
    a.valu("v_lshlrev_b32", V(t0), 3, V(vG))
    a.valu("v_lshl_add_u32", V(vSt), V(vI), 8, V(t0))
    a.barrier()
    CB = 0
    PB = 4096
    a.valu("v_mov_b32", V(t2), V(NM(2)))
    a.valu("v_mov_b32", V(t3), V(LA(2)))
    a.salu("s_lshl_b32", S(sT2), S(sW), 7)
    a.valu("v_lshlrev_b32", V(t0), 3, V(vI))
    a.valu("v_add_u32", V(t1), S(sT2), V(t0))
    a.ds_write("ds_write_b64", V(t1), V(t2, 2), off=CB)
    a.waitcnt(lgkm=0)
    a.barrier()
    ml = FR
    for w in range(4):
        a.ds_read("ds_read_b64", V(ml + 2 * w, 2), V(t0), off=CB + w * 128)
    a.valu("v_min3_f32", V(t1), V(ml), V(ml + 2), V(ml + 4))
    a.valu("v_min_f32", V(t1), V(t1), V(ml + 6))
    a.valu("v_mov_b32", V(t2), 0)
    for w in range(4):
        a.valu("v_sub_f32", V(t3), V(t1), V(ml + 2 * w))
        a.valu("v_exp_f32", V(t3), V(t3))
        a.valu("v_fma_f32", V(t2), V(t3), V(ml + 2 * w + 1), V(t2))
    a.valu("v_sub_f32", V(t3), V(t1), V(NM(2)))
    a.valu("v_exp_f32", V(t3), V(t3))
    a.valu("v_rcp_f32", V(t2), V(t2))
    a.valu("v_mul_f32", V(t3), V(t3), V(t2))
    a.salu("s_lshl_b32", S(sT2), S(sW), 13)
    a.valu("v_lshlrev_b32", V(t0), 4, V(vL))
    a.valu("v_add_u32", V(t1), S(sT2), V(t0))
    for dt in range(8):
        o = OA(2, dt)
        for e in range(4):
            a.valu("v_mul_f32", V(o + e), V(o + e), V(t3))
        a.ds_write("ds_write_b128", V(t1), V(o, 4), off=PB + dt * 1024)
    for r in range(2):
        a.valu("v_rcp_f32", V(t2), V(LA(r)))
        a.salu("s_lshl_b32", S(sT2), S(sW), 13)
        a.salu("s_add_u32", S(sT2), S(sT2), r * 4096)
        for dt in range(8):
            o = OA(r, dt)
            for e in range(4):
                a.valu("v_mul_f32", V(o + e), V(o + e), V(t2))
            a.valu("v_cvt_pk_bf16_f32", V(o), V(o), V(o + 1))
            a.valu("v_cvt_pk_bf16_f32", V(o + 1), V(o + 2), V(o + 3))
            bstore("buffer_store_dwordx2", V(o, 2), V(vSt), S(sO, 4), S(sT2), off=dt * 32)
    a.waitcnt(lgkm=0)
    a.barrier()
    a.salu("s_lshl_b32", S(sT2), S(sW), 11)
    a.valu("v_add_u32", V(t1), S(sT2), V(t0))
    RB = OA(2, 0)
    for j in range(2):
        for w in range(4):
            a.ds_read("ds_read_b128", V(RB + (j * 4 + w) * 4, 4), V(t1), off=PB + w * 8192 + j * 1024)
    a.salu("s_lshl_b32", S(sT2), S(sW), 6)
    a.salu("s_add_u32", S(sT2), S(sT2), 8 * 4096)
    for j in range(2):
        b0 = RB + j * 16
        for e in range(4):
            a.valu("v_add_f32", V(b0 + e), V(b0 + e), V(b0 + 4 + e))
            a.valu("v_add_f32", V(b0 + 8 + e), V(b0 + 8 + e), V(b0 + 12 + e))
        for e in range(4):
            a.valu("v_add_f32", V(b0 + e), V(b0 + e), V(b0 + 8 + e))
        a.valu("v_cvt_pk_bf16_f32", V(b0), V(b0), V(b0 + 1))
        a.valu("v_cvt_pk_bf16_f32", V(b0 + 1), V(b0 + 2), V(b0 + 3))
        bstore("buffer_store_dwordx2", V(b0, 2), V(vSt), S(sO, 4), S(sT2), off=j * 32)
    if stamps:
        stamp()
        stamp(True)
        a.salu("s_add_u32", S(sX), "s12", 0x3000000)
        a.salu("s_addc_u32", S(sX + 1), "s13", 0)
        a.salu("s_mov_b32", S(sX + 2), 0x100000)
        a.salu("s_lshl_b32", S(sT2), "s2", 10)
        a.salu("s_lshl_b32", S(sT3), S(sW), 8)
        a.salu("s_add_u32", S(sT2), S(sT2), S(sT3))
        a.salu("s_mov_b64", "exec", 1)
        a.valu("v_mov_b32", V(t1), 0)
        for i in range(nst[0]):
            a.valu("v_mov_b32", V(t0), S(SB + 2 * i))
            a.bstore("buffer_store_dword", V(t0), V(t1), S(sX, 4), S(sT2), off=4 * i)
        for i in range(12):
            a.valu("v_mov_b32", V(t0), S(86 + i))
            a.bstore("buffer_store_dword", V(t0), V(t1), S(sX, 4), S(sT2), off=128 + 4 * i)
    a.label(f"{name}_done")
    a.misc("s_endpgm")
    return a
```

```python
def interleave(main, streams, budget=2):
    ptr = [0] * len(streams)
    n = len(main)
    for j in range(n + 1):
        for si, st in enumerate(streams):
            last = -1
            for k in range(ptr[si], len(st)):
                if st[k][1] <= j:
                    last = k
            while ptr[si] <= last:
                st[ptr[si]][2]()
                ptr[si] += 1
        left = budget if j < n else 10 ** 9
        progress = True
        while left > 0 and progress:
            progress = False
            for si, st in enumerate(streams):
                if left <= 0:
                    break
                if ptr[si] < len(st) and st[ptr[si]][0] <= j:
                    st[ptr[si]][2]()
                    ptr[si] += 1
                    left -= 1
                    progress = True
        if j < n:
            main[j]()
    for si, st in enumerate(streams):
        assert ptr[si] == len(st)
```

```python
import struct
from asmlib import Asm, V, S
from sched import interleave

RING = 16384
SLOT = 16384
WB = 0
XB = 24576
XSZ = 18432
LDS_K1 = 81920
THR = 8.0

CSCALE = 1.4426950408889634 / (128.0 ** 0.5)


def f32bits(x):
    return struct.unpack("<I", struct.pack("<f", x))[0]


def OA(r, dt):
    return (r * 8 + dt) * 4


def QF(r, t):
    return 96 + (r * 4 + t) * 4


def SS(r, kt):
    return 144 + (r * 4 + kt) * 4


def S9(kt):
    return 176 + kt * 4


def NM(r):
    return 184 + 4 * r


def LA(r):
    return 196 + 4 * r


ONES = 208
AK = 212
AV = 216
DK = 224
DV = 225
TMP = 226
FR = 232
NFR = 6

sX, sWQ, sK, sV, sO = 16, 20, 24, 28, 32
sW = 36
sC = 37
sT0 = 38
sT1 = 39
sWQoff = 48
sDM0 = 49
sN9 = 50
sT2 = 51
sT3 = 52
sH = 53
sWQrun, sXrun, sIt, sKg, sVg = 54, 55, 56, 57, 58
sThr, sLow, sThr9, sLow9 = 59, 60, 61, 62
sX5g, sX5l = 63, 64
sK9 = 65


def slot_of(tile):
    return (tile + 3) % 4


def gen_k1(name, stamps=False, nt=True, dbg=()):
    a = Asm()
    a.vmn = 0
    nst = [0]
    SB = 70

    def stamp(real=False):
        if not stamps:
            return
        a.waitcnt(lgkm=0)
        a.misc(f"{'s_memrealtime' if real else 's_memtime'} s[{SB + 2 * nst[0]}:{SB + 1 + 2 * nst[0]}]")
        a.misc("s_waitcnt lgkmcnt(0)")
        nst[0] += 1

    def seg(k):
        if not stamps or "noseg" in dbg:
            return
        a.waitcnt(lgkm=0)
        a.misc("s_memtime s[98:99]")
        a.misc("s_waitcnt lgkmcnt(0)")
        a.salu("s_sub_u32", "s100", "s98", "s101")
        a.salu("s_add_u32", S(86 + k), S(86 + k), "s100")
        a.salu("s_mov_b32", "s101", "s98")

    a.label(name)

    def dma(voff, srd, soff, flags=""):
        a.dma(voff, srd, soff, flags=flags)
        a.vmn += 1

    def bload(*x, **k):
        a.bload(*x, **k)
        a.vmn += 1

    def bstore(*x, **k):
        a.bstore(*x, **k)
        a.vmn += 1

    KVF = "nt" if nt else ""

    a.salu("s_cmp_ge_u32", None, "s2", 512)
    a.misc(f"s_cbranch_scc1 {name}_done")
    a.misc("s_load_dwordx8 s[4:11], s[0:1], 0")
    a.misc("s_load_dwordx8 s[40:47], s[0:1], 40")
    a.misc("s_load_dwordx2 s[12:13], s[0:1], 96")
    vL, vG, vI = 10, 11, 12
    t0, t1, t2, t3, t4, t5 = 14, 15, 16, 17, 18, 19
    a.valu("v_and_b32", V(vL), 63, "v0")
    a.valu("v_lshrrev_b32", V(t0), 6, "v0")
    a.valu("v_lshrrev_b32", V(vG), 4, V(vL))
    a.valu("v_and_b32", V(vI), 15, V(vL))
    a.valu("v_readfirstlane_b32", S(sW), V(t0))
    a.misc("s_waitcnt lgkmcnt(0)")
    a.salu("s_lshr_b32", S(sT0), "s2", 2)
    a.salu("s_and_b32", S(sT0), S(sT0), 1)
    a.salu("s_cmp_eq_u32", None, S(sT0), 0)
    for i in range(8):
        a.salu("s_cselect_b32", S(4 + i), S(4 + i), S(40 + i))
    a.salu("s_lshr_b32", S(sT1), "s2", 7)
    a.salu("s_and_b32", S(sT2), "s2", 2)
    a.salu("s_lshl_b32", S(sT2), S(sT2), 1)
    a.salu("s_add_u32", S(sT1), S(sT1), S(sT2))
    a.salu("s_lshr_b32", S(sH), "s2", 3)
    a.salu("s_and_b32", S(sH), S(sH), 15)
    a.salu("s_and_b32", S(sT2), "s2", 1)
    a.salu("s_lshl_b32", S(sT2), S(sT2), 4)
    a.salu("s_add_u32", S(sH), S(sH), S(sT2))
    a.salu("s_mul_i32", S(sT2), S(sT1), 147456)
    a.salu("s_add_u32", S(sX), "s4", S(sT2))
    a.salu("s_addc_u32", S(sX + 1), "s5", 0)
    a.salu("s_mov_b32", S(sX + 2), 147456)
    a.salu("s_mov_b32", S(sX + 3), "0x00020000")
    a.salu("s_mov_b32", S(sWQ), "s10")
    a.salu("s_mov_b32", S(sWQ + 1), "s11")
    a.salu("s_mov_b32", S(sWQ + 2), 4194304)
    a.salu("s_mov_b32", S(sWQ + 3), "0x00020000")
    a.salu("s_lshl_b32", S(sT3), S(sT1), 5)
    a.salu("s_add_u32", S(sT3), S(sT3), S(sH))
    a.salu("s_lshl_b32", S(sT2), S(sT3), 17)
    a.salu("s_add_u32", S(sK), "s6", S(sT2))
    a.salu("s_addc_u32", S(sK + 1), "s7", 0)
    a.salu("s_mov_b32", S(sK + 2), 131072)
    a.salu("s_mov_b32", S(sK + 3), "0x00020000")
    a.salu("s_add_u32", S(sV), "s8", S(sT2))
    a.salu("s_addc_u32", S(sV + 1), "s9", 0)
    a.salu("s_mov_b32", S(sV + 2), 131072)
    a.salu("s_mov_b32", S(sV + 3), "0x00020000")
    a.salu("s_mul_i32", S(sT2), S(sT0), 9437184)
    a.salu("s_mul_i32", S(sT3), S(sT3), 36864)
    a.salu("s_add_u32", S(sT2), S(sT2), S(sT3))
    a.salu("s_add_u32", S(sO), "s12", S(sT2))
    a.salu("s_addc_u32", S(sO + 1), "s13", 0)
    a.salu("s_mov_b32", S(sO + 2), 36864)
    a.salu("s_mov_b32", S(sO + 3), "0x00020000")
    a.salu("s_lshl_b32", S(sWQoff), S(sH), 8)
    a.salu("s_mov_b32", S(sC), hex(f32bits(CSCALE)))
    a.salu("s_lshl_b32", S(sDM0), S(sW), 10)
    a.salu("s_lshr_b32", S(sN9), S(sW), 1)
    a.salu("s_and_b32", S(sK9), S(sW), 1)
    a.salu("s_lshl_b32", S(sK9), S(sK9), 13)

    a.salu("s_lshl_b32", S(sT2), S(sW), 2)
    a.valu("v_add_u32", V(t0), S(sT2), V(vG))
    a.valu("v_xor_b32", V(t1), V(vI), V(t0))
    a.valu("v_lshlrev_b32", V(t1), 4, V(t1))
    a.valu("v_lshl_add_u32", V(DK), V(t0), 8, V(t1))
    a.valu("v_and_b32", V(t1), 7, V(t0))
    a.valu("v_lshlrev_b32", V(t1), 1, V(t1))
    a.valu("v_xor_b32", V(t1), V(vI), V(t1))
    a.valu("v_lshlrev_b32", V(t1), 4, V(t1))
    a.valu("v_lshl_add_u32", V(DV), V(t0), 8, V(t1))

    def issue_tile(isv, slot):
        for i in range(4):
            a.salu("s_add_u32", "m0", S(sDM0), RING + slot * SLOT + i * 4096)
            g = sVg if isv else sKg
            dma(V(DV) if isv else V(DK), S(sV, 4) if isv else S(sK, 4), S(g), KVF)
            a.salu("s_add_u32", S(g), S(g), 4096)

    a.salu("s_mov_b32", S(sKg), 0)
    a.salu("s_mov_b32", S(sVg), 0)

    for t in range(4):
        a.valu("v_add_u32", V(t0), 4 * t, V(vG))
        a.valu("v_xor_b32", V(t0), V(t0), V(vI))
        a.valu("v_lshlrev_b32", V(t0), 4, V(t0))
        a.valu("v_lshl_add_u32", V(AK + t), V(vI), 8, V(t0))
        a.valu("v_add_u32", V(AK + t), RING, V(AK + t))
    a.valu("v_lshrrev_b32", V(t0), 2, V(vI))
    a.valu("v_lshl_add_u32", V(t0), V(vG), 2, V(t0))
    a.valu("v_and_b32", V(t1), 7, V(t0))
    a.valu("v_and_b32", V(t2), 3, V(vI))
    a.valu("v_lshlrev_b32", V(t2), 3, V(t2))
    a.valu("v_lshl_add_u32", V(t2), V(t0), 8, V(t2))
    a.valu("v_add_u32", V(t2), RING, V(t2))
    for dt in range(8):
        a.valu("v_xor_b32", V(t0), dt, V(t1))
        a.valu("v_lshl_add_u32", V(AV + dt), V(t0), 5, V(t2))

    QA = lambda Tt, r: (Tt * 2 + r) * 4
    QA9 = lambda o: 64 + o * 4
    AFs = lambda p: 72 + 52 * p
    XFs = lambda p: 72 + 52 * p + 40
    WS = 176
    AW = 226
    WW = 236
    XA = 237
    WQA = 243
    DXv = 245
    a.valu("v_lshrrev_b32", V(t0), 2, V(vI))
    a.valu("v_lshl_add_u32", V(t1), V(vG), 3, V(t0))
    a.valu("v_and_b32", V(t2), 3, V(vI))
    a.valu("v_lshlrev_b32", V(t2), 4, V(t2))
    a.valu("v_lshl_add_u32", V(t2), V(t1), 8, V(t2))
    a.valu("v_and_b32", V(t3), 1, V(t0))
    a.valu("v_lshrrev_b32", V(t4), 3, V(vI))
    a.valu("v_and_b32", V(t5), 1, V(vG))
    a.valu("v_lshl_add_u32", V(t4), V(t5), 1, V(t4))
    for Tt in range(10):
        if Tt < 8:
            t, o = Tt >> 1, Tt & 1
            a.valu("v_xor_b32", V(t0), t, V(t4))
        else:
            o = Tt & 1
            a.valu("v_xor_b32", V(t0), S(sW), V(t4))
        a.valu("v_lshl_add_u32", V(t0), V(t0), 6, V(t2))
        a.valu("v_xor_b32", V(t1), o, V(t3))
        a.valu("v_lshl_add_u32", V(AW + Tt), V(t1), 3, V(t0))
    a.salu("s_lshl_b32", S(sT2), S(sW), 3)
    a.valu("v_lshl_add_u32", V(t0), V(vG), 1, S(sT2))
    a.salu("s_and_b32", S(sT3), S(sW), 1)
    a.salu("s_lshl_b32", S(sT3), S(sT3), 3)
    a.valu("v_lshl_add_u32", V(t1), V(t5), 2, S(sT3))
    a.valu("v_xor_b32", V(t1), V(t1), V(vI))
    a.valu("v_lshlrev_b32", V(t1), 4, V(t1))
    a.valu("v_lshl_add_u32", V(WW), V(t0), 8, V(t1))
    a.valu("v_lshlrev_b32", V(t1), 4, V(vI))
    a.valu("v_lshl_add_u32", V(WQA), V(t0), 13, V(t1))
    a.valu("v_add_u32", V(WQA + 1), 8192, V(WQA))
    a.valu("v_lshrrev_b32", V(t0), 1, V(vI))
    a.salu("s_lshl_b32", S(sT2), S(sW), 12)
    for e in range(2):
        a.valu("v_add_u32", V(t1), 4 * e, V(vG))
        a.valu("v_xor_b32", V(t1), V(t1), V(t0))
        a.valu("v_lshlrev_b32", V(t1), 4, V(t1))
        a.valu("v_lshl_add_u32", V(t1), V(vI), 7, V(t1))
        a.valu("v_add_u32", V(t1), XB, V(t1))
        a.valu("v_add_u32", V(XA + 3 * e), S(sT2), V(t1))
        a.valu("v_add_u32", V(XA + 3 * e + 1), 2048, V(XA + 3 * e))
        a.valu("v_add_u32", V(XA + 3 * e + 2), 128 * 128, V(t1))
    a.valu("v_lshrrev_b32", V(t0), 3, V(vL))
    a.salu("s_and_b32", S(sT2), S(sW), 1)
    a.salu("s_lshl_b32", S(sT2), S(sT2), 2)
    a.valu("v_add_u32", V(t1), S(sT2), V(vG))
    a.valu("v_and_b32", V(t2), 7, V(vL))
    a.valu("v_xor_b32", V(t1), V(t1), V(t2))
    a.valu("v_lshlrev_b32", V(t1), 4, V(t1))
    a.valu("v_lshl_add_u32", V(DXv), V(t0), 10, V(t1))
    a.salu("s_and_b32", S(sT2), S(sW), 1)
    a.salu("s_add_u32", S(sT2), S(sT2), 16)
    a.salu("s_lshl_b32", S(sX5g), S(sT2), 13)
    a.salu("s_lshl_b32", S(sX5l), S(sT2), 10)
    a.salu("s_lshl_b32", S(sT0), S(sW), 13)

    def load_wq_ops(j):
        base = WS + (j % 4) * 8
        return [
            lambda: a.salu("s_add_u32", S(sT2), S(sWQoff), j * 32 * 8192),
            lambda: bload("buffer_load_dwordx4", V(base, 4), V(WQA), S(sWQ, 4), S(sT2)),
            lambda: bload("buffer_load_dwordx4", V(base + 4, 4), V(WQA + 1), S(sWQ, 4), S(sT2)),
        ]

    xlast = {}

    def issue_x_ops(c):
        lb = XB + (c & 1) * XSZ
        ops = []
        for i in range(5):
            def f(i=i):
                if i < 4:
                    a.salu("s_add_u32", "m0", S(sDM0), lb + i * 4096)
                    a.salu("s_add_u32", S(sT3), S(sT0), i * 32768 + c * 128)
                else:
                    a.salu("s_add_u32", "m0", S(sX5l), lb)
                    a.salu("s_add_u32", S(sT3), S(sX5g), c * 128)
                dma(V(DXv), S(sX, 4), S(sT3))
                xlast[c] = a.vmn
            ops.append(f)
        return ops

    def write_wq_ops(j):
        base = WS + (j % 4) * 8
        boff = WB + (j % 3) * 8192
        return [
            lambda: a.ds_write("ds_write_b128", V(WW), V(base, 4), off=boff),
            lambda: a.ds_write("ds_write_b64", V(WW), V(base + 4, 2), off=boff + 256 + 8),
            lambda: a.ds_write("ds_write_b64", V(WW), V(base + 6, 2), off=boff + 256),
        ]

    order = [0, 1, 2, 3, 8, 4, 5, 6, 7, 9]

    def frag_read_ops(i):
        p = i & 1
        boff = WB + (i % 3) * 8192
        xoff = ((i // 2) & 1) * XSZ
        ops = []
        for r in range(3):
            ops.append(lambda r=r: a.ds_read("ds_read_b128", V(XFs(p) + 4 * r, 4), V(XA + 3 * (i & 1) + r), off=xoff))
        for Tt in order:
            ops.append(lambda Tt=Tt: a.ds_read("ds_read_b64_tr_b16", V(AFs(p) + Tt * 4, 2), V(AW + Tt), off=boff))
            ops.append(lambda Tt=Tt: a.ds_read("ds_read_b64_tr_b16", V(AFs(p) + Tt * 4 + 2, 2), V(AW + Tt), off=boff + 1024))
        return ops

    def run(ops):
        for f in ops:
            f()

    stamp(True)
    if stamps:
        a.misc(f"s_getreg_b32 s{SB + 2 * nst[0]}, hwreg(HW_REG_HW_ID)")
        nst[0] += 1
        a.misc(f"s_getreg_b32 s{SB + 2 * nst[0]}, hwreg(HW_REG_XCC_ID)")
        nst[0] += 1
    stamp()
    run(load_wq_ops(0))
    run(load_wq_ops(1))
    run(issue_x_ops(0))
    run(load_wq_ops(2))
    run(load_wq_ops(3))
    run(issue_x_ops(1))
    for i in range(72):
        a.valu("v_mov_b32", V(i), 0)
    run(write_wq_ops(0))
    run(write_wq_ops(1))
    run(load_wq_ops(4))
    issue_tile(False, slot_of(0))
    a.waitcnt(vm=a.vmn - xlast[0], lgkm=0)
    a.barrier()
    run(frag_read_ops(0))
    for i in range(16):
        p = i & 1
        main = []
        for Tt in order:
            if Tt < 8:
                for r in range(2):
                    main.append(lambda Tt=Tt, r=r: a.mfma(V(QA(Tt, r), 4), V(AFs(p) + Tt * 4, 4), V(XFs(p) + 4 * r, 4), V(QA(Tt, r), 4)))
            else:
                main.append(lambda Tt=Tt: a.mfma(V(QA9(Tt & 1), 4), V(AFs(p) + Tt * 4, 4), V(XFs(p) + 8, 4), V(QA9(Tt & 1), 4)))
        g = []
        if i % 2 == 1 and (i + 3) // 2 < 8:
            g += issue_x_ops((i + 3) // 2)
        wr = []
        if i + 2 < 16:
            wr = write_wq_ops(i + 2)
        if i + 5 < 16:
            g2 = load_wq_ops(i + 5)
        else:
            g2 = []
        rd = frag_read_ops(i + 1) if i + 1 < 16 else []
        streams = [[(0, 18, f) for f in rd],
                   [(1, 18, f) for f in g],
                   [(8, 18, f) for f in wr] + [(12, 18, f) for f in g2]]
        interleave(main, streams, budget=3)
        c = (i + 2) // 2
        if i % 2 == 0 and c < 8:
            a.waitcnt(vm=a.vmn - xlast[c], lgkm=0)
        else:
            a.waitcnt(lgkm=0)
        a.barrier()
    issue_tile(True, slot_of(1))
    issue_tile(False, slot_of(2))
    stamp()
    vL, t0, t1 = 176, 177, 178
    a.valu("v_mbcnt_lo_u32_b32", V(vL), -1, 0)
    a.valu("v_mbcnt_hi_u32_b32", V(vL), -1, V(vL))
    for i in range(72):
        a.valu("v_mul_f32", V(i), S(sC), V(i))
    for r in range(2):
        for t in range(4):
            q = QF(r, t)
            lo, hi = QA(2 * t, r), QA(2 * t + 1, r)
            a.valu("v_cvt_pk_bf16_f32", V(q), V(lo), V(lo + 1))
            a.valu("v_cvt_pk_bf16_f32", V(q + 1), V(lo + 2), V(lo + 3))
            a.valu("v_cvt_pk_bf16_f32", V(q + 2), V(hi), V(hi + 1))
            a.valu("v_cvt_pk_bf16_f32", V(q + 3), V(hi + 2), V(hi + 3))
    x0 = FR
    lo, hi = QA9(0), QA9(1)
    a.valu("v_cvt_pk_bf16_f32", V(x0), V(lo), V(lo + 1))
    a.valu("v_cvt_pk_bf16_f32", V(x0 + 1), V(lo + 2), V(lo + 3))
    a.valu("v_cvt_pk_bf16_f32", V(x0 + 2), V(hi), V(hi + 1))
    a.valu("v_cvt_pk_bf16_f32", V(x0 + 3), V(hi + 2), V(hi + 3))
    a.valu("v_lshlrev_b32", V(t0), 4, V(vL))
    a.valu("v_add_u32", V(t1), S(sDM0), V(t0))
    a.ds_write("ds_write_b128", V(t1), V(x0, 4), off=WB)
    a.waitcnt(lgkm=0)
    a.barrier()
    for t in range(4):
        a.ds_read("ds_read_b128", V(QF(2, t), 4), V(t0), off=WB + t * 1024)
    for i in range(96):
        a.valu("v_mov_b32", V(i), 0)
    for i in range(24):
        a.valu("v_mov_b32", V(NM(0) + i), 0)
    for i in range(4):
        a.valu("v_mov_b32", V(ONES + i), "0x3f803f80")
    a.salu("s_mov_b32", S(sThr), "0xff800000")
    a.salu("s_mov_b32", S(sLow), "0xff800000")
    a.salu("s_mov_b32", S(sThr9), "0xff800000")
    a.salu("s_mov_b32", S(sLow9), "0xff800000")

    T = TMP
    lbl = [0]

    def newlabel():
        lbl[0] += 1
        return f"{name}_n{lbl[0]}"

    def max_ops(sb, n, ta, first):
        ops = []
        j = 0
        if first:
            ops.append(lambda: a.valu("v_max3_f32", V(ta), V(sb), V(sb + 1), V(sb + 2)))
            j = 3
        while j + 1 < n:
            ops.append(lambda j=j: a.valu("v_max3_f32", V(ta), V(ta), V(sb + j), V(sb + j + 1)))
            j += 2
        if j < n:
            ops.append(lambda j=j: a.valu("v_max_f32", V(ta), V(ta), V(sb + j)))
        return ops

    def check(tiles, thr, low):
        if "nocheck" in dbg:
            return
        if len(tiles) == 2:
            a.valu("v_max_f32", V(T + 3), V(tiles[0][3]), V(tiles[1][3]))
            a.valu("v_cmp_lt_f32", "vcc", S(thr), V(T + 3))
        else:
            a.valu("v_cmp_lt_f32", "vcc", S(thr), V(tiles[0][3]))
        L = newlabel()
        a.nop(5)
        a.misc(f"s_cbranch_vccz {L}")
        saved = (list(a.hist), a.pos)
        a.nop(8)
        for (sb, n, r, ta) in tiles:
            tb = T + 3
            for pl in ("v_permlane16_swap_b32", "v_permlane32_swap_b32"):
                a.valu("v_mov_b32", V(tb), V(ta))
                a.valu(pl, V(ta), V(tb))
                a.valu("v_max_f32", V(ta), V(ta), V(tb))
            a.valu("v_max_f32", V(ta), S(low), V(ta))
            for j in range(n):
                a.valu("v_sub_f32", V(sb + j), V(sb + j), V(ta))
            for e in range(4):
                a.valu("v_sub_f32", V(NM(r) + e), V(NM(r) + e), V(ta))
            a.valu("v_max_f32", V(tb), 0, V(ta))
            a.valu("v_exp_f32", V(tb), "-" + V(tb))
            for e in range(4):
                a.valu("v_mul_f32", V(LA(r) + e), V(LA(r) + e), V(tb))
            for dt in range(8):
                for e in range(4):
                    a.valu("v_mul_f32", V(OA(r, dt) + e), V(OA(r, dt) + e), V(tb))
        a.salu("s_mov_b32", S(thr), hex(f32bits(THR)))
        a.salu("s_mov_b32", S(low), 0)
        a.nop(4)
        a.label(L)
        a.hist, a.pos = list(saved[0]), saved[1]

    def exp_ops(bases):
        ops = []
        if "noexp" in dbg:
            return ops
        for j in range(8):
            for b0 in bases:
                ops.append(lambda b0=b0, j=j: a.valu("v_exp_f32", V(b0 + j), V(b0 + j)))
        for e in range(4):
            for b0 in bases:
                ops.append(lambda b0=b0, e=e: a.valu("v_cvt_pk_bf16_f32", V(b0 + e), V(b0 + 2 * e), V(b0 + 2 * e + 1)))
        return ops

    def tile_ops(isv, slot):
        ops = []
        if "nodma" in dbg:
            return ops
        for i in range(4):
            def f(i=i):
                a.salu("s_add_u32", "m0", S(sDM0), RING + slot * SLOT + i * 4096)
                g = sVg if isv else sKg
                dma(V(DV) if isv else V(DK), S(sV, 4) if isv else S(sK, 4), S(g), KVF)
                a.salu("s_add_u32", S(g), S(g), 4096)
            ops.append(f)
        return ops

    LEAD = 4

    def frag_stream(items):
        st = []
        for k, (fu, lu, fn) in enumerate(items):
            rel = 0 if k < NFR else items[k - NFR][1] + 1
            dl = max(rel, fu - LEAD)
            st.append((rel, dl, (lambda fn=fn, k=k: None if "nolds" in dbg else fn(k % NFR))))
        return st

    A9 = T + 4

    class Seg:
        def __init__(self):
            self.main, self.items, self.vx, self.dm = [], [], [], []

        def X(self, h):
            kslot = slot_of(2 * (h >> 1)) * SLOT
            for ktl in range(2):
                kt = 2 * (h & 1) + ktl
                for t in range(4):
                    k = len(self.items)
                    self.items.append((len(self.main), len(self.main) + 1,
                                       lambda sl, kt=kt, t=t: a.ds_read("ds_read_b128", V(FR + 4 * sl, 4), V(AK + t), off=kslot + kt * 4096)))
                    for r in range(2):
                        self.main.append(lambda kt=kt, t=t, r=r, k=k: a.mfma(V(SS(r, kt), 4), V(FR + 4 * (k % NFR), 4), V(QF(r, t), 4),
                                                                          V(SS(r, kt), 4) if t else V(NM(r), 4)))

        def X9(self, s):
            kslot = slot_of(2 * s) * SLOT
            for kt in range(2):
                for t in range(4):
                    k = len(self.items)

                    def rd(sl, kt=kt, t=t):
                        a.valu("v_add_u32", V(A9 + (t & 1)), S(sK9), V(AK + t))
                        a.ds_read("ds_read_b128", V(FR + 4 * sl, 4), V(A9 + (t & 1)), off=kslot + kt * 4096)
                    self.items.append((len(self.main), len(self.main), rd))
                    self.main.append(lambda kt=kt, t=t, k=k: a.mfma(V(S9(kt), 4), V(FR + 4 * (k % NFR), 4), V(QF(2, t), 4),
                                                                 V(S9(kt), 4) if t else V(NM(2), 4)))

        def Y(self, h):
            vslot = slot_of(2 * (h >> 1) + 1) * SLOT
            u = h & 1
            for r in range(2):
                self.main.append(lambda r=r: a.mfma(V(LA(r), 4), V(ONES, 4), V(SS(r, 2 * u), 4), V(LA(r), 4)))
            for dt in range(8):
                k = len(self.items)

                def rd(sl, dt=dt):
                    a.ds_read("ds_read_b64_tr_b16", V(FR + 4 * sl, 2), V(AV + dt), off=vslot + u * 8192)
                    a.ds_read("ds_read_b64_tr_b16", V(FR + 4 * sl + 2, 2), V(AV + dt), off=vslot + u * 8192 + 4096)
                self.items.append((len(self.main), len(self.main) + 1, rd))
                for r in range(2):
                    self.main.append(lambda dt=dt, r=r, k=k: a.mfma(V(OA(r, dt), 4), V(FR + 4 * (k % NFR), 4), V(SS(r, 2 * u), 4), V(OA(r, dt), 4)))

        def Y9(self, s):
            vslot = slot_of(2 * s + 1) * SLOT
            self.main.append(lambda: a.mfma(V(LA(2), 4), V(ONES, 4), V(S9(0), 4), V(LA(2), 4)))
            for dt in range(8):
                k = len(self.items)

                def rd(sl, dt=dt):
                    a.valu("v_add_u32", V(A9 + (dt & 1)), S(sK9), V(AV + dt))
                    a.ds_read("ds_read_b64_tr_b16", V(FR + 4 * sl, 2), V(A9 + (dt & 1)), off=vslot)
                    a.ds_read("ds_read_b64_tr_b16", V(FR + 4 * sl + 2, 2), V(A9 + (dt & 1)), off=vslot + 4096)
                self.items.append((len(self.main), len(self.main), rd))
                self.main.append(lambda dt=dt, k=k: a.mfma(V(OA(2, dt), 4), V(FR + 4 * (k % NFR), 4), V(S9(0), 4), V(OA(2, dt), 4)))

        def exp(self, h, rel, dl):
            u = h & 1
            self.vx += [(rel, dl, f) for f in exp_ops([SS(0, 2 * u), SS(1, 2 * u)])]

        def mx(self, h, rel, dl):
            u = h & 1
            o0 = max_ops(SS(0, 2 * u), 8, T, True)
            o1 = max_ops(SS(1, 2 * u), 8, T + 1, True)
            for x, y in zip(o0, o1):
                self.vx += [(rel, dl, x), (rel, dl, y)]

        def chk(self, h):
            u = h & 1
            self.main.append(lambda: check([(SS(0, 2 * u), 8, 0, T), (SS(1, 2 * u), 8, 1, T + 1)], sThr, sLow))

        def emit(self):
            fs = frag_stream(self.items)
            interleave(self.main, [(fs, 2), (self.vx, 2), (self.dm, 1)], budget=4)

    def body(s, ninth, first=False):
        a.waitcnt(vm=8, lgkm=0)
        if "nobar" not in dbg:
            a.barrier()
        g = Seg()
        g.X(2 * s)
        if not first:
            g.exp(2 * s - 1, 0, len(g.main))
            n0 = len(g.main)
            g.Y(2 * s - 1)
            g.mx(2 * s, n0 + 3, len(g.main))
        else:
            g.mx(2 * s, len(g.main), len(g.main))
        g.chk(2 * s)
        n0 = len(g.main)
        g.X(2 * s + 1)
        if ninth:
            g.X9(s)
        g.exp(2 * s, n0, len(g.main))
        if ninth:
            g.vx += [(len(g.main), len(g.main), f) for f in max_ops(S9(0), 8, T + 2, True)]
            g.main.append(lambda: check([(S9(0), 8, 2, T + 2)], sThr9, sLow9))
        g.emit()
        a.waitcnt(vm=4, lgkm=0)
        if "nobar" not in dbg:
            a.barrier()
        g = Seg()
        g.Y(2 * s)
        g.mx(2 * s + 1, 0, len(g.main))
        if ninth:
            g.vx += [(0, len(g.main), f) for f in exp_ops([S9(0)])]
            g.Y9(s)
        g.dm = [(2 * k, len(g.main), f) for k, f in enumerate(tile_ops(True, slot_of(2 * s + 3)) + tile_ops(False, slot_of(2 * s + 4)))]
        g.chk(2 * s + 1)
        g.emit()

    def body2(s, first=False):
        L1, L2 = newlabel(), newlabel()
        a.flush()
        a.salu("s_cmp_lg_u32", None, S(sN9), s & 1)
        a.misc(f"s_cbranch_scc1 {L1}")
        body(s, "noninth" not in dbg, first)
        a.flush()
        a.misc(f"s_branch {L2}")
        a.label(L1)
        body(s, False, first)
        a.flush()
        a.label(L2)

    body2(0, True)
    body2(1)
    a.salu("s_mov_b32", S(sIt), 0)
    a.label(f"{name}_aloop")
    body2(2)
    body2(3)
    a.salu("s_add_u32", S(sIt), S(sIt), 1)
    a.salu("s_cmp_lt_u32", None, S(sIt), 3)
    a.misc(f"s_cbranch_scc1 {name}_aloop")
    g = Seg()
    g.exp(15, 0, 0)
    g.Y(15)
    g.emit()
    a.waitcnt(vm=0, lgkm=0)
    stamp()

    E = SS(0, 0)
    vL, vG, vI = E, E + 1, E + 2
    t0, t1, t2, t3 = E + 4, E + 5, E + 6, E + 7
    vSt = E + 8
    a.valu("v_mbcnt_lo_u32_b32", V(vL), -1, 0)
    a.valu("v_mbcnt_hi_u32_b32", V(vL), -1, V(vL))
    a.valu("v_lshrrev_b32", V(vG), 4, V(vL))
    a.valu("v_and_b32", V(vI), 15, V(vL))
    a.valu("v_lshlrev_b32", V(t0), 3, V(vG))
    a.valu("v_lshl_add_u32", V(vSt), V(vI), 8, V(t0))
    a.barrier()
    CB = 0
    PB = 4096
    a.valu("v_mov_b32", V(t2), V(NM(2)))
    a.valu("v_mov_b32", V(t3), V(LA(2)))
    a.salu("s_lshl_b32", S(sT2), S(sW), 7)
    a.valu("v_lshlrev_b32", V(t0), 3, V(vI))
    a.valu("v_add_u32", V(t1), S(sT2), V(t0))
    a.ds_write("ds_write_b64", V(t1), V(t2, 2), off=CB)
    a.waitcnt(lgkm=0)
    a.barrier()
    ml = FR
    for w in range(4):
        a.ds_read("ds_read_b64", V(ml + 2 * w, 2), V(t0), off=CB + w * 128)
    a.valu("v_min3_f32", V(t1), V(ml), V(ml + 2), V(ml + 4))
    a.valu("v_min_f32", V(t1), V(t1), V(ml + 6))
    a.valu("v_mov_b32", V(t2), 0)
    for w in range(4):
        a.valu("v_sub_f32", V(t3), V(t1), V(ml + 2 * w))
        a.valu("v_exp_f32", V(t3), V(t3))
        a.valu("v_fma_f32", V(t2), V(t3), V(ml + 2 * w + 1), V(t2))
    a.valu("v_sub_f32", V(t3), V(t1), V(NM(2)))
    a.valu("v_exp_f32", V(t3), V(t3))
    a.valu("v_rcp_f32", V(t2), V(t2))
    a.valu("v_mul_f32", V(t3), V(t3), V(t2))
    a.salu("s_lshl_b32", S(sT2), S(sW), 13)
    a.valu("v_lshlrev_b32", V(t0), 4, V(vL))
    a.valu("v_add_u32", V(t1), S(sT2), V(t0))
    for dt in range(8):
        o = OA(2, dt)
        for e in range(4):
            a.valu("v_mul_f32", V(o + e), V(o + e), V(t3))
        a.ds_write("ds_write_b128", V(t1), V(o, 4), off=PB + dt * 1024)
    for r in range(2):
        a.valu("v_rcp_f32", V(t2), V(LA(r)))
        a.salu("s_lshl_b32", S(sT2), S(sW), 13)
        a.salu("s_add_u32", S(sT2), S(sT2), r * 4096)
        for dt in range(8):
            o = OA(r, dt)
            for e in range(4):
                a.valu("v_mul_f32", V(o + e), V(o + e), V(t2))
            a.valu("v_cvt_pk_bf16_f32", V(o), V(o), V(o + 1))
            a.valu("v_cvt_pk_bf16_f32", V(o + 1), V(o + 2), V(o + 3))
            bstore("buffer_store_dwordx2", V(o, 2), V(vSt), S(sO, 4), S(sT2), off=dt * 32)
    a.waitcnt(lgkm=0)
    a.barrier()
    a.salu("s_lshl_b32", S(sT2), S(sW), 11)
    a.valu("v_add_u32", V(t1), S(sT2), V(t0))
    RB = OA(2, 0)
    for j in range(2):
        for w in range(4):
            a.ds_read("ds_read_b128", V(RB + (j * 4 + w) * 4, 4), V(t1), off=PB + w * 8192 + j * 1024)
    a.salu("s_lshl_b32", S(sT2), S(sW), 6)
    a.salu("s_add_u32", S(sT2), S(sT2), 8 * 4096)
    for j in range(2):
        b0 = RB + j * 16
        for e in range(4):
            a.valu("v_add_f32", V(b0 + e), V(b0 + e), V(b0 + 4 + e))
            a.valu("v_add_f32", V(b0 + 8 + e), V(b0 + 8 + e), V(b0 + 12 + e))
        for e in range(4):
            a.valu("v_add_f32", V(b0 + e), V(b0 + e), V(b0 + 8 + e))
        a.valu("v_cvt_pk_bf16_f32", V(b0), V(b0), V(b0 + 1))
        a.valu("v_cvt_pk_bf16_f32", V(b0 + 1), V(b0 + 2), V(b0 + 3))
        bstore("buffer_store_dwordx2", V(b0, 2), V(vSt), S(sO, 4), S(sT2), off=j * 32)
    if stamps:
        stamp()
        stamp(True)
        a.salu("s_add_u32", S(sX), "s12", 0x3000000)
        a.salu("s_addc_u32", S(sX + 1), "s13", 0)
        a.salu("s_mov_b32", S(sX + 2), 0x100000)
        a.salu("s_lshl_b32", S(sT2), "s2", 10)
        a.salu("s_lshl_b32", S(sT3), S(sW), 8)
        a.salu("s_add_u32", S(sT2), S(sT2), S(sT3))
        a.salu("s_mov_b64", "exec", 1)
        a.valu("v_mov_b32", V(t1), 0)
        for i in range(nst[0]):
            a.valu("v_mov_b32", V(t0), S(SB + 2 * i))
            a.bstore("buffer_store_dword", V(t0), V(t1), S(sX, 4), S(sT2), off=4 * i)
        for i in range(12):
            a.valu("v_mov_b32", V(t0), S(86 + i))
            a.bstore("buffer_store_dword", V(t0), V(t1), S(sX, 4), S(sT2), off=128 + 4 * i)
    a.label(f"{name}_done")
    a.misc("s_endpgm")
    return a
```

```python
from asmlib import Asm, V, S
from sched import interleave

WS_P = 0x1300000
STAGE = 34816
LDS_K2 = 4 * STAGE


def gen_k2(name, stamps=False):
    a = Asm()
    a.label(name)
    nst = [0]

    def stamp():
        if not stamps:
            return
        a.misc(f"s_memrealtime s[{60 + 2 * nst[0]}:{61 + 2 * nst[0]}]")
        a.waitcnt(lgkm=0)
        nst[0] += 1
    sO, sWO, sP = 16, 20, 24
    sW, sT0, sT1, sT2, sT3 = 28, 29, 30, 31, 32
    sKS, sNQ, sB, sBLK = 33, 34, 35, 36
    sDM0, sOr, sWr, sIt = 37, 38, 39, 40
    sO5g, sO5l, sOw = 41, 42, 43
    ACC = lambda nt, qt: (nt * 9 + qt) * 4
    BF = lambda p: 72 + 44 * p
    AF = lambda p: 72 + 44 * p + 36
    AO = 160
    AWo = 168
    DO = 176
    DW = 177
    T = 178
    vL, vG, vI = T, T + 1, T + 2
    t0, t1, t2, t3 = T + 4, T + 5, T + 6, T + 7

    a.salu("s_cmp_ge_u32", None, "s2", 256)
    a.misc(f"s_cbranch_scc1 {name}_done")
    a.misc("s_load_dwordx2 s[4:5], s[0:1], 32")
    a.misc("s_load_dwordx2 s[6:7], s[0:1], 72")
    a.misc("s_load_dwordx2 s[12:13], s[0:1], 96")
    a.misc("s_load_dwordx2 s[8:9], s[0:1], 88")
    a.misc("s_load_dwordx2 s[10:11], s[0:1], 80")
    a.valu("v_and_b32", V(vL), 63, "v0")
    a.valu("v_lshrrev_b32", V(T + 3), 6, "v0")
    a.valu("v_lshrrev_b32", V(vG), 4, V(vL))
    a.valu("v_and_b32", V(vI), 15, V(vL))
    a.valu("v_readfirstlane_b32", S(sW), V(T + 3))
    a.misc("s_waitcnt lgkmcnt(0)")
    a.salu("s_and_b32", S(sKS), "s2", 3)
    a.salu("s_lshr_b32", S(sBLK), "s2", 2)
    a.salu("s_and_b32", S(sBLK), S(sBLK), 1)
    a.salu("s_lshr_b32", S(sNQ), "s2", 3)
    a.salu("s_and_b32", S(sNQ), S(sNQ), 3)
    a.salu("s_lshr_b32", S(sB), "s2", 5)
    a.salu("s_cmp_eq_u32", None, S(sBLK), 0)
    a.salu("s_cselect_b32", S(sWO), "s4", "s6")
    a.salu("s_cselect_b32", S(sWO + 1), "s5", "s7")
    a.salu("s_mov_b32", S(sWO + 2), 4194304)
    a.salu("s_mov_b32", S(sWO + 3), "0x00020000")
    a.salu("s_mul_i32", S(sT0), S(sBLK), 9437184)
    a.salu("s_mul_i32", S(sT1), S(sB), 1179648)
    a.salu("s_add_u32", S(sT0), S(sT0), S(sT1))
    a.salu("s_add_u32", S(sO), "s12", S(sT0))
    a.salu("s_addc_u32", S(sO + 1), "s13", 0)
    a.salu("s_mov_b32", S(sO + 2), 1179648)
    a.salu("s_mov_b32", S(sO + 3), "0x00020000")
    sTile = 44
    a.salu("s_lshl_b32", S(sTile), S(sBLK), 3)
    a.salu("s_add_u32", S(sTile), S(sTile), S(sB))
    a.salu("s_lshl_b32", S(sTile), S(sTile), 2)
    a.salu("s_add_u32", S(sTile), S(sTile), S(sNQ))
    a.salu("s_mul_i32", S(sT0), S(sTile), 4 * 73728)
    a.salu("s_add_u32", S(sT0), S(sT0), WS_P)
    a.salu("s_add_u32", S(sP), "s12", S(sT0))
    a.salu("s_addc_u32", S(sP + 1), "s13", 0)
    a.salu("s_mov_b32", S(sP + 2), 4 * 73728)
    a.salu("s_mov_b32", S(sP + 3), "0x00020000")
    sD, sOut = 48, 52
    a.salu("s_mov_b32", S(sD), "s8")
    a.salu("s_mov_b32", S(sD + 1), "s9")
    a.salu("s_mov_b32", S(sD + 2), 256)
    a.salu("s_mov_b32", S(sD + 3), "0x00020000")
    a.salu("s_mov_b32", S(sOut), "s10")
    a.salu("s_mov_b32", S(sOut + 1), "s11")
    a.salu("s_mov_b32", S(sOut + 2), 2359296)
    a.salu("s_mov_b32", S(sOut + 3), "0x00020000")
    a.salu("s_lshl_b32", S(sDM0), S(sW), 10)
    a.salu("s_mul_i32", S(sOr), S(sKS), 8 * 36864)
    a.salu("s_lshl_b32", S(sWr), S(sKS), 20)
    a.salu("s_lshl_b32", S(sT0), S(sNQ), 8)
    a.salu("s_add_u32", S(sWr), S(sWr), S(sT0))
    a.salu("s_lshl_b32", S(sOw), S(sW), 11)
    a.salu("s_and_b32", S(sT0), S(sW), 1)
    a.salu("s_add_u32", S(sT0), S(sT0), 16)
    a.salu("s_lshl_b32", S(sO5g), S(sT0), 11)
    a.salu("s_lshl_b32", S(sO5l), S(sT0), 10)
    a.valu("v_lshrrev_b32", V(t0), 3, V(vL))
    a.salu("s_and_b32", S(sT0), S(sW), 1)
    a.salu("s_lshl_b32", S(sT0), S(sT0), 2)
    a.valu("v_add_u32", V(t1), S(sT0), V(vG))
    a.valu("v_and_b32", V(t2), 7, V(vL))
    a.valu("v_xor_b32", V(t1), V(t1), V(t2))
    a.valu("v_lshlrev_b32", V(t1), 4, V(t1))
    a.valu("v_lshl_add_u32", V(DO), V(t0), 8, V(t1))
    a.salu("s_lshl_b32", S(sT0), S(sW), 2)
    a.valu("v_add_u32", V(t0), S(sT0), V(vG))
    a.salu("s_lshr_b32", S(sT0), S(sW), 1)
    a.salu("s_lshl_b32", S(sT0), S(sT0), 2)
    a.valu("v_add_u32", V(t1), S(sT0), V(vG))
    a.valu("v_lshlrev_b32", V(t1), 1, V(t1))
    a.valu("v_xor_b32", V(t1), V(vI), V(t1))
    a.valu("v_lshlrev_b32", V(t1), 4, V(t1))
    a.valu("v_lshl_add_u32", V(DW), V(t0), 10, V(t1))
    a.valu("v_lshrrev_b32", V(t0), 1, V(vI))
    for e in range(2):
        a.valu("v_add_u32", V(t1), 4 * e, V(vG))
        a.valu("v_xor_b32", V(t1), V(t1), V(t0))
        a.valu("v_lshlrev_b32", V(t1), 4, V(t1))
        a.valu("v_lshl_add_u32", V(t1), V(vI), 7, V(t1))
        for st in range(4):
            a.valu("v_add_u32", V(AO + 2 * st + e), st * STAGE, V(t1))
    a.valu("v_lshrrev_b32", V(t0), 2, V(vI))
    a.valu("v_lshl_add_u32", V(t1), V(vG), 3, V(t0))
    a.valu("v_and_b32", V(t2), 1, V(vG))
    a.valu("v_lshl_add_u32", V(t2), V(t2), 2, V(t0))
    a.valu("v_and_b32", V(t3), 3, V(vI))
    a.valu("v_lshlrev_b32", V(t3), 3, V(t3))
    a.valu("v_lshl_add_u32", V(t3), V(t1), 8, V(t3))
    a.salu("s_lshl_b32", S(sT0), S(sW), 1)
    for nt in range(2):
        a.salu("s_add_u32", S(sT1), S(sT0), nt)
        a.valu("v_xor_b32", V(t0), S(sT1), V(t2))
        a.valu("v_lshl_add_u32", V(t0), V(t0), 5, V(t3))
        for st in range(4):
            a.valu("v_add_u32", V(AWo + 2 * st + nt), st * STAGE + 18432, V(t0))

    def issue_ops(st, half):
        lb = st * STAGE
        ops = []
        for i in range(5):
            def f(i=i):
                if i < 4:
                    a.salu("s_add_u32", "m0", S(sDM0), lb + i * 4096)
                    a.salu("s_add_u32", S(sT3), S(sOr), i * 8192 + half * 128)
                    a.salu("s_add_u32", S(sT3), S(sT3), S(sOw))
                else:
                    a.salu("s_add_u32", "m0", S(sO5l), lb)
                    a.salu("s_add_u32", S(sT3), S(sOr), S(sO5g))
                    if half:
                        a.salu("s_add_u32", S(sT3), S(sT3), 128)
                a.dma(V(DO), S(sO, 4), S(sT3))
                if i == 4 and half:
                    a.salu("s_add_u32", S(sOr), S(sOr), 36864)
            ops.append(f)
        for i in range(4):
            def f(i=i):
                a.salu("s_add_u32", "m0", S(sDM0), lb + 18432 + i * 4096)
                a.salu("s_add_u32", S(sT3), S(sWr), (16 * i) * 1024)
                a.dma(V(DW), S(sWO, 4), S(sT3))
                if i == 3:
                    a.salu("s_add_u32", S(sWr), S(sWr), 64 * 1024)
            ops.append(f)
        return ops

    def read_ops(st, e, p):
        ops = []
        for nt in range(2):
            ops.append(lambda nt=nt: a.ds_read("ds_read_b64_tr_b16", V(AF(p) + 4 * nt, 2), V(AWo + 2 * st + nt), off=e * 8192))
            ops.append(lambda nt=nt: a.ds_read("ds_read_b64_tr_b16", V(AF(p) + 4 * nt + 2, 2), V(AWo + 2 * st + nt), off=e * 8192 + 1024))
        for qt in range(9):
            ops.append(lambda qt=qt: a.ds_read("ds_read_b128", V(BF(p) + 4 * qt, 4), V(AO + 2 * st + e), off=qt * 2048))
        return ops

    def mf(p):
        m = []
        for qt in range(9):
            for nt in range(2):
                m.append(lambda qt=qt, nt=nt: a.mfma(V(ACC(nt, qt), 4), V(AF(p) + 4 * nt, 4), V(BF(p) + 4 * qt, 4), V(ACC(nt, qt), 4)))
        return m

    stamp()
    for st in range(3):
        for f in issue_ops(st, st & 1):
            f()
    for i in range(72):
        a.valu("v_mov_b32", V(i), 0)
    a.salu("s_mov_b32", S(sIt), 0)
    a.waitcnt(vm=9, lgkm=0)
    a.barrier()
    stamp()
    for f in read_ops(0, 0, 0):
        f()
    a.nop(4)
    a.label(f"{name}_loop")
    for kt in range(4):
        if kt == 1:
            a.salu("s_cmp_eq_u32", None, S(sIt), 3)
            a.salu("s_cselect_b32", S(sO + 2), 0, S(sO + 2))
            a.salu("s_cselect_b32", S(sWO + 2), 0, S(sWO + 2))
        dm = issue_ops((kt + 3) % 4, (kt + 3) & 1)
        interleave(mf(0), [[(0, 18, f) for f in read_ops(kt, 1, 1)], [(0, 18, f) for f in dm[:5]]], budget=2)
        interleave(mf(1), [[(0, 18, f) for f in read_ops((kt + 1) % 4, 0, 0)], [(0, 18, f) for f in dm[5:]]], budget=2)
        a.waitcnt(vm=9)
        a.barrier()
    a.salu("s_add_u32", S(sIt), S(sIt), 1)
    a.salu("s_cmp_lt_u32", None, S(sIt), 4)
    a.nop(4)
    a.misc(f"s_cbranch_scc1 {name}_loop")
    a.waitcnt(vm=0, lgkm=0)
    stamp()
    a.valu("v_lshlrev_b32", V(t0), 4, V(vL))
    a.salu("s_mul_i32", S(sT0), S(sW), 18432)
    a.salu("s_mul_i32", S(sT1), S(sKS), 73728)
    a.salu("s_add_u32", S(sT1), S(sT1), S(sT0))
    for j in range(18):
        if j % 4 == 0:
            a.salu("s_add_u32", S(sT2), S(sT1), j * 1024)
        a.bstore("buffer_store_dwordx4", V(4 * j, 4), V(t0), S(sP, 4), S(sT2), off=(j % 4) * 1024, flags="sc1")
    a.waitcnt(vm=0)
    a.barrier()
    a.salu("s_cmp_lg_u32", None, S(sW), 0)
    a.misc(f"s_cbranch_scc1 {name}_noatom")
    a.salu("s_mov_b64", "exec", 1)
    a.valu("v_mov_b32", V(t1), 1)
    a.salu("s_lshl_b32", S(sT2), S(sTile), 2)
    a.valu("v_mov_b32", V(t2), 0)
    a.misc(f"buffer_atomic_add {V(t1)}, {V(t2)}, {S(sD, 4)}, {S(sT2)} offen sc0 sc1")
    a.misc("s_waitcnt vmcnt(0)")
    a.ds_write("ds_write_b32", V(t2), V(t1))
    a.waitcnt(lgkm=0)
    a.salu("s_mov_b64", "exec", -1)
    a.label(f"{name}_noatom")
    a.barrier()
    a.valu("v_mov_b32", V(t2), 0)
    a.ds_read("ds_read_b32", V(t1), V(t2))
    a.valu("v_readfirstlane_b32", S(sT2), V(t1))
    a.nop(3)
    a.salu("s_and_b32", S(sT2), S(sT2), 3)
    a.salu("s_cmp_lg_u32", None, S(sT2), 3)
    a.misc(f"s_cbranch_scc1 {name}_fin")
    LB = [72, 190]
    assert T + 8 <= 190

    def ld(rnd):
        a.salu("s_add_u32", S(sT2), S(sKS), rnd + 1)
        a.salu("s_and_b32", S(sT2), S(sT2), 3)
        a.salu("s_mul_i32", S(sT2), S(sT2), 73728)
        a.salu("s_add_u32", S(sT2), S(sT2), S(sT0))
        n = 18 if LB[rnd & 1] + 72 <= 256 else 16
        for j in range(18):
            if j % 4 == 0:
                a.salu("s_add_u32", S(sT3), S(sT2), j * 1024)
            dst = LB[rnd & 1] + 4 * j
            if dst + 4 > 256:
                dst = 144 + 4 * (j - 16)
            a.bload("buffer_load_dwordx4", V(dst, 4), V(t0), S(sP, 4), S(sT3), off=(j % 4) * 1024, flags="sc1")

    def add(rnd):
        for j in range(18):
            src = LB[rnd & 1] + 4 * j
            if src + 4 > 256:
                src = 144 + 4 * (j - 16)
            for e in range(4):
                a.valu("v_add_f32", V(4 * j + e), V(4 * j + e), V(src + e))

    ld(0)
    ld(1)
    add(0)
    ld(2)
    add(1)
    add(2)
    a.valu("v_lshlrev_b32", V(t1), 3, V(vG))
    a.valu("v_lshl_add_u32", V(t1), V(vI), 11, V(t1))
    a.salu("s_mul_i32", S(sT0), S(sB), 144 * 2048)
    a.salu("s_lshl_b32", S(sT1), S(sBLK), 10)
    a.salu("s_add_u32", S(sT0), S(sT0), S(sT1))
    a.salu("s_lshl_b32", S(sT1), S(sNQ), 8)
    a.salu("s_add_u32", S(sT0), S(sT0), S(sT1))
    a.salu("s_lshl_b32", S(sT1), S(sW), 6)
    a.salu("s_add_u32", S(sT0), S(sT0), S(sT1))
    for qt in range(9):
        a.salu("s_add_u32", S(sT1), S(sT0), qt * 16 * 2048)
        for nt in range(2):
            o = ACC(nt, qt)
            a.valu("v_cvt_pk_bf16_f32", V(o), V(o), V(o + 1))
            a.valu("v_cvt_pk_bf16_f32", V(o + 1), V(o + 2), V(o + 3))
            a.bstore("buffer_store_dwordx2", V(o, 2), V(t1), S(sOut, 4), S(sT1), off=nt * 32)
    a.label(f"{name}_fin")
    if stamps:
        a.waitcnt(vm=0)
        stamp()
        a.salu("s_add_u32", S(sO), "s12", 0x3100000)
        a.salu("s_addc_u32", S(sO + 1), "s13", 0)
        a.salu("s_mov_b32", S(sO + 2), 0x100000)
        a.salu("s_lshl_b32", S(sT2), "s2", 10)
        a.salu("s_lshl_b32", S(sT3), S(sW), 8)
        a.salu("s_add_u32", S(sT2), S(sT2), S(sT3))
        a.salu("s_mov_b64", "exec", 1)
        a.valu("v_mov_b32", V(t1), 0)
        for i in range(nst[0]):
            a.valu("v_mov_b32", V(t0), S(60 + 2 * i))
            a.bstore("buffer_store_dword", V(t0), V(t1), S(sO, 4), S(sT2), off=4 * i)
    a.label(f"{name}_done")
    a.misc("s_endpgm")
    return a


def gen_k3(name, stamps=False):
    a = Asm()
    a.label(name)
    if stamps:
        a.misc("s_memrealtime s[60:61]")
    a.salu("s_cmp_ge_u32", None, "s2", 576)
    a.misc(f"s_cbranch_scc1 {name}_done")
    a.misc("s_load_dwordx2 s[4:5], s[0:1], 80")
    a.misc("s_load_dwordx2 s[12:13], s[0:1], 96")
    a.salu("s_lshl_b32", "s3", "s2", 8)
    a.valu("v_add_u32", "v1", "s3", "v0")
    a.valu("v_lshrrev_b32", "v2", 7, "v1")
    a.valu("v_and_b32", "v3", 127, "v1")
    a.valu("v_lshrrev_b32", "v4", 6, "v3")
    a.valu("v_and_b32", "v5", 63, "v3")
    a.misc("s_waitcnt lgkmcnt(0)")
    a.salu("s_add_u32", "s8", "s12", WS_P)
    a.salu("s_addc_u32", "s9", "s13", 0)
    a.salu("s_mov_b32", "s10", 18874368)
    a.salu("s_mov_b32", "s11", "0x00020000")
    a.salu("s_mov_b32", "s16", "s4")
    a.salu("s_mov_b32", "s17", "s5")
    a.salu("s_mov_b32", "s18", 2359296)
    a.salu("s_mov_b32", "s19", "0x00020000")
    a.salu("s_mov_b32", "s20", 1152)
    a.valu("v_mul_lo_u32", "v6", "v4", "s20")
    a.valu("v_add_u32", "v6", "v6", "v2")
    a.valu("v_lshlrev_b32", "v7", 5, "v5")
    a.valu("v_lshl_add_u32", "v6", "v6", 11, "v7")
    a.valu("v_lshlrev_b32", "v8", 4, "v1")
    for ks in range(4):
        a.salu("s_mov_b32", S(21 + ks), ks * 2 * 1152 * 2048)
    for ks in range(4):
        a.bload("buffer_load_dwordx4", V(16 + ks * 8, 4), "v6", "s[8:11]", S(21 + ks))
        a.bload("buffer_load_dwordx4", V(20 + ks * 8, 4), "v6", "s[8:11]", S(21 + ks), off=16)
    for e in range(8):
        a.valu("v_add_f32", V(16 + e), V(16 + e), V(24 + e))
    for e in range(8):
        a.valu("v_add_f32", V(32 + e), V(32 + e), V(40 + e))
    for e in range(8):
        a.valu("v_add_f32", V(16 + e), V(16 + e), V(32 + e))
    for e in range(4):
        a.valu("v_cvt_pk_bf16_f32", V(48 + e), V(16 + 2 * e), V(17 + 2 * e))
    a.bstore("buffer_store_dwordx4", "v[48:51]", "v8", "s[16:19]", "0")
    if stamps:
        a.waitcnt(vm=0)
        a.misc("s_memrealtime s[62:63]")
        a.misc("s_waitcnt lgkmcnt(0)")
        a.salu("s_add_u32", "s8", "s12", 0x3200000)
        a.salu("s_addc_u32", "s9", "s13", 0)
        a.salu("s_mov_b32", "s10", 0x100000)
        a.salu("s_lshl_b32", "s20", "s2", 10)
        a.salu("s_mov_b64", "exec", 1)
        a.valu("v_mov_b32", "v1", 0)
        a.valu("v_mov_b32", "v2", "s60")
        a.valu("v_mov_b32", "v3", "s62")
        a.bstore("buffer_store_dwordx2", "v[2:3]", "v1", "s[8:11]", "s20")
    a.label(f"{name}_done")
    a.misc("s_endpgm")
    return a
```

```python
def interleave(main, streams, budget=2):
    sts, caps = [], []
    for s in streams:
        if isinstance(s, tuple):
            sts.append(s[0])
            caps.append(s[1])
        else:
            sts.append(s)
            caps.append(10 ** 9)
    ptr = [0] * len(sts)
    n = len(main)
    for j in range(n + 1):
        used = [0] * len(sts)
        for si, st in enumerate(sts):
            last = -1
            for k in range(ptr[si], len(st)):
                if st[k][1] <= j:
                    last = k
            while ptr[si] <= last:
                st[ptr[si]][2]()
                ptr[si] += 1
                used[si] += 1
        left = budget if j < n else 10 ** 9
        progress = True
        while left > 0 and progress:
            progress = False
            for si, st in enumerate(sts):
                if left <= 0:
                    break
                if ptr[si] < len(st) and st[ptr[si]][0] <= j and (used[si] < caps[si] or j == n):
                    st[ptr[si]][2]()
                    ptr[si] += 1
                    used[si] += 1
                    left -= 1
                    progress = True
        if j < n:
            main[j]()
    for si, st in enumerate(sts):
        assert ptr[si] == len(st), (si, ptr[si], len(st))
```

```python
import sys
sys.path.insert(0, "gen")
import importlib
import k1, k2
NAME = "concat_heads__mha_block_cached__mha_block_cached__near_ridge"
def desc(name, nv, ns=102):
    acc = (nv + 3)//4*4
    return f""".amdhsa_kernel {name}
  .amdhsa_next_free_vgpr {nv}
  .amdhsa_next_free_sgpr {ns}
  .amdhsa_accum_offset {acc}
  .amdhsa_group_segment_fixed_size 0
  .amdhsa_kernarg_size 104
  .amdhsa_user_sgpr_count 2
  .amdhsa_user_sgpr_kernarg_segment_ptr 1
  .amdhsa_system_sgpr_workgroup_id_x 1
.end_amdhsa_kernel
"""
DBG = ()
def build(out, stamps=False):
    ks = [("attn_kernel", (lambda n: k1.gen_k1(n, stamps in ("1", "3"), dbg=DBG)), 512, k1.LDS_K1),
          ("oproj_kernel", (lambda n: k2.gen_k2(n, stamps in ("2", "3"))), 256, k2.LDS_K2),
          ]
    hdr = open(f"cdna_kernels/{NAME}.s.ref").read().split("\n")
    head = [l for l in hdr if l.startswith(";") and "@launch" not in l and "Override launch" not in l and "grid=ceil" not in l]
    txt = "\n".join(head) + "\n"
    for n, g, grid, lds in ks:
        txt += f"; @launch kernel={n} grid=({grid},1,1) block=(256,1,1) lds={lds}\n"
    txt += '.amdgcn_target "amdgcn-amd-amdhsa--gfx950"\n.text\n'
    descs = ""
    for n, g, grid, lds in ks:
        a = g(n)
        txt += f".globl {n}\n.p2align 8\n.type {n},@function\n" + a.text()
        print(n, "instrs", a.ninstr, "maxv", a.maxv)
        descs += ".p2align 6\n" + desc(n, a.maxv + 1)
    txt += '.section .rodata,"a"\n' + descs
    open(out, "w").write(txt)
if __name__ == "__main__":
    DBG = tuple(sys.argv[3:])
    build(sys.argv[1] if len(sys.argv) > 1 else f"cdna_kernels/{NAME}.s", sys.argv[2] if len(sys.argv) > 2 else None)
```

```python
import re


def V(a, n=1):
    return f"v{a}" if n == 1 else f"v[{a}:{a + n - 1}]"


def A(a, n=1):
    return f"a{a}" if n == 1 else f"a[{a}:{a + n - 1}]"


def S(a, n=1):
    return f"s{a}" if n == 1 else f"s[{a}:{a + n - 1}]"


_RE1 = re.compile(r"^-?\|?([vsa])(\d+)\|?$")
_RE2 = re.compile(r"^-?([vsa])\[(\d+):(\d+)\]$")


def regs_of(op):
    if not isinstance(op, str):
        return set()
    op = op.strip()
    m = _RE1.match(op)
    if m:
        return {(m.group(1), int(m.group(2)))}
    m = _RE2.match(op)
    if m:
        return {(m.group(1), i) for i in range(int(m.group(2)), int(m.group(3)) + 1)}
    if op == "m0":
        return {("m0", 0)}
    if op == "vcc":
        return {("vcc", 0)}
    if op == "exec":
        return {("exec", 0)}
    return set()


TRANS = ("v_exp_f32", "v_log_f32", "v_rcp_f32", "v_rsq_f32", "v_sqrt_f32", "v_sin_f32", "v_cos_f32")


class Ins:
    __slots__ = ("kind", "w", "r", "name", "pos", "c", "d", "ab", "wide")

    def __init__(self, kind, name, w, r):
        self.kind = kind
        self.name = name
        self.w = w
        self.r = r
        self.pos = 0
        self.c = set()
        self.d = set()
        self.ab = set()
        self.wide = False


class Asm:
    def __init__(self):
        self.lines = []
        self.hist = []
        self.pos = 0
        self.lgkm = []
        self.vm = []
        self.ninstr = 0
        self.maxv = 0
        self.maxa = -1

    def raw(self, text):
        self.lines.append(text)

    def comment(self, text):
        self.lines.append("    ; " + text)

    def label(self, name):
        self.lines.append(name + ":")

    def _need(self, I):
        need = 0
        for P in reversed(self.hist):
            dist = self.pos - P.pos - 1
            if dist >= 12:
                break
            req = 0
            pw = P.w
            if P.kind == "mfma":
                if I.kind == "mfma":
                    if I.c & P.d:
                        req = max(req, 0 if I.c == P.d else 6)
                    if I.ab & P.d:
                        req = max(req, 8)
                    if (I.d & P.d) and not (I.c == P.d):
                        req = max(req, 6)
                else:
                    if (I.r | I.w) & P.d:
                        req = max(req, 8)
                    if I.kind == "valu" and (I.w & P.c):
                        req = max(req, 3)
            elif P.kind == "valu":
                vw = {x for x in pw if x[0] in ("v", "a")}
                sw = {x for x in pw if x[0] in ("s", "vcc")}
                if I.kind == "mfma" and (I.r & vw):
                    req = max(req, 2)
                if I.kind == "valu":
                    if P.name in TRANS and I.name not in TRANS and (I.r & vw):
                        req = max(req, 1)
                    if I.name.startswith("v_permlane") and ((I.r | I.w) & vw):
                        req = max(req, 2)
                    if I.name.startswith("v_readfirstlane") or I.name.startswith("v_readlane"):
                        if I.r & vw:
                            req = max(req, 1)
                    if I.r & sw:
                        req = max(req, 2)
                if I.kind in ("vmem", "dma") and (I.r & sw):
                    req = max(req, 5)
                if I.kind == "salu" and (I.r & sw):
                    req = max(req, 1)
            elif P.kind == "salu":
                if ("m0", 0) in pw and I.kind == "dma":
                    req = max(req, 1)
            elif P.kind == "vmem":
                if P.wide and (I.w & P.r):
                    req = max(req, 2)
            need = max(need, req - dist)
        return need

    def _waits(self, I):
        regs = I.r | I.w
        idx = -1
        for i, d in enumerate(self.lgkm):
            if d & regs:
                idx = i
        lg = None
        if idx >= 0:
            lg = len(self.lgkm) - 1 - idx
        idx = -1
        for i, d in enumerate(self.vm):
            if d & regs:
                idx = i
        vmn = None
        if idx >= 0:
            vmn = len(self.vm) - 1 - idx
        if lg is not None or vmn is not None:
            self.waitcnt(vm=vmn, lgkm=lg)

    def waitcnt(self, vm=None, lgkm=None):
        parts = []
        if vm is not None:
            vm = min(vm, 63)
            parts.append(f"vmcnt({vm})")
            if len(self.vm) > vm:
                self.vm = self.vm[len(self.vm) - vm:] if vm > 0 else []
        if lgkm is not None:
            lgkm = min(lgkm, 15)
            parts.append(f"lgkmcnt({lgkm})")
            if len(self.lgkm) > lgkm:
                self.lgkm = self.lgkm[len(self.lgkm) - lgkm:] if lgkm > 0 else []
        I = Ins("misc", "s_waitcnt", set(), set())
        self._push(I, "s_waitcnt " + " ".join(parts))

    def _push(self, I, text, states=1):
        I.pos = self.pos
        self.pos += states
        self.hist.append(I)
        if len(self.hist) > 40:
            self.hist = self.hist[-30:]
        self.lines.append("    " + text)
        self.ninstr += 1
        for x in I.w | I.r:
            if x[0] == "v":
                self.maxv = max(self.maxv, x[1])
            if x[0] == "a":
                self.maxa = max(self.maxa, x[1])

    def nop(self, n):
        while n > 0:
            k = min(n, 16)
            I = Ins("misc", "s_nop", set(), set())
            self._push(I, f"s_nop {k - 1}", states=k)
            n -= k

    def emit(self, I, text):
        self._waits(I)
        n = self._need(I)
        if n > 0:
            self.nop(n)
        self._push(I, text)

    def flush(self):
        self.waitcnt(lgkm=0)
        self.nop(10)

    def valu(self, name, dst, *srcs, mods=""):
        w = set()
        for d in (dst if isinstance(dst, (list, tuple)) else [dst]):
            w |= regs_of(d)
        r = set()
        for s in srcs:
            r |= regs_of(s)
        if name.startswith("v_permlane") or name.startswith("v_fmac"):
            r |= w
            if name.startswith("v_permlane"):
                w |= r
        if name.startswith("v_cndmask") and len(srcs) == 2:
            r |= {("vcc", 0)}
        I = Ins("valu", name, w, r)
        dsts = ", ".join(dst) if isinstance(dst, (list, tuple)) else dst
        ops = ", ".join([dsts] + [str(s) for s in srcs])
        self.emit(I, f"{name} {ops}{(' ' + mods) if mods else ''}")

    def salu(self, name, dst, *srcs):
        w = regs_of(dst) if dst is not None else set()
        r = set()
        for s in srcs:
            r |= regs_of(s)
        I = Ins("salu", name, w, r)
        ops = ", ".join(([dst] if dst is not None else []) + [str(s) for s in srcs])
        self.emit(I, f"{name} {ops}")

    def mfma(self, d, a, b, c):
        I = Ins("mfma", "mfma", regs_of(d), regs_of(a) | regs_of(b) | regs_of(c))
        I.c = regs_of(c)
        I.d = regs_of(d)
        I.ab = regs_of(a) | regs_of(b)
        self.emit(I, f"v_mfma_f32_16x16x32_bf16 {d}, {a}, {b}, {c}")

    def ds_read(self, name, dst, addr, off=0):
        I = Ins("ds", name, regs_of(dst), regs_of(addr))
        assert 0 <= off < 65536, off
        self.emit(I, f"{name} {dst}, {addr}" + (f" offset:{off}" if off else ""))
        self.lgkm.append(regs_of(dst))

    def ds_write(self, name, addr, data, off=0):
        I = Ins("ds", name, set(), regs_of(addr) | regs_of(data))
        assert 0 <= off < 65536, off
        self.emit(I, f"{name} {addr}, {data}" + (f" offset:{off}" if off else ""))
        self.lgkm.append(set())

    def bload(self, name, dst, voff, srd, soff, off=0, flags=""):
        I = Ins("vmem", name, regs_of(dst), regs_of(voff) | regs_of(srd) | regs_of(soff))
        assert 0 <= off < 4096, off
        self.emit(I, f"{name} {dst}, {voff}, {srd}, {soff} offen" + (f" offset:{off}" if off else "") + (" " + flags if flags else ""))
        self.vm.append(regs_of(dst))

    def bstore(self, name, data, voff, srd, soff, off=0, flags=""):
        I = Ins("vmem", name, set(), regs_of(data) | regs_of(voff) | regs_of(srd) | regs_of(soff))
        I.wide = name.endswith("x4") or name.endswith("x3")
        assert 0 <= off < 4096, off
        self.emit(I, f"{name} {data}, {voff}, {srd}, {soff} offen" + (f" offset:{off}" if off else "") + (" " + flags if flags else ""))
        self.vm.append(set())

    def dma(self, voff, srd, soff, flags=""):
        I = Ins("dma", "dma", set(), regs_of(voff) | regs_of(srd) | regs_of(soff) | {("m0", 0)})
        self.emit(I, f"buffer_load_dwordx4 {voff}, {srd}, {soff} offen" + (" " + flags if flags else "") + " lds")
        self.vm.append(set())

    def misc(self, text):
        I = Ins("misc", text.split()[0], set(), set())
        self.emit(I, text)

    def barrier(self):
        self.misc("s_barrier")

    def text(self):
        return "\n".join(self.lines) + "\n"
```

```python
import struct
from asmlib import Asm, V, S, A
from sched import interleave

RING = 16384
SLOT = 16384
WB = 0
XB = 24576
XSZ = 18432
LDS_K1 = 81920
THR = 8.0
BLOCK = 128

CSCALE = 1.4426950408889634 / (128.0 ** 0.5)


def f32bits(x):
    return struct.unpack("<I", struct.pack("<f", x))[0]


def OA(r, dt):
    return (r * 8 + dt) * 4


def QF(r, t):
    return 160 + (r * 4 + t) * 4


def SS(r, kt):
    return (r * 4 + kt) * 4


S9 = 64


def NM(r):
    return 72 + 4 * r


def LA(r):
    return 92 + 4 * r


ONES = 112
DK0, DK1, DV = 116, 117, 118
T = 120
FR = 144
NFR = 16
AK = 208
AV = 216

sX, sWQ, sK, sV, sO = 16, 20, 24, 28, 32
sW = 36
sC = 37
sT0 = 38
sT1 = 39
sWQoff = 48
sDM0 = 49
sT2 = 51
sT3 = 52
sH = 53
sIt, sKg, sVg = 56, 57, 58
sThr, sLow = 59, 60


def slot_of(tile):
    return (tile + 3) % 4


def gen_k1(name, stamps=False, nt=True, dbg=()):
    a = Asm()
    a.vmn = 0
    nst = [0]
    SB = 70

    def stamp(real=False):
        if not stamps:
            return
        a.waitcnt(lgkm=0)
        a.misc(f"{'s_memrealtime' if real else 's_memtime'} s[{SB + 2 * nst[0]}:{SB + 1 + 2 * nst[0]}]")
        a.misc("s_waitcnt lgkmcnt(0)")
        nst[0] += 1

    def seg(k):
        if not stamps or "seg" not in dbg:
            return
        a.misc("s_memtime s[98:99]")
        a.waitcnt(lgkm=0)
        a.salu("s_sub_u32", "s100", "s98", "s101")
        a.salu("s_add_u32", S(86 + k), S(86 + k), "s100")
        a.salu("s_mov_b32", "s101", "s98")

    a.label(name)

    def dma(voff, srd, soff, flags=""):
        a.dma(voff, srd, soff, flags=flags)
        a.vmn += 1

    def bload(*x, **k):
        a.bload(*x, **k)
        a.vmn += 1

    def bstore(*x, **k):
        a.bstore(*x, **k)
        a.vmn += 1

    KVF = "nt" if nt else ""

    a.salu("s_cmp_ge_u32", None, "s2", 512)
    a.misc(f"s_cbranch_scc1 {name}_done")
    a.misc("s_load_dwordx8 s[4:11], s[0:1], 0")
    a.misc("s_load_dwordx8 s[40:47], s[0:1], 40")
    a.misc("s_load_dwordx2 s[12:13], s[0:1], 96")
    vL, vG, vI = 10, 11, 12
    t0, t1, t2, t3, t4, t5 = 14, 15, 16, 17, 18, 19
    a.valu("v_and_b32", V(vL), 63, "v0")
    a.valu("v_lshrrev_b32", V(t0), 6, "v0")
    a.valu("v_lshrrev_b32", V(vG), 4, V(vL))
    a.valu("v_and_b32", V(vI), 15, V(vL))
    a.valu("v_readfirstlane_b32", S(sW), V(t0))
    a.misc("s_waitcnt lgkmcnt(0)")
    a.salu("s_lshr_b32", S(sT0), "s2", 2)
    a.salu("s_and_b32", S(sT0), S(sT0), 1)
    a.salu("s_cmp_eq_u32", None, S(sT0), 0)
    for i in range(8):
        a.salu("s_cselect_b32", S(4 + i), S(4 + i), S(40 + i))
    a.salu("s_lshr_b32", S(sT1), "s2", 7)
    a.salu("s_and_b32", S(sT2), "s2", 2)
    a.salu("s_lshl_b32", S(sT2), S(sT2), 1)
    a.salu("s_add_u32", S(sT1), S(sT1), S(sT2))
    a.salu("s_lshr_b32", S(sH), "s2", 3)
    a.salu("s_and_b32", S(sH), S(sH), 15)
    a.salu("s_and_b32", S(sT2), "s2", 1)
    a.salu("s_lshl_b32", S(sT2), S(sT2), 4)
    a.salu("s_add_u32", S(sH), S(sH), S(sT2))
    a.salu("s_mul_i32", S(sT2), S(sT1), 147456)
    a.salu("s_add_u32", S(sX), "s4", S(sT2))
    a.salu("s_addc_u32", S(sX + 1), "s5", 0)
    a.salu("s_mov_b32", S(sX + 2), 147456)
    a.salu("s_mov_b32", S(sX + 3), "0x00020000")
    a.salu("s_mov_b32", S(sWQ), "s10")
    a.salu("s_mov_b32", S(sWQ + 1), "s11")
    a.salu("s_mov_b32", S(sWQ + 2), 4194304)
    a.salu("s_mov_b32", S(sWQ + 3), "0x00020000")
    a.salu("s_lshl_b32", S(sT3), S(sT1), 5)
    a.salu("s_add_u32", S(sT3), S(sT3), S(sH))
    a.salu("s_lshl_b32", S(sT2), S(sT3), 17)
    a.salu("s_add_u32", S(sK), "s6", S(sT2))
    a.salu("s_addc_u32", S(sK + 1), "s7", 0)
    a.salu("s_mov_b32", S(sK + 2), 131072)
    a.salu("s_mov_b32", S(sK + 3), "0x00020000")
    a.salu("s_add_u32", S(sV), "s8", S(sT2))
    a.salu("s_addc_u32", S(sV + 1), "s9", 0)
    a.salu("s_mov_b32", S(sV + 2), 131072)
    a.salu("s_mov_b32", S(sV + 3), "0x00020000")
    a.salu("s_mul_i32", S(sT2), S(sT0), 9437184)
    a.salu("s_mul_i32", S(sT3), S(sT3), 36864)
    a.salu("s_add_u32", S(sT2), S(sT2), S(sT3))
    a.salu("s_add_u32", S(sO), "s12", S(sT2))
    a.salu("s_addc_u32", S(sO + 1), "s13", 0)
    a.salu("s_mov_b32", S(sO + 2), 36864)
    a.salu("s_mov_b32", S(sO + 3), "0x00020000")
    a.salu("s_lshl_b32", S(sWQoff), S(sH), 8)
    a.salu("s_mov_b32", S(sC), hex(f32bits(CSCALE)))
    a.salu("s_lshl_b32", S(sDM0), S(sW), 10)

    a.salu("s_lshl_b32", S(sT2), S(sW), 2)
    a.valu("v_add_u32", V(t0), S(sT2), V(vG))
    a.valu("v_xor_b32", V(t1), V(vI), V(t0))
    a.valu("v_lshlrev_b32", V(t1), 4, V(t1))
    a.valu("v_lshl_add_u32", V(DK0), V(t0), 8, V(t1))
    a.valu("v_add_u32", V(t2), 8, V(t0))
    a.valu("v_xor_b32", V(t1), V(vI), V(t2))
    a.valu("v_lshlrev_b32", V(t1), 4, V(t1))
    a.valu("v_lshl_add_u32", V(DK1), V(t2), 8, V(t1))
    a.valu("v_lshlrev_b32", V(t1), 1, V(t0))
    a.valu("v_xor_b32", V(t1), V(vI), V(t1))
    a.valu("v_lshlrev_b32", V(t1), 4, V(t1))
    a.valu("v_lshl_add_u32", V(DV), V(t0), 8, V(t1))

    def tile_ops(isv, slot):
        ops = []
        if "nodma" in dbg:
            return ops
        g = sVg if isv else sKg
        for i in range(8):
            def f(i=i):
                a.salu("s_add_u32", "m0", S(sDM0), RING + slot * SLOT + i * 2048)
                if isv:
                    dma(V(DV), S(sV, 4), S(g), KVF)
                    a.salu("s_add_u32", S(g), S(g), 2048)
                else:
                    dma(V(DK1 if i & 1 else DK0), S(sK, 4), S(g), KVF)
                    if i & 1:
                        a.salu("s_add_u32", S(g), S(g), 4096)
            ops.append(f)
        return ops

    def run(ops):
        for f in ops:
            f()

    a.salu("s_mov_b32", S(sKg), 0)
    a.salu("s_mov_b32", S(sVg), 0)

    sW2, sWH = 61, 62
    a.salu("s_lshl_b32", S(sW2), S(sW), 1)
    a.salu("s_lshl_b32", S(sWH), S(sW), 13)
    for t in range(4):
        a.salu("s_xor_b32", S(sT2), S(sW2), t)
        a.salu("s_lshl_b32", S(sT2), S(sT2), 2)
        a.valu("v_add_u32", V(t0), S(sT2), V(vG))
        a.valu("v_xor_b32", V(t0), V(t0), V(vI))
        a.valu("v_lshlrev_b32", V(t0), 4, V(t0))
        a.valu("v_lshl_add_u32", V(t0), V(vI), 8, V(t0))
        a.valu("v_add_u32", V(t0), RING, V(t0))
        a.valu("v_add_u32", V(AK + t), S(sWH), V(t0))
        a.valu("v_subrev_u32", V(AK + 4 + t), S(sWH), V(t0))
    a.valu("v_lshrrev_b32", V(t0), 2, V(vI))
    a.valu("v_lshl_add_u32", V(t0), V(vG), 2, V(t0))
    a.valu("v_and_b32", V(t1), 7, V(t0))
    a.valu("v_and_b32", V(t2), 3, V(vI))
    a.valu("v_lshlrev_b32", V(t2), 3, V(t2))
    a.valu("v_lshl_add_u32", V(t2), V(t0), 8, V(t2))
    a.valu("v_add_u32", V(t2), RING, V(t2))
    for dt in range(8):
        a.valu("v_xor_b32", V(t0), dt, V(t1))
        a.valu("v_lshl_add_u32", V(t0), V(t0), 5, V(t2))
        a.valu("v_add_u32", V(AV + dt), S(sWH), V(t0))
        a.valu("v_subrev_u32", V(AV + 8 + dt), S(sWH), V(t0))

    def QA(Tt, r):
        k = Tt * 4 + r
        return 4 * k if k < 28 else 144 + 4 * (k - 28)

    def QA9(j):
        return 160 + 4 * j

    AFs = lambda p: 52 * p
    XFs = lambda p: 52 * p + 32
    WS = 104
    AW = 176
    WW = 184
    XA = 186
    WQA = 190
    DXv = 191
    a.valu("v_lshrrev_b32", V(t0), 2, V(vI))
    a.valu("v_lshl_add_u32", V(t1), V(vG), 3, V(t0))
    a.valu("v_and_b32", V(t2), 3, V(vI))
    a.valu("v_lshlrev_b32", V(t2), 4, V(t2))
    a.valu("v_lshl_add_u32", V(t2), V(t1), 8, V(t2))
    a.valu("v_and_b32", V(t3), 1, V(t0))
    a.valu("v_lshrrev_b32", V(t4), 3, V(vI))
    a.valu("v_and_b32", V(t5), 1, V(vG))
    a.valu("v_lshl_add_u32", V(t4), V(t5), 1, V(t4))
    for Tt in range(8):
        t, o = Tt >> 1, Tt & 1
        a.salu("s_xor_b32", S(sT2), S(sW2), t)
        a.valu("v_xor_b32", V(t0), S(sT2), V(t4))
        a.valu("v_lshl_add_u32", V(t0), V(t0), 6, V(t2))
        a.valu("v_xor_b32", V(t1), o, V(t3))
        a.valu("v_lshl_add_u32", V(AW + Tt), V(t1), 3, V(t0))
    a.salu("s_lshl_b32", S(sT2), S(sW), 4)
    a.valu("v_lshl_add_u32", V(t0), V(vG), 1, S(sT2))
    a.valu("v_lshlrev_b32", V(t1), 2, V(t5))
    a.valu("v_xor_b32", V(t1), V(t1), V(vI))
    a.valu("v_lshlrev_b32", V(t1), 4, V(t1))
    a.valu("v_lshl_add_u32", V(WW), V(t0), 8, V(t1))
    a.valu("v_xor_b32", V(t2), 128, V(WW))
    a.valu("v_add_u32", V(WW + 1), 2048, V(t2))
    a.valu("v_lshlrev_b32", V(t1), 4, V(vI))
    a.valu("v_lshl_add_u32", V(WQA), V(t0), 13, V(t1))
    a.valu("v_lshrrev_b32", V(t0), 1, V(vI))
    a.salu("s_lshl_b32", S(sT2), S(sW), 13)
    for e in range(2):
        a.valu("v_add_u32", V(t1), 4 * e, V(vG))
        a.valu("v_xor_b32", V(t1), V(t1), V(t0))
        a.valu("v_lshlrev_b32", V(t1), 4, V(t1))
        a.valu("v_lshl_add_u32", V(t1), V(vI), 7, V(t1))
        a.valu("v_add_u32", V(t1), XB, V(t1))
        a.valu("v_add_u32", V(XA + e), S(sT2), V(t1))
        a.valu("v_add_u32", V(XA + 2 + e), 8 * 2048, V(t1))
    a.valu("v_lshrrev_b32", V(t0), 3, V(vL))
    a.salu("s_lshl_b32", S(sT2), S(sW), 2)
    a.valu("v_add_u32", V(t1), S(sT2), V(vG))
    a.valu("v_and_b32", V(t2), 7, V(vL))
    a.valu("v_xor_b32", V(t1), V(t1), V(t2))
    a.valu("v_lshlrev_b32", V(t1), 4, V(t1))
    a.valu("v_lshl_add_u32", V(DXv), V(t0), 10, V(t1))
    a.salu("s_lshl_b32", S(sT2), S(sW), 13)
    a.valu("v_add_u32", V(DXv), S(sT2), V(DXv))

    def load_wq_ops(c):
        base = WS + (c % 4) * 16
        ops = []
        for j in range(2):
            for e in range(2):
                def f(j=j, e=e):
                    a.salu("s_add_u32", S(sT2), S(sWQoff), (c * 32 + 8 * j + e) * 8192)
                    bload("buffer_load_dwordx4", A(base + (j * 2 + e) * 4, 4), V(WQA), S(sWQ, 4), S(sT2))
                ops.append(f)
        return ops

    xlast = {}

    def issue_x_ops(c):
        lb = XB + (c & 1) * XSZ
        ops = []
        for i in range(9):
            def f(i=i):
                a.salu("s_add_u32", "m0", S(sDM0), lb + i * 2048)
                a.salu("s_mov_b32", S(sT3), i * 16384 + c * 128)
                dma(V(DXv), S(sX, 4), S(sT3))
                xlast[c] = a.vmn
            ops.append(f)
        return ops

    def write_wq_ops(c):
        base = WS + (c % 4) * 16
        boff = WB + (c % 3) * 8192
        ops = []
        for j in range(2):
            b0 = base + j * 8
            ops.append(lambda j=j, b0=b0: a.ds_write("ds_write_b128", V(WW + j), A(b0, 4), off=boff))
            ops.append(lambda j=j, b0=b0: a.ds_write("ds_write_b64", V(WW + j), A(b0 + 4, 2), off=boff + 256 + 8))
            ops.append(lambda j=j, b0=b0: a.ds_write("ds_write_b64", V(WW + j), A(b0 + 6, 2), off=boff + 256))
        return ops

    def frag_read_ops(i):
        p = i & 1
        boff = WB + (i % 3) * 8192
        xoff = ((i // 2) & 1) * XSZ
        ops = []
        for r in range(4):
            ops.append(lambda r=r: a.ds_read("ds_read_b128", A(XFs(p) + 4 * r, 4), V(XA + (i & 1)), off=xoff + r * 2048))
        ops.append(lambda: a.ds_read("ds_read_b128", A(XFs(p) + 16, 4), V(XA + 2 + (i & 1)), off=xoff))
        for Tt in range(8):
            ops.append(lambda Tt=Tt: a.ds_read("ds_read_b64_tr_b16", A(AFs(p) + Tt * 4, 2), V(AW + Tt), off=boff))
            ops.append(lambda Tt=Tt: a.ds_read("ds_read_b64_tr_b16", A(AFs(p) + Tt * 4 + 2, 2), V(AW + Tt), off=boff + 1024))
        return ops

    stamp(True)
    if stamps:
        a.misc(f"s_getreg_b32 s{SB + 2 * nst[0]}, hwreg(HW_REG_HW_ID)")
        nst[0] += 1
        a.misc(f"s_getreg_b32 s{SB + 2 * nst[0]}, hwreg(HW_REG_XCC_ID)")
        nst[0] += 1
    stamp()
    run(load_wq_ops(0))
    run(load_wq_ops(1))
    run(issue_x_ops(0))
    run(load_wq_ops(2))
    run(load_wq_ops(3))
    run(issue_x_ops(1))
    for i in list(range(112)) + list(range(144, 176)):
        a.valu("v_mov_b32", V(i), 0)
    run(write_wq_ops(0))
    run(write_wq_ops(1))
    run(load_wq_ops(4))
    run(tile_ops(False, slot_of(0)))
    a.waitcnt(vm=a.vmn - xlast[0], lgkm=0)
    a.barrier()
    run(frag_read_ops(0))

    lbl = [0]
    slow_lines = []

    def newlabel():
        lbl[0] += 1
        return f"{name}_n{lbl[0]}"

    def qproj():
        for i in range(16):
            p = i & 1
            main = []
            for Tt in range(8):
                for r in range(4):
                    main.append(lambda Tt=Tt, r=r: a.mfma(V(QA(Tt, r), 4), A(AFs(p) + Tt * 4, 4), A(XFs(p) + 4 * r, 4), V(QA(Tt, r), 4)))
                if Tt < 4:
                    main.append(lambda Tt=Tt: a.mfma(V(QA9(Tt & 3), 4), A(AFs(p) + Tt * 4, 4), A(XFs(p) + 16, 4), V(QA9(Tt & 3), 4)))
            n = len(main)
            g = []
            if i % 2 == 1 and (i + 3) // 2 < 8:
                g += issue_x_ops((i + 3) // 2)
            wr = write_wq_ops(i + 2) if i + 2 < 16 else []
            g2 = load_wq_ops(i + 5) if i + 5 < 16 else []
            rd = frag_read_ops(i + 1) if i + 1 < 16 else []
            streams = [([(0, n, f) for f in wr] + [(6, n - 6, f) for f in rd], 1),
                       ([(1, n, f) for f in g] + [(10, n, f) for f in g2], 1)]
            interleave(main, streams, budget=2)
            c = (i + 2) // 2
            if i % 2 == 0 and c < 8:
                a.waitcnt(vm=a.vmn - xlast[c], lgkm=0)
            else:
                a.waitcnt(lgkm=0)
            a.barrier()

    def max_ops(sb, n, ta):
        ops = [lambda: a.valu("v_max3_f32", V(ta), V(sb), V(sb + 1), V(sb + 2))]
        j = 3
        while j + 1 < n:
            ops.append(lambda j=j: a.valu("v_max3_f32", V(ta), V(ta), V(sb + j), V(sb + j + 1)))
            j += 2
        if j < n:
            ops.append(lambda j=j: a.valu("v_max_f32", V(ta), V(ta), V(sb + j)))
        return ops

    def check(tiles):
        if "nocheck" in dbg:
            return
        tc, tb, td = T + 5, T + 6, T + 7
        a.valu("v_max3_f32", V(tc), V(tiles[0][2]), V(tiles[1][2]), V(tiles[2][2]))
        if len(tiles) == 5:
            a.valu("v_max3_f32", V(tc), V(tc), V(tiles[3][2]), V(tiles[4][2]))
        else:
            a.valu("v_max_f32", V(tc), V(tc), V(tiles[3][2]))
        a.valu("v_cmp_lt_f32", "vcc", S(sThr), V(tc))
        L, LB = newlabel(), newlabel()
        a.nop(5)
        a.misc(f"s_cbranch_vccnz {L}")
        a.label(LB)
        main_lines = a.lines
        saved = (list(a.hist), a.pos, list(a.lgkm), list(a.vm))
        a.lines = slow_lines
        a.label(L)
        a.nop(8)
        for (sb, r, ta) in tiles:
            for pl in ("v_permlane16_swap_b32", "v_permlane32_swap_b32"):
                a.valu("v_mov_b32", V(tb), V(ta))
                a.valu(pl, V(ta), V(tb))
                a.valu("v_max_f32", V(ta), V(ta), V(tb))
            a.valu("v_cmp_eq_f32", "vcc", 0, V(LA(r)))
            a.valu("v_max_f32", V(tb), 0, V(ta))
            a.valu("v_cndmask_b32", V(ta), V(tb), V(ta), "vcc")
            for j in range(8):
                a.valu("v_sub_f32", V(sb + j), V(sb + j), V(ta))
            for e in range(4):
                a.valu("v_sub_f32", V(NM(r) + e), V(NM(r) + e), V(ta))
            a.valu("v_exp_f32", V(tb), "-" + V(tb))
            for e in range(4):
                a.valu("v_mul_f32", V(LA(r) + e), V(LA(r) + e), V(tb))
            for k in range(32):
                a.valu("v_accvgpr_read_b32", V(td), A(OA(r, 0) + k))
                a.valu("v_mul_f32", V(td), V(td), V(tb))
                a.valu("v_accvgpr_write_b32", A(OA(r, 0) + k), V(td))
        a.nop(4)
        a.misc(f"s_branch {LB}")
        a.lines = main_lines
        a.hist, a.pos, a.lgkm, a.vm = list(saved[0]), saved[1], list(saved[2]), list(saved[3])

    def exp_ops(bases):
        ops = []
        for b0 in bases:
            for j in range(8):
                ops.append(lambda b0=b0, j=j: a.valu("v_exp_f32", V(b0 + j), V(b0 + j)))
            for e in range(4):
                ops.append(lambda b0=b0, e=e: a.valu("v_cvt_pk_bf16_f32", V(b0 + e), V(b0 + 2 * e), V(b0 + 2 * e + 1)))
        return ops

    def opt(key, default):
        v = [d[len(key):] for d in dbg if d.startswith(key) and d[len(key):].isdigit()]
        return int(v[0]) if v else default
    LEAD = opt("lead", 8)
    BUD = opt("bud", 2)
    VXC = opt("vxc", 2)
    FSC = opt("fsc", 1)
    DSP = int([d[3:] for d in dbg if d.startswith('dsp')][0]) if any(d.startswith('dsp') for d in dbg) else 6

    def frag_stream(items):
        st = []
        for k, (fu, lu, fn) in enumerate(items):
            rel = 0 if k < NFR else items[k - NFR][1] + 1
            dl = max(rel, fu - LEAD)
            st.append((rel, dl, (lambda fn=fn, k=k: fn(k % NFR))))
        return st

    class Seg:
        def __init__(self):
            self.main, self.items, self.vx, self.dm = [], [], [], []

        def tiles(self, h):
            u = h & 1
            tl = [(SS(r, 2 * u), r, T + r) for r in range(4)]
            if u == 0:
                tl.append((S9, 4, T + 4))
            return tl

        def X(self, h):
            kslot = slot_of(2 * (h >> 1)) * SLOT
            tl = self.tiles(h)
            for ktl in range(2):
                kt = 2 * (h & 1) + ktl
                for t in range(4):
                    k = len(self.items)
                    self.items.append((len(self.main), len(self.main) + len(tl) - 1,
                                       lambda sl, kt=kt, t=t: a.ds_read("ds_read_b128", V(FR + 4 * sl, 4), V(AK + 4 * (kt >> 1) + t), off=kslot + kt * 4096)))
                    for (sb, r, _) in tl:
                        d = V(sb + 4 * ktl, 4)
                        self.main.append(lambda d=d, t=t, r=r, k=k: a.mfma(d, V(FR + 4 * (k % NFR), 4), A(QF(r, t), 4), d if t else V(NM(r), 4)))

        def Y(self, h):
            vslot = slot_of(2 * (h >> 1) + 1) * SLOT
            u = h & 1
            tl = self.tiles(h)
            for (sb, r, _) in tl:
                self.main.append(lambda sb=sb, r=r: a.mfma(V(LA(r), 4), V(ONES, 4), V(sb, 4), V(LA(r), 4)))
            for dt in range(8):
                k = len(self.items)

                def rd(sl, dt=dt):
                    a.ds_read("ds_read_b64_tr_b16", V(FR + 4 * sl, 2), V(AV + 8 * u + dt), off=vslot + u * 8192)
                    a.ds_read("ds_read_b64_tr_b16", V(FR + 4 * sl + 2, 2), V(AV + 8 * u + dt), off=vslot + u * 8192 + 4096)
                self.items.append((len(self.main), len(self.main) + len(tl) - 1, rd))
                for (sb, r, _) in tl:
                    self.main.append(lambda dt=dt, sb=sb, r=r, k=k: a.mfma(A(OA(r, dt), 4), V(FR + 4 * (k % NFR), 4), V(sb, 4), A(OA(r, dt), 4)))

        def exp(self, h, rel, dl):
            self.vx += [(rel, dl, f) for f in exp_ops([sb for sb, _, _ in self.tiles(h)])]

        def mx(self, h, rel, dl):
            ol = [max_ops(sb, 8, ta) for sb, _, ta in self.tiles(h)]
            for j in range(len(ol[0])):
                for o in ol:
                    self.vx.append((rel, dl, o[j]))

        def chk(self, h):
            tl = self.tiles(h)
            self.main.append(lambda: check(tl))

        def emit(self):
            fs = frag_stream(self.items)
            interleave(self.main, [(fs, FSC), (self.vx, VXC), (self.dm, 1)], budget=BUD)

    def sync():
        a.waitcnt(vm=0, lgkm=0)
        if "nobar" not in dbg:
            a.barrier()

    def body(s, first=False):
        g = Seg()
        if not first:
            g.Y(2 * s - 2)
            g.mx(2 * s - 1, 0, len(g.main))
            g.dm = [(DSP * k, 10 ** 6, f) for k, f in enumerate(tile_ops(True, slot_of(2 * s + 1)) + tile_ops(False, slot_of(2 * s + 2)))]
            g.chk(2 * s - 1)
            g.main.append(lambda: seg(0))
        n0 = len(g.main)
        g.X(2 * s)
        g.main.append(lambda: seg(1))
        if not first:
            g.exp(2 * s - 1, n0, len(g.main))
            n0 = len(g.main)
            g.Y(2 * s - 1)
            g.mx(2 * s, n0 + 3, len(g.main))
        else:
            g.mx(2 * s, len(g.main), len(g.main))
        g.chk(2 * s)
        g.main.append(lambda: seg(2))
        n0 = len(g.main)
        g.X(2 * s + 1)
        g.exp(2 * s, n0, len(g.main))
        g.dm = [(r, min(d, len(g.main)), f) for (r, d, f) in g.dm]
        g.emit()
        seg(3)
        a.waitcnt(vm=0, lgkm=0)
        seg(4)
        sync()
        seg(5)

    def attention():
        qproj()
        if "qonly" in dbg:
            a.misc("s_endpgm")
        run(tile_ops(True, slot_of(1)))
        run(tile_ops(False, slot_of(2)))
        stamp()
        tq = 192
        for r in range(4):
            for t in range(4):
                lo, hi = QA(2 * t, r), QA(2 * t + 1, r)
                for k, src in enumerate((lo, lo + 2, hi, hi + 2)):
                    a.valu("v_mul_f32", V(src), S(sC), V(src))
                    a.valu("v_mul_f32", V(src + 1), S(sC), V(src + 1))
                    a.valu("v_cvt_pk_bf16_f32", V(tq + k), V(src), V(src + 1))
                for k in range(4):
                    a.valu("v_accvgpr_write_b32", A(QF(r, t) + k), V(tq + k))
        vl, ta, tb = 200, 201, 202
        a.valu("v_mbcnt_lo_u32_b32", V(vl), -1, 0)
        a.valu("v_mbcnt_hi_u32_b32", V(vl), -1, V(vl))
        a.valu("v_lshlrev_b32", V(ta), 4, V(vl))
        for j in range(2):
            lo, hi = QA9(2 * j), QA9(2 * j + 1)
            for k, src in enumerate((lo, lo + 2, hi, hi + 2)):
                a.valu("v_mul_f32", V(src), S(sC), V(src))
                a.valu("v_mul_f32", V(src + 1), S(sC), V(src + 1))
                a.valu("v_cvt_pk_bf16_f32", V(tq + 4 * j + k), V(src), V(src + 1))
            if j == 0:
                a.salu("s_lshl_b32", S(sT2), S(sW), 11)
                a.valu("v_add_u32", V(tb), S(sT2), V(ta))
                a.valu("v_subrev_u32", V(vl), S(sT2), V(ta))
            a.ds_write("ds_write_b128", V(tb), V(tq + 4 * j, 4), off=WB + j * 1024)
        a.waitcnt(lgkm=0)
        a.barrier()
        for t in range(4):
            a.ds_read("ds_read_b128", A(QF(4, t), 4), V(tb if t < 2 else vl), off=WB + t * 1024)
        a.valu("v_mov_b32", V(tb), 0)
        for i in range(160):
            a.valu("v_accvgpr_write_b32", A(i), V(tb))
        for i in range(40):
            a.valu("v_mov_b32", V(NM(0) + i), 0)
        for i in range(4):
            a.valu("v_mov_b32", V(ONES + i), "0x3f803f80")
        a.salu("s_mov_b32", S(sThr), "0xff800000")
        a.waitcnt(vm=16, lgkm=0)
        a.barrier()
        if stamps:
            for k in range(12):
                a.salu("s_mov_b32", S(86 + k), 0)
        seg(11)
        body(0, True)
        body(1)
        a.salu("s_mov_b32", S(sIt), 0)
        a.flush()
        Lp = newlabel()
        a.label(Lp)
        body(2)
        body(3)
        a.salu("s_add_u32", S(sIt), S(sIt), 1)
        a.salu("s_cmp_lt_u32", None, S(sIt), 3)
        a.nop(8)
        a.misc(f"s_cbranch_scc1 {Lp}")
        g = Seg()
        g.Y(14)
        g.mx(15, 0, len(g.main))
        g.chk(15)
        g.exp(15, len(g.main), len(g.main))
        g.Y(15)
        g.emit()
        a.flush()

    orig_chk = Seg.chk

    def chk2(self, h):
        orig_chk(self, h)
        if h == 1:
            self.main.append(lambda: a.salu("s_mov_b32", S(sThr), hex(f32bits(THR))))
    Seg.chk = chk2

    attention()
    a.waitcnt(vm=0, lgkm=0)
    stamp()

    vL, vG, vI = 0, 1, 2
    t0, t1, t2, t3 = 4, 5, 6, 7
    vSt = 8
    a.valu("v_mbcnt_lo_u32_b32", V(vL), -1, 0)
    a.valu("v_mbcnt_hi_u32_b32", V(vL), -1, V(vL))
    a.valu("v_lshrrev_b32", V(vG), 4, V(vL))
    a.valu("v_and_b32", V(vI), 15, V(vL))
    a.valu("v_and_b32", V(t0), 1, V(vG))
    a.valu("v_lshrrev_b32", V(t1), 1, V(vG))
    a.valu("v_lshl_add_u32", V(t0), V(t0), 1, V(t1))
    a.valu("v_lshlrev_b32", V(t1), 4, V(vI))
    a.valu("v_lshl_add_u32", V(vSt), V(t0), 8, V(t1))
    a.barrier()
    CB = 0
    PB = 4096
    a.valu("v_mov_b32", V(t2), V(NM(4)))
    a.valu("v_mov_b32", V(t3), V(LA(4)))
    a.salu("s_lshl_b32", S(sT2), S(sW), 7)
    a.valu("v_lshlrev_b32", V(t0), 3, V(vI))
    a.valu("v_add_u32", V(t1), S(sT2), V(t0))
    a.ds_write("ds_write_b64", V(t1), V(t2, 2), off=CB)
    a.waitcnt(lgkm=0)
    a.barrier()
    ml = 12
    for w in range(2):
        a.ds_read("ds_read_b64", V(ml + 2 * w, 2), V(t0), off=CB + w * 128)
    a.valu("v_min_f32", V(t1), V(ml), V(ml + 2))
    a.valu("v_mov_b32", V(t2), 0)
    for w in range(2):
        a.valu("v_sub_f32", V(t3), V(t1), V(ml + 2 * w))
        a.valu("v_exp_f32", V(t3), V(t3))
        a.valu("v_fma_f32", V(t2), V(t3), V(ml + 2 * w + 1), V(t2))
    a.valu("v_sub_f32", V(t3), V(t1), V(NM(4)))
    a.valu("v_exp_f32", V(t3), V(t3))
    a.valu("v_rcp_f32", V(t2), V(t2))
    a.valu("v_mul_f32", V(t3), V(t3), V(t2))
    NB = 32
    for k in range(32):
        a.valu("v_accvgpr_read_b32", V(NB + k), A(OA(4, 0) + k))
    for k in range(32):
        a.valu("v_mul_f32", V(NB + k), V(NB + k), V(t3))
    a.valu("v_lshlrev_b32", V(t0), 4, V(vL))
    a.salu("s_lshl_b32", S(sT2), S(sW), 13)
    a.valu("v_add_u32", V(t1), S(sT2), V(t0))
    for dt in range(8):
        a.ds_write("ds_write_b128", V(t1), V(NB + 4 * dt, 4), off=PB + dt * 1024)
    for r in range(4):
        a.valu("v_rcp_f32", V(t2), V(LA(r)))
        a.salu("s_lshl_b32", S(sT2), S(sW), 12)
        a.salu("s_add_u32", S(sT2), S(sT2), r * 1024)
        for kk in range(4):
            o = 144 + ((r * 4 + kk) % 8) * 8
            for e in range(8):
                a.valu("v_accvgpr_read_b32", V(o + e), A(OA(r, 2 * kk) + e))
            for e in range(8):
                a.valu("v_mul_f32", V(o + e), V(o + e), V(t2))
            for e in range(4):
                a.valu("v_cvt_pk_bf16_f32", V(o + e), V(o + 2 * e), V(o + 2 * e + 1))
            a.valu("v_permlane16_swap_b32", V(o), V(o + 2))
            a.valu("v_permlane16_swap_b32", V(o + 1), V(o + 3))
            a.salu("s_add_u32", S(sT3), S(sT2), kk * 9216)
            bstore("buffer_store_dwordx4", V(o, 4), V(vSt), S(sO, 4), S(sT3))
    a.waitcnt(lgkm=0)
    a.barrier()
    a.salu("s_lshl_b32", S(sT2), S(sW), 12)
    a.valu("v_add_u32", V(t1), S(sT2), V(t0))
    RB = 64
    for j in range(4):
        for w in range(2):
            a.ds_read("ds_read_b128", V(RB + (j * 2 + w) * 4, 4), V(t1), off=PB + w * 8192 + j * 1024)
    a.salu("s_mul_i32", S(sT2), S(sW), 2 * 9216)
    a.salu("s_add_u32", S(sT2), S(sT2), 8 * 1024)
    for j in range(4):
        b0 = RB + j * 8
        for e in range(4):
            a.valu("v_add_f32", V(b0 + e), V(b0 + e), V(b0 + 4 + e))
    for jj in range(2):
        o = 144 + jj * 4
        b0, b1 = RB + (2 * jj) * 8, RB + (2 * jj + 1) * 8
        a.valu("v_cvt_pk_bf16_f32", V(o), V(b0), V(b0 + 1))
        a.valu("v_cvt_pk_bf16_f32", V(o + 1), V(b0 + 2), V(b0 + 3))
        a.valu("v_cvt_pk_bf16_f32", V(o + 2), V(b1), V(b1 + 1))
        a.valu("v_cvt_pk_bf16_f32", V(o + 3), V(b1 + 2), V(b1 + 3))
        a.valu("v_permlane16_swap_b32", V(o), V(o + 2))
        a.valu("v_permlane16_swap_b32", V(o + 1), V(o + 3))
        a.salu("s_add_u32", S(sT3), S(sT2), jj * 9216)
        bstore("buffer_store_dwordx4", V(o, 4), V(vSt), S(sO, 4), S(sT3))
    if stamps:
        stamp()
        stamp(True)
        a.salu("s_add_u32", S(sX), "s12", 0x3000000)
        a.salu("s_addc_u32", S(sX + 1), "s13", 0)
        a.salu("s_mov_b32", S(sX + 2), 0x100000)
        a.salu("s_lshl_b32", S(sT2), "s2", 10)
        a.salu("s_lshl_b32", S(sT3), S(sW), 8)
        a.salu("s_add_u32", S(sT2), S(sT2), S(sT3))
        a.salu("s_mov_b64", "exec", 1)
        a.valu("v_mov_b32", V(t1), 0)
        for i in range(nst[0]):
            a.valu("v_mov_b32", V(t0), S(SB + 2 * i))
            a.bstore("buffer_store_dword", V(t0), V(t1), S(sX, 4), S(sT2), off=4 * i)
        for i in range(12):
            a.valu("v_mov_b32", V(t0), S(86 + i))
            a.bstore("buffer_store_dword", V(t0), V(t1), S(sX, 4), S(sT2), off=128 + 4 * i)
    a.label(f"{name}_done")
    a.misc("s_endpgm")
    a.lines += slow_lines
    return a
```

```python
from asmlib import Asm, V, S
from sched import interleave

WS_P = 0x1300000
STAGE = 34816
LDS_K2 = 4 * STAGE


def gen_k2(name, stamps=False):
    a = Asm()
    a.label(name)
    nst = [0]

    def stamp():
        if not stamps:
            return
        a.misc(f"s_memrealtime s[{60 + 2 * nst[0]}:{61 + 2 * nst[0]}]")
        a.waitcnt(lgkm=0)
        nst[0] += 1
    sO, sWO, sP = 16, 20, 24
    sW, sT0, sT1, sT2, sT3 = 28, 29, 30, 31, 32
    sKS, sNQ, sB, sBLK = 33, 34, 35, 36
    sDM0, sOr, sWr, sIt = 37, 38, 39, 40
    sO5g, sO5l, sOw = 41, 42, 43
    ACC = lambda nt, qt: (nt * 9 + qt) * 4
    BF = lambda p: 72 + 44 * p
    AF = lambda p: 72 + 44 * p + 36
    AO = 160
    AWo = 168
    DO = 176
    DW = 177
    T = 178
    vL, vG, vI = T, T + 1, T + 2
    t0, t1, t2, t3 = T + 4, T + 5, T + 6, T + 7

    a.salu("s_cmp_ge_u32", None, "s2", 256)
    a.misc(f"s_cbranch_scc1 {name}_done")
    a.misc("s_load_dwordx2 s[4:5], s[0:1], 32")
    a.misc("s_load_dwordx2 s[6:7], s[0:1], 72")
    a.misc("s_load_dwordx2 s[12:13], s[0:1], 96")
    a.misc("s_load_dwordx2 s[8:9], s[0:1], 88")
    a.misc("s_load_dwordx2 s[10:11], s[0:1], 80")
    a.valu("v_and_b32", V(vL), 63, "v0")
    a.valu("v_lshrrev_b32", V(T + 3), 6, "v0")
    a.valu("v_lshrrev_b32", V(vG), 4, V(vL))
    a.valu("v_and_b32", V(vI), 15, V(vL))
    a.valu("v_readfirstlane_b32", S(sW), V(T + 3))
    a.misc("s_waitcnt lgkmcnt(0)")
    a.salu("s_and_b32", S(sKS), "s2", 3)
    a.salu("s_lshr_b32", S(sBLK), "s2", 2)
    a.salu("s_and_b32", S(sBLK), S(sBLK), 1)
    a.salu("s_lshr_b32", S(sNQ), "s2", 3)
    a.salu("s_and_b32", S(sNQ), S(sNQ), 3)
    a.salu("s_lshr_b32", S(sB), "s2", 5)
    a.salu("s_cmp_eq_u32", None, S(sBLK), 0)
    a.salu("s_cselect_b32", S(sWO), "s4", "s6")
    a.salu("s_cselect_b32", S(sWO + 1), "s5", "s7")
    a.salu("s_mov_b32", S(sWO + 2), 4194304)
    a.salu("s_mov_b32", S(sWO + 3), "0x00020000")
    a.salu("s_mul_i32", S(sT0), S(sBLK), 9437184)
    a.salu("s_mul_i32", S(sT1), S(sB), 1179648)
    a.salu("s_add_u32", S(sT0), S(sT0), S(sT1))
    a.salu("s_add_u32", S(sO), "s12", S(sT0))
    a.salu("s_addc_u32", S(sO + 1), "s13", 0)
    a.salu("s_mov_b32", S(sO + 2), 1179648)
    a.salu("s_mov_b32", S(sO + 3), "0x00020000")
    sTile = 44
    a.salu("s_lshl_b32", S(sTile), S(sBLK), 3)
    a.salu("s_add_u32", S(sTile), S(sTile), S(sB))
    a.salu("s_lshl_b32", S(sTile), S(sTile), 2)
    a.salu("s_add_u32", S(sTile), S(sTile), S(sNQ))
    a.salu("s_mul_i32", S(sT0), S(sTile), 4 * 73728)
    a.salu("s_add_u32", S(sT0), S(sT0), WS_P)
    a.salu("s_add_u32", S(sP), "s12", S(sT0))
    a.salu("s_addc_u32", S(sP + 1), "s13", 0)
    a.salu("s_mov_b32", S(sP + 2), 4 * 73728)
    a.salu("s_mov_b32", S(sP + 3), "0x00020000")
    sD, sOut = 48, 52
    a.salu("s_mov_b32", S(sD), "s8")
    a.salu("s_mov_b32", S(sD + 1), "s9")
    a.salu("s_mov_b32", S(sD + 2), 256)
    a.salu("s_mov_b32", S(sD + 3), "0x00020000")
    a.salu("s_mov_b32", S(sOut), "s10")
    a.salu("s_mov_b32", S(sOut + 1), "s11")
    a.salu("s_mov_b32", S(sOut + 2), 2359296)
    a.salu("s_mov_b32", S(sOut + 3), "0x00020000")
    a.salu("s_lshl_b32", S(sDM0), S(sW), 10)
    a.salu("s_mul_i32", S(sOr), S(sKS), 8 * 36864)
    a.salu("s_lshl_b32", S(sWr), S(sKS), 20)
    a.salu("s_lshl_b32", S(sT0), S(sNQ), 8)
    a.salu("s_add_u32", S(sWr), S(sWr), S(sT0))
    a.salu("s_and_b32", S(sT0), S(sW), 1)
    a.salu("s_add_u32", S(sT0), S(sT0), 16)
    a.salu("s_lshl_b32", S(sO5l), S(sT0), 10)
    a.valu("v_lshlrev_b32", V(DO), 4, V(vL))
    a.salu("s_lshl_b32", S(sT0), S(sW), 2)
    a.valu("v_add_u32", V(t0), S(sT0), V(vG))
    a.salu("s_lshr_b32", S(sT0), S(sW), 1)
    a.salu("s_lshl_b32", S(sT0), S(sT0), 2)
    a.valu("v_add_u32", V(t1), S(sT0), V(vG))
    a.valu("v_lshlrev_b32", V(t1), 1, V(t1))
    a.valu("v_xor_b32", V(t1), V(vI), V(t1))
    a.valu("v_lshlrev_b32", V(t1), 4, V(t1))
    a.valu("v_lshl_add_u32", V(DW), V(t0), 10, V(t1))
    for st in range(4):
        a.valu("v_add_u32", V(AO + 2 * st), st * STAGE, V(DO))
    a.valu("v_lshrrev_b32", V(t0), 2, V(vI))
    a.valu("v_lshl_add_u32", V(t1), V(vG), 3, V(t0))
    a.valu("v_and_b32", V(t2), 1, V(vG))
    a.valu("v_lshl_add_u32", V(t2), V(t2), 2, V(t0))
    a.valu("v_and_b32", V(t3), 3, V(vI))
    a.valu("v_lshlrev_b32", V(t3), 3, V(t3))
    a.valu("v_lshl_add_u32", V(t3), V(t1), 8, V(t3))
    a.salu("s_lshl_b32", S(sT0), S(sW), 1)
    for nt in range(2):
        a.salu("s_add_u32", S(sT1), S(sT0), nt)
        a.valu("v_xor_b32", V(t0), S(sT1), V(t2))
        a.valu("v_lshl_add_u32", V(t0), V(t0), 5, V(t3))
        for st in range(4):
            a.valu("v_add_u32", V(AWo + 2 * st + nt), st * STAGE + 18432, V(t0))

    def issue_ops(st, half):
        lb = st * STAGE
        ops = []
        for i in range(5):
            def f(i=i):
                if i < 4:
                    a.salu("s_add_u32", "m0", S(sDM0), lb + i * 4096)
                    a.salu("s_add_u32", S(sT3), S(sOr), i * 4096)
                    a.salu("s_add_u32", S(sT3), S(sT3), S(sDM0))
                else:
                    a.salu("s_add_u32", "m0", S(sO5l), lb)
                    a.salu("s_add_u32", S(sT3), S(sOr), S(sO5l))
                a.dma(V(DO), S(sO, 4), S(sT3))
                if i == 4:
                    a.salu("s_add_u32", S(sOr), S(sOr), 18432)
            ops.append(f)
        for i in range(4):
            def f(i=i):
                a.salu("s_add_u32", "m0", S(sDM0), lb + 18432 + i * 4096)
                a.salu("s_add_u32", S(sT3), S(sWr), (16 * i) * 1024)
                a.dma(V(DW), S(sWO, 4), S(sT3))
                if i == 3:
                    a.salu("s_add_u32", S(sWr), S(sWr), 64 * 1024)
            ops.append(f)
        return ops

    def read_ops(st, e, p):
        ops = []
        for nt in range(2):
            ops.append(lambda nt=nt: a.ds_read("ds_read_b64_tr_b16", V(AF(p) + 4 * nt, 2), V(AWo + 2 * st + nt), off=e * 8192))
            ops.append(lambda nt=nt: a.ds_read("ds_read_b64_tr_b16", V(AF(p) + 4 * nt + 2, 2), V(AWo + 2 * st + nt), off=e * 8192 + 1024))
        for qt in range(9):
            ops.append(lambda qt=qt: a.ds_read("ds_read_b128", V(BF(p) + 4 * qt, 4), V(AO + 2 * st), off=(e * 9 + qt) * 1024))
        return ops

    def mf(p):
        m = []
        for qt in range(9):
            for nt in range(2):
                m.append(lambda qt=qt, nt=nt: a.mfma(V(ACC(nt, qt), 4), V(AF(p) + 4 * nt, 4), V(BF(p) + 4 * qt, 4), V(ACC(nt, qt), 4)))
        return m

    stamp()
    for st in range(3):
        for f in issue_ops(st, st & 1):
            f()
    for i in range(72):
        a.valu("v_mov_b32", V(i), 0)
    a.salu("s_mov_b32", S(sIt), 0)
    a.waitcnt(vm=9, lgkm=0)
    a.barrier()
    stamp()
    for f in read_ops(0, 0, 0):
        f()
    a.nop(4)
    a.label(f"{name}_loop")
    for kt in range(4):
        if kt == 1:
            a.salu("s_cmp_eq_u32", None, S(sIt), 3)
            a.salu("s_cselect_b32", S(sO + 2), 0, S(sO + 2))
            a.salu("s_cselect_b32", S(sWO + 2), 0, S(sWO + 2))
        dm = issue_ops((kt + 3) % 4, (kt + 3) & 1)
        interleave(mf(0), [[(0, 18, f) for f in read_ops(kt, 1, 1)], [(0, 18, f) for f in dm[:5]]], budget=2)
        interleave(mf(1), [[(0, 18, f) for f in read_ops((kt + 1) % 4, 0, 0)], [(0, 18, f) for f in dm[5:]]], budget=2)
        a.waitcnt(vm=9)
        a.barrier()
    a.salu("s_add_u32", S(sIt), S(sIt), 1)
    a.salu("s_cmp_lt_u32", None, S(sIt), 4)
    a.nop(4)
    a.misc(f"s_cbranch_scc1 {name}_loop")
    a.waitcnt(vm=0, lgkm=0)
    stamp()
    a.valu("v_lshlrev_b32", V(t0), 4, V(vL))
    a.salu("s_mul_i32", S(sT0), S(sW), 18432)
    a.salu("s_mul_i32", S(sT1), S(sKS), 73728)
    a.salu("s_add_u32", S(sT1), S(sT1), S(sT0))
    for j in range(18):
        if j % 4 == 0:
            a.salu("s_add_u32", S(sT2), S(sT1), j * 1024)
        a.bstore("buffer_store_dwordx4", V(4 * j, 4), V(t0), S(sP, 4), S(sT2), off=(j % 4) * 1024)
    a.label(f"{name}_fin")
    if stamps:
        a.waitcnt(vm=0)
        stamp()
        a.salu("s_add_u32", S(sO), "s12", 0x3100000)
        a.salu("s_addc_u32", S(sO + 1), "s13", 0)
        a.salu("s_mov_b32", S(sO + 2), 0x100000)
        a.salu("s_lshl_b32", S(sT2), "s2", 10)
        a.salu("s_lshl_b32", S(sT3), S(sW), 8)
        a.salu("s_add_u32", S(sT2), S(sT2), S(sT3))
        a.salu("s_mov_b64", "exec", 1)
        a.valu("v_mov_b32", V(t1), 0)
        for i in range(nst[0]):
            a.valu("v_mov_b32", V(t0), S(60 + 2 * i))
            a.bstore("buffer_store_dword", V(t0), V(t1), S(sO, 4), S(sT2), off=4 * i)
    a.label(f"{name}_done")
    a.misc("s_endpgm")
    return a


def gen_k3(name, stamps=False):
    a = Asm()
    a.label(name)
    if stamps:
        a.misc("s_memrealtime s[60:61]")
    a.salu("s_cmp_ge_u32", None, "s2", 576)
    a.misc(f"s_cbranch_scc1 {name}_done")
    a.misc("s_load_dwordx2 s[4:5], s[0:1], 80")
    a.misc("s_load_dwordx2 s[12:13], s[0:1], 96")
    a.valu("v_lshrrev_b32", "v1", 6, "v0")
    a.valu("v_readfirstlane_b32", "s20", "v1")
    a.valu("v_and_b32", "v2", 63, "v0")
    a.valu("v_lshrrev_b32", "v3", 4, "v2")
    a.valu("v_and_b32", "v4", 15, "v2")
    a.valu("v_lshlrev_b32", "v5", 4, "v2")
    a.valu("v_lshlrev_b32", "v6", 3, "v3")
    a.valu("v_lshl_add_u32", "v6", "v4", 11, "v6")
    a.misc("s_waitcnt lgkmcnt(0)")
    a.salu("s_add_u32", "s8", "s12", WS_P)
    a.salu("s_addc_u32", "s9", "s13", 0)
    a.salu("s_mov_b32", "s10", 64 * 4 * 73728)
    a.salu("s_mov_b32", "s11", "0x00020000")
    a.salu("s_mov_b32", "s16", "s4")
    a.salu("s_mov_b32", "s17", "s5")
    a.salu("s_mov_b32", "s18", 2359296)
    a.salu("s_mov_b32", "s19", "0x00020000")
    a.salu("s_mul_hi_u32", "s21", "s2", 477218589)
    a.salu("s_mul_i32", "s22", "s21", 9)
    a.salu("s_sub_u32", "s22", "s2", "s22")
    a.salu("s_mul_i32", "s23", "s21", 4 * 73728)
    a.salu("s_mul_i32", "s24", "s20", 18432)
    a.salu("s_add_u32", "s23", "s23", "s24")
    a.salu("s_lshl_b32", "s24", "s22", 10)
    a.salu("s_add_u32", "s23", "s23", "s24")
    for ks in range(4):
        for nt in range(2):
            a.salu("s_add_u32", "s25", "s23", ks * 73728 + nt * 9216)
            a.bload("buffer_load_dwordx4", V(16 + (ks * 2 + nt) * 4, 4), "v5", "s[8:11]", "s25")
    a.salu("s_and_b32", "s26", "s21", 3)
    a.salu("s_lshr_b32", "s27", "s21", 2)
    a.salu("s_and_b32", "s28", "s27", 7)
    a.salu("s_lshr_b32", "s27", "s27", 3)
    a.salu("s_mul_i32", "s29", "s28", 144 * 2048)
    a.salu("s_lshl_b32", "s27", "s27", 10)
    a.salu("s_add_u32", "s29", "s29", "s27")
    a.salu("s_lshl_b32", "s26", "s26", 8)
    a.salu("s_add_u32", "s29", "s29", "s26")
    a.salu("s_lshl_b32", "s26", "s20", 6)
    a.salu("s_add_u32", "s29", "s29", "s26")
    a.salu("s_lshl_b32", "s26", "s22", 15)
    a.salu("s_add_u32", "s29", "s29", "s26")
    for e in range(8):
        a.valu("v_add_f32", V(16 + e), V(16 + e), V(24 + e))
    for e in range(8):
        a.valu("v_add_f32", V(32 + e), V(32 + e), V(40 + e))
    for e in range(8):
        a.valu("v_add_f32", V(16 + e), V(16 + e), V(32 + e))
    for e in range(4):
        a.valu("v_cvt_pk_bf16_f32", V(48 + e), V(16 + 2 * e), V(17 + 2 * e))
    a.bstore("buffer_store_dwordx2", "v[48:49]", "v6", "s[16:19]", "s29")
    a.bstore("buffer_store_dwordx2", "v[50:51]", "v6", "s[16:19]", "s29", off=32)
    if stamps:
        a.waitcnt(vm=0)
        a.misc("s_memrealtime s[62:63]")
        a.misc("s_waitcnt lgkmcnt(0)")
        a.salu("s_add_u32", "s8", "s12", 0x3200000)
        a.salu("s_addc_u32", "s9", "s13", 0)
        a.salu("s_mov_b32", "s10", 0x100000)
        a.salu("s_lshl_b32", "s20", "s2", 10)
        a.salu("s_mov_b64", "exec", 1)
        a.valu("v_mov_b32", "v1", 0)
        a.valu("v_mov_b32", "v2", "s60")
        a.valu("v_mov_b32", "v3", "s62")
        a.bstore("buffer_store_dwordx2", "v[2:3]", "v1", "s[8:11]", "s20")
    a.label(f"{name}_done")
    a.misc("s_endpgm")
    return a
```

```python
import sys
sys.path.insert(0, "gen")
import importlib
import k1b as k1
import k2
NAME = "concat_heads__mha_block_cached__mha_block_cached__near_ridge"
def desc(name, nv, ns=102, na=0):
    acc = (nv + 3)//4*4
    if na:
        nv = acc + na
    return f""".amdhsa_kernel {name}
  .amdhsa_next_free_vgpr {nv}
  .amdhsa_next_free_sgpr {ns}
  .amdhsa_accum_offset {acc}
  .amdhsa_group_segment_fixed_size 0
  .amdhsa_kernarg_size 104
  .amdhsa_user_sgpr_count 2
  .amdhsa_user_sgpr_kernarg_segment_ptr 1
  .amdhsa_system_sgpr_workgroup_id_x 1
.end_amdhsa_kernel
"""
DBG = ()
def build(out, stamps=False):
    ks = [("attn_kernel", (lambda n: k1.gen_k1(n, stamps in ("1", "3"), dbg=DBG)), 512, k1.LDS_K1),
          ("oproj_kernel", (lambda n: k2.gen_k2(n, stamps in ("2", "3"))), 256, k2.LDS_K2),
          ("reduce_kernel", (lambda n: k2.gen_k3(n, stamps == "3")), 576, 0)]
    hdr = open(f"cdna_kernels/{NAME}.s.ref").read().split("\n")
    head = [l for l in hdr if l.startswith(";") and "@launch" not in l and "Override launch" not in l and "grid=ceil" not in l]
    txt = "\n".join(head) + "\n"
    for n, g, grid, lds in ks:
        blk = k1.BLOCK if n == "attn_kernel" else 256
        txt += f"; @launch kernel={n} grid=({grid},1,1) block=({blk},1,1) lds={lds}\n"
    txt += '.amdgcn_target "amdgcn-amd-amdhsa--gfx950"\n.text\n'
    descs = ""
    for n, g, grid, lds in ks:
        a = g(n)
        txt += f".globl {n}\n.p2align 8\n.type {n},@function\n" + a.text()
        print(n, "instrs", a.ninstr, "maxv", a.maxv, "maxa", a.maxa)
        descs += ".p2align 6\n" + desc(n, a.maxv + 1, na=a.maxa + 1)
    txt += '.section .rodata,"a"\n' + descs
    open(out, "w").write(txt)
if __name__ == "__main__":
    DBG = tuple(sys.argv[3:])
    build(sys.argv[1] if len(sys.argv) > 1 else f"cdna_kernels/{NAME}.s", sys.argv[2] if len(sys.argv) > 2 else None)
```

```python
import struct
from asmlib import Asm, V, S, A
from sched import interleave

RING = 16384
SLOT = 16384
WB = 0
XB = 24576
XSZ = 18432
LDS_K1 = 81920
THR = 8.0
BLOCK = 128

CSCALE = 1.4426950408889634 / (128.0 ** 0.5)


def f32bits(x):
    return struct.unpack("<I", struct.pack("<f", x))[0]


def OA(r, dt):
    return (r * 8 + dt) * 4


def QF(r, t):
    return 160 + (r * 4 + t) * 4


def SS(r, kt):
    return (r * 4 + kt) * 4


S9 = 64


def NM(r):
    return 72 + 4 * r


def LA(r):
    return 92 + 4 * r


ONES = 112
DK0, DK1, DV = 116, 117, 118
T = 120
FR = 144
NFR = 16
AK = 208
AV = 216

sX, sWQ, sK, sV, sO = 16, 20, 24, 28, 32
sW = 36
sC = 37
sT0 = 38
sT1 = 39
sWQoff = 48
sDM0 = 49
sT2 = 51
sT3 = 52
sH = 53
sIt, sKg, sVg = 56, 57, 58
sThr, sLow = 59, 60


def slot_of(tile):
    return (tile + 3) % 4


def gen_k1(name, stamps=False, nt=True, dbg=()):
    a = Asm()
    a.vmn = 0
    nst = [0]
    SB = 70

    def stamp(real=False):
        if not stamps:
            return
        a.waitcnt(lgkm=0)
        a.misc(f"{'s_memrealtime' if real else 's_memtime'} s[{SB + 2 * nst[0]}:{SB + 1 + 2 * nst[0]}]")
        a.misc("s_waitcnt lgkmcnt(0)")
        nst[0] += 1

    def seg(k):
        if not stamps or "seg" not in dbg:
            return
        a.misc("s_memtime s[98:99]")
        a.waitcnt(lgkm=0)
        a.salu("s_sub_u32", "s100", "s98", "s101")
        a.salu("s_add_u32", S(86 + k), S(86 + k), "s100")
        a.salu("s_mov_b32", "s101", "s98")

    def opt(key, default):
        v = [d[len(key):] for d in dbg if d.startswith(key) and d[len(key):].isdigit()]
        return int(v[0]) if v else default

    a.label(name)

    def dma(voff, srd, soff, flags=""):
        a.dma(voff, srd, soff, flags=flags)
        a.vmn += 1

    def bload(*x, **k):
        a.bload(*x, **k)
        a.vmn += 1

    def bstore(*x, **k):
        a.bstore(*x, **k)
        a.vmn += 1

    KVF = "nt" if nt else ""

    a.salu("s_cmp_ge_u32", None, "s2", 512)
    a.misc(f"s_cbranch_scc1 {name}_done")
    a.misc("s_load_dwordx8 s[4:11], s[0:1], 0")
    a.misc("s_load_dwordx8 s[40:47], s[0:1], 40")
    a.misc("s_load_dwordx2 s[12:13], s[0:1], 96")
    vL, vG, vI = 10, 11, 12
    t0, t1, t2, t3, t4, t5 = 14, 15, 16, 17, 18, 19
    a.valu("v_and_b32", V(vL), 63, "v0")
    a.valu("v_lshrrev_b32", V(t0), 6, "v0")
    a.valu("v_lshrrev_b32", V(vG), 4, V(vL))
    a.valu("v_and_b32", V(vI), 15, V(vL))
    a.valu("v_readfirstlane_b32", S(sW), V(t0))
    a.misc("s_waitcnt lgkmcnt(0)")
    a.salu("s_lshr_b32", S(sT0), "s2", 2)
    a.salu("s_and_b32", S(sT0), S(sT0), 1)
    a.salu("s_cmp_eq_u32", None, S(sT0), 0)
    for i in range(8):
        a.salu("s_cselect_b32", S(4 + i), S(4 + i), S(40 + i))
    a.salu("s_lshr_b32", S(sT1), "s2", 7)
    a.salu("s_and_b32", S(sT2), "s2", 2)
    a.salu("s_lshl_b32", S(sT2), S(sT2), 1)
    a.salu("s_add_u32", S(sT1), S(sT1), S(sT2))
    a.salu("s_lshr_b32", S(sH), "s2", 3)
    a.salu("s_and_b32", S(sH), S(sH), 15)
    a.salu("s_and_b32", S(sT2), "s2", 1)
    a.salu("s_lshl_b32", S(sT2), S(sT2), 4)
    a.salu("s_add_u32", S(sH), S(sH), S(sT2))
    a.salu("s_mul_i32", S(sT2), S(sT1), 147456)
    a.salu("s_add_u32", S(sX), "s4", S(sT2))
    a.salu("s_addc_u32", S(sX + 1), "s5", 0)
    a.salu("s_mov_b32", S(sX + 2), 147456)
    a.salu("s_mov_b32", S(sX + 3), "0x00020000")
    a.salu("s_mov_b32", S(sWQ), "s10")
    a.salu("s_mov_b32", S(sWQ + 1), "s11")
    a.salu("s_mov_b32", S(sWQ + 2), 4194304)
    a.salu("s_mov_b32", S(sWQ + 3), "0x00020000")
    a.salu("s_lshl_b32", S(sT3), S(sT1), 5)
    a.salu("s_add_u32", S(sT3), S(sT3), S(sH))
    a.salu("s_lshl_b32", S(sT2), S(sT3), 17)
    a.salu("s_add_u32", S(sK), "s6", S(sT2))
    a.salu("s_addc_u32", S(sK + 1), "s7", 0)
    a.salu("s_mov_b32", S(sK + 2), 131072)
    a.salu("s_mov_b32", S(sK + 3), "0x00020000")
    a.salu("s_add_u32", S(sV), "s8", S(sT2))
    a.salu("s_addc_u32", S(sV + 1), "s9", 0)
    a.salu("s_mov_b32", S(sV + 2), 131072)
    a.salu("s_mov_b32", S(sV + 3), "0x00020000")
    a.salu("s_mul_i32", S(sT2), S(sT0), 9437184)
    a.salu("s_mul_i32", S(sT3), S(sT3), 36864)
    a.salu("s_add_u32", S(sT2), S(sT2), S(sT3))
    a.salu("s_add_u32", S(sO), "s12", S(sT2))
    a.salu("s_addc_u32", S(sO + 1), "s13", 0)
    a.salu("s_mov_b32", S(sO + 2), 36864)
    a.salu("s_mov_b32", S(sO + 3), "0x00020000")
    a.salu("s_lshl_b32", S(sWQoff), S(sH), 8)
    a.salu("s_mov_b32", S(sC), hex(f32bits(CSCALE)))
    a.salu("s_lshl_b32", S(sDM0), S(sW), 10)

    a.salu("s_lshl_b32", S(sT2), S(sW), 2)
    a.valu("v_add_u32", V(t0), S(sT2), V(vG))
    a.valu("v_xor_b32", V(t1), V(vI), V(t0))
    a.valu("v_lshlrev_b32", V(t1), 4, V(t1))
    a.valu("v_lshl_add_u32", V(DK0), V(t0), 8, V(t1))
    a.valu("v_add_u32", V(t2), 8, V(t0))
    a.valu("v_xor_b32", V(t1), V(vI), V(t2))
    a.valu("v_lshlrev_b32", V(t1), 4, V(t1))
    a.valu("v_lshl_add_u32", V(DK1), V(t2), 8, V(t1))
    a.valu("v_lshlrev_b32", V(t1), 1, V(t0))
    a.valu("v_xor_b32", V(t1), V(vI), V(t1))
    a.valu("v_lshlrev_b32", V(t1), 4, V(t1))
    a.valu("v_lshl_add_u32", V(DV), V(t0), 8, V(t1))

    def tile_ops(isv, slot):
        ops = []
        if "nodma" in dbg:
            return ops
        g = sVg if isv else sKg
        for i in range(8):
            def f(i=i):
                a.salu("s_add_u32", "m0", S(sDM0), RING + slot * SLOT + i * 2048)
                if isv:
                    dma(V(DV), S(sV, 4), S(g), KVF)
                    a.salu("s_add_u32", S(g), S(g), 2048)
                else:
                    dma(V(DK1 if i & 1 else DK0), S(sK, 4), S(g), KVF)
                    if i & 1:
                        a.salu("s_add_u32", S(g), S(g), 4096)
            ops.append(f)
        return ops

    def run(ops):
        for f in ops:
            f()

    a.salu("s_mov_b32", S(sKg), 0)
    a.salu("s_mov_b32", S(sVg), 0)

    sW2, sWH = 61, 62
    a.salu("s_lshl_b32", S(sW2), S(sW), 1)
    a.salu("s_lshl_b32", S(sWH), S(sW), 13)
    for t in range(4):
        a.salu("s_xor_b32", S(sT2), S(sW2), t)
        a.salu("s_lshl_b32", S(sT2), S(sT2), 2)
        a.valu("v_add_u32", V(t0), S(sT2), V(vG))
        a.valu("v_xor_b32", V(t0), V(t0), V(vI))
        a.valu("v_lshlrev_b32", V(t0), 4, V(t0))
        a.valu("v_lshl_add_u32", V(t0), V(vI), 8, V(t0))
        a.valu("v_add_u32", V(t0), RING, V(t0))
        a.valu("v_add_u32", V(AK + t), S(sWH), V(t0))
        a.valu("v_subrev_u32", V(AK + 4 + t), S(sWH), V(t0))
    a.valu("v_lshrrev_b32", V(t0), 2, V(vI))
    a.valu("v_lshl_add_u32", V(t0), V(vG), 2, V(t0))
    a.valu("v_and_b32", V(t1), 7, V(t0))
    a.valu("v_and_b32", V(t2), 3, V(vI))
    a.valu("v_lshlrev_b32", V(t2), 3, V(t2))
    a.valu("v_lshl_add_u32", V(t2), V(t0), 8, V(t2))
    a.valu("v_add_u32", V(t2), RING, V(t2))
    for dt in range(8):
        a.valu("v_xor_b32", V(t0), dt, V(t1))
        a.valu("v_lshl_add_u32", V(t0), V(t0), 5, V(t2))
        a.valu("v_add_u32", V(AV + dt), S(sWH), V(t0))
        a.valu("v_subrev_u32", V(AV + 8 + dt), S(sWH), V(t0))

    def QA(Tt, r):
        k = Tt * 4 + r
        return 4 * k if k < 28 else 144 + 4 * (k - 28)

    def QA9(j):
        return 160 + 4 * j

    AFs = lambda p: 52 * p
    XFs = lambda p: 52 * p + 32
    WS = 104
    AW = 176
    WW = 184
    XA = 186
    WQA = 190
    DXv = 191
    a.valu("v_lshrrev_b32", V(t0), 2, V(vI))
    a.valu("v_lshl_add_u32", V(t1), V(vG), 3, V(t0))
    a.valu("v_and_b32", V(t2), 3, V(vI))
    a.valu("v_lshlrev_b32", V(t2), 4, V(t2))
    a.valu("v_lshl_add_u32", V(t2), V(t1), 8, V(t2))
    a.valu("v_and_b32", V(t3), 1, V(t0))
    a.valu("v_lshrrev_b32", V(t4), 3, V(vI))
    a.valu("v_and_b32", V(t5), 1, V(vG))
    a.valu("v_lshl_add_u32", V(t4), V(t5), 1, V(t4))
    for Tt in range(8):
        t, o = Tt >> 1, Tt & 1
        a.salu("s_xor_b32", S(sT2), S(sW2), t)
        a.valu("v_xor_b32", V(t0), S(sT2), V(t4))
        a.valu("v_lshl_add_u32", V(t0), V(t0), 6, V(t2))
        a.valu("v_xor_b32", V(t1), o, V(t3))
        a.valu("v_lshl_add_u32", V(AW + Tt), V(t1), 3, V(t0))
    a.salu("s_lshl_b32", S(sT2), S(sW), 4)
    a.valu("v_lshl_add_u32", V(t0), V(vG), 1, S(sT2))
    a.valu("v_lshlrev_b32", V(t1), 2, V(t5))
    a.valu("v_xor_b32", V(t1), V(t1), V(vI))
    a.valu("v_lshlrev_b32", V(t1), 4, V(t1))
    a.valu("v_lshl_add_u32", V(WW), V(t0), 8, V(t1))
    a.valu("v_xor_b32", V(t2), 128, V(WW))
    a.valu("v_add_u32", V(WW + 1), 2048, V(t2))
    a.valu("v_lshlrev_b32", V(t1), 4, V(vI))
    a.valu("v_lshl_add_u32", V(WQA), V(t0), 13, V(t1))
    a.valu("v_lshrrev_b32", V(t0), 1, V(vI))
    a.salu("s_lshl_b32", S(sT2), S(sW), 13)
    for e in range(2):
        a.valu("v_add_u32", V(t1), 4 * e, V(vG))
        a.valu("v_xor_b32", V(t1), V(t1), V(t0))
        a.valu("v_lshlrev_b32", V(t1), 4, V(t1))
        a.valu("v_lshl_add_u32", V(t1), V(vI), 7, V(t1))
        a.valu("v_add_u32", V(t1), XB, V(t1))
        a.valu("v_add_u32", V(XA + e), S(sT2), V(t1))
        a.valu("v_add_u32", V(XA + 2 + e), 8 * 2048, V(t1))
    a.valu("v_lshrrev_b32", V(t0), 3, V(vL))
    a.salu("s_lshl_b32", S(sT2), S(sW), 2)
    a.valu("v_add_u32", V(t1), S(sT2), V(vG))
    a.valu("v_and_b32", V(t2), 7, V(vL))
    a.valu("v_xor_b32", V(t1), V(t1), V(t2))
    a.valu("v_lshlrev_b32", V(t1), 4, V(t1))
    a.valu("v_lshl_add_u32", V(DXv), V(t0), 10, V(t1))
    a.salu("s_lshl_b32", S(sT2), S(sW), 13)
    a.valu("v_add_u32", V(DXv), S(sT2), V(DXv))

    PFA, PFD = 203, 204
    a.valu("v_lshlrev_b32", V(PFA), 7, V(vL))
    a.salu("s_lshl_b32", S(sT2), S(sW), 13)
    a.valu("v_add_u32", V(PFA), S(sT2), V(PFA))
    NPF = opt("npf", 4)
    pf_list = []
    for j in range(1, 1 + NPF):
        pf_list.append((sV if j & 1 else sK, (j >> 1) * 16384))

    def pf_op(j):
        srd, off = pf_list[j]

        def f():
            a.salu("s_mov_b32", S(sT3), off)
            bload("buffer_load_dword", V(PFD), V(PFA), S(srd, 4), S(sT3))
        return f

    def load_wq_ops(c):
        base = WS + (c % 4) * 16
        ops = []
        for j in range(2):
            for e in range(2):
                def f(j=j, e=e):
                    a.salu("s_add_u32", S(sT2), S(sWQoff), (c * 32 + 8 * j + e) * 8192)
                    bload("buffer_load_dwordx4", A(base + (j * 2 + e) * 4, 4), V(WQA), S(sWQ, 4), S(sT2))
                ops.append(f)
        return ops

    xlast = {}

    def issue_x_ops(c):
        lb = XB + (c & 1) * XSZ
        ops = []
        for i in range(9):
            def f(i=i):
                a.salu("s_add_u32", "m0", S(sDM0), lb + i * 2048)
                a.salu("s_mov_b32", S(sT3), i * 16384 + c * 128)
                dma(V(DXv), S(sX, 4), S(sT3))
                xlast[c] = a.vmn
            ops.append(f)
        return ops

    def write_wq_ops(c):
        base = WS + (c % 4) * 16
        boff = WB + (c % 3) * 8192
        ops = []
        for j in range(2):
            b0 = base + j * 8
            ops.append(lambda j=j, b0=b0: a.ds_write("ds_write_b128", V(WW + j), A(b0, 4), off=boff))
            ops.append(lambda j=j, b0=b0: a.ds_write("ds_write_b64", V(WW + j), A(b0 + 4, 2), off=boff + 256 + 8))
            ops.append(lambda j=j, b0=b0: a.ds_write("ds_write_b64", V(WW + j), A(b0 + 6, 2), off=boff + 256))
        return ops

    def frag_read_ops(i):
        p = i & 1
        boff = WB + (i % 3) * 8192
        xoff = ((i // 2) & 1) * XSZ
        ops = []
        for r in range(4):
            ops.append(lambda r=r: a.ds_read("ds_read_b128", A(XFs(p) + 4 * r, 4), V(XA + (i & 1)), off=xoff + r * 2048))
        ops.append(lambda: a.ds_read("ds_read_b128", A(XFs(p) + 16, 4), V(XA + 2 + (i & 1)), off=xoff))
        for Tt in range(8):
            ops.append(lambda Tt=Tt: a.ds_read("ds_read_b64_tr_b16", A(AFs(p) + Tt * 4, 2), V(AW + Tt), off=boff))
            ops.append(lambda Tt=Tt: a.ds_read("ds_read_b64_tr_b16", A(AFs(p) + Tt * 4 + 2, 2), V(AW + Tt), off=boff + 1024))
        return ops

    stamp(True)
    if stamps:
        a.misc(f"s_getreg_b32 s{SB + 2 * nst[0]}, hwreg(HW_REG_HW_ID)")
        nst[0] += 1
        a.misc(f"s_getreg_b32 s{SB + 2 * nst[0]}, hwreg(HW_REG_XCC_ID)")
        nst[0] += 1
    stamp()
    run(load_wq_ops(0))
    run(load_wq_ops(1))
    run(issue_x_ops(0))
    run(load_wq_ops(2))
    run(load_wq_ops(3))
    run(issue_x_ops(1))
    for i in list(range(112)) + list(range(144, 176)):
        a.valu("v_mov_b32", V(i), 0)
    run(write_wq_ops(0))
    run(write_wq_ops(1))
    run(load_wq_ops(4))
    run(tile_ops(False, slot_of(0)))
    a.waitcnt(vm=a.vmn - xlast[0], lgkm=0)
    a.barrier()
    run(frag_read_ops(0))

    lbl = [0]
    slow_lines = []

    def newlabel():
        lbl[0] += 1
        return f"{name}_n{lbl[0]}"

    def qproj():
        for i in range(16):
            p = i & 1
            main = []
            for Tt in range(8):
                for r in range(4):
                    main.append(lambda Tt=Tt, r=r: a.mfma(V(QA(Tt, r), 4), A(AFs(p) + Tt * 4, 4), A(XFs(p) + 4 * r, 4), V(QA(Tt, r), 4)))
                if Tt < 4:
                    main.append(lambda Tt=Tt: a.mfma(V(QA9(Tt & 3), 4), A(AFs(p) + Tt * 4, 4), A(XFs(p) + 16, 4), V(QA9(Tt & 3), 4)))
            n = len(main)
            g = []
            if i % 2 == 1 and (i + 3) // 2 < 8:
                g += issue_x_ops((i + 3) // 2)
            wr = write_wq_ops(i + 2) if i + 2 < 16 else []
            g2 = load_wq_ops(i + 5) if i + 5 < 16 else []
            if i % 2 == 0 and i // 2 < len(pf_list):
                g2 = g2 + [pf_op(i // 2)]
            rd = frag_read_ops(i + 1) if i + 1 < 16 else []
            streams = [([(0, n, f) for f in wr] + [(6, n - 6, f) for f in rd], 1),
                       ([(1, n, f) for f in g] + [(10, n, f) for f in g2], 1)]
            interleave(main, streams, budget=2)
            c = (i + 2) // 2
            if i % 2 == 0 and c < 8:
                a.waitcnt(vm=a.vmn - xlast[c], lgkm=0)
            else:
                a.waitcnt(lgkm=0)
            a.barrier()

    def max_ops(sb, n, ta):
        ops = [lambda: a.valu("v_max3_f32", V(ta), V(sb), V(sb + 1), V(sb + 2))]
        j = 3
        while j + 1 < n:
            ops.append(lambda j=j: a.valu("v_max3_f32", V(ta), V(ta), V(sb + j), V(sb + j + 1)))
            j += 2
        if j < n:
            ops.append(lambda j=j: a.valu("v_max_f32", V(ta), V(ta), V(sb + j)))
        return ops

    def check(tiles):
        if "nocheck" in dbg:
            return
        tc, tb, td = T + 5, T + 6, T + 7
        a.valu("v_max3_f32", V(tc), V(tiles[0][2]), V(tiles[1][2]), V(tiles[2][2]))
        if len(tiles) == 5:
            a.valu("v_max3_f32", V(tc), V(tc), V(tiles[3][2]), V(tiles[4][2]))
        else:
            a.valu("v_max_f32", V(tc), V(tc), V(tiles[3][2]))
        a.valu("v_cmp_lt_f32", "vcc", S(sThr), V(tc))
        L, LB = newlabel(), newlabel()
        a.nop(5)
        a.misc(f"s_cbranch_vccnz {L}")
        a.label(LB)
        main_lines = a.lines
        saved = (list(a.hist), a.pos, list(a.lgkm), list(a.vm))
        a.lines = slow_lines
        a.label(L)
        a.nop(8)
        for (sb, r, ta) in tiles:
            for pl in ("v_permlane16_swap_b32", "v_permlane32_swap_b32"):
                a.valu("v_mov_b32", V(tb), V(ta))
                a.valu(pl, V(ta), V(tb))
                a.valu("v_max_f32", V(ta), V(ta), V(tb))
            a.valu("v_cmp_eq_f32", "vcc", 0, V(LA(r)))
            a.valu("v_max_f32", V(tb), 0, V(ta))
            a.valu("v_cndmask_b32", V(ta), V(tb), V(ta), "vcc")
            for j in range(8):
                a.valu("v_sub_f32", V(sb + j), V(sb + j), V(ta))
            for e in range(4):
                a.valu("v_sub_f32", V(NM(r) + e), V(NM(r) + e), V(ta))
            a.valu("v_exp_f32", V(tb), "-" + V(tb))
            for e in range(4):
                a.valu("v_mul_f32", V(LA(r) + e), V(LA(r) + e), V(tb))
            for k in range(32):
                a.valu("v_accvgpr_read_b32", V(td), A(OA(r, 0) + k))
                a.valu("v_mul_f32", V(td), V(td), V(tb))
                a.valu("v_accvgpr_write_b32", A(OA(r, 0) + k), V(td))
        a.nop(4)
        a.misc(f"s_branch {LB}")
        a.lines = main_lines
        a.hist, a.pos, a.lgkm, a.vm = list(saved[0]), saved[1], list(saved[2]), list(saved[3])

    def exp_ops(bases):
        ops = []
        for b0 in bases:
            for j in range(8):
                ops.append(lambda b0=b0, j=j: a.valu("v_exp_f32", V(b0 + j), V(b0 + j)))
            for e in range(4):
                ops.append(lambda b0=b0, e=e: a.valu("v_cvt_pk_bf16_f32", V(b0 + e), V(b0 + 2 * e), V(b0 + 2 * e + 1)))
        return ops

    def opt(key, default):
        v = [d[len(key):] for d in dbg if d.startswith(key) and d[len(key):].isdigit()]
        return int(v[0]) if v else default
    LEAD = opt("lead", 8)
    BUD = opt("bud", 2)
    VXC = opt("vxc", 2)
    FSC = opt("fsc", 1)
    DSP = int([d[3:] for d in dbg if d.startswith('dsp')][0]) if any(d.startswith('dsp') for d in dbg) else 6

    def frag_stream(items):
        st = []
        for k, (fu, lu, fn) in enumerate(items):
            rel = 0 if k < NFR else items[k - NFR][1] + 1
            dl = max(rel, fu - LEAD)
            st.append((rel, dl, (lambda fn=fn, k=k: fn(k % NFR))))
        return st

    class Seg:
        def __init__(self):
            self.main, self.items, self.vx, self.dm = [], [], [], []

        def tiles(self, h):
            u = h & 1
            tl = [(SS(r, 2 * u), r, T + r) for r in range(4)]
            if u == 0:
                tl.append((S9, 4, T + 4))
            return tl

        def X(self, h):
            kslot = slot_of(2 * (h >> 1)) * SLOT
            tl = self.tiles(h)
            for ktl in range(2):
                kt = 2 * (h & 1) + ktl
                for t in range(4):
                    k = len(self.items)
                    self.items.append((len(self.main), len(self.main) + len(tl) - 1,
                                       lambda sl, kt=kt, t=t: a.ds_read("ds_read_b128", V(FR + 4 * sl, 4), V(AK + 4 * (kt >> 1) + t), off=kslot + kt * 4096)))
                    for (sb, r, _) in tl:
                        d = V(sb + 4 * ktl, 4)
                        self.main.append(lambda d=d, t=t, r=r, k=k: a.mfma(d, V(FR + 4 * (k % NFR), 4), A(QF(r, t), 4), d if t else V(NM(r), 4)))

        def Y(self, h):
            vslot = slot_of(2 * (h >> 1) + 1) * SLOT
            u = h & 1
            tl = self.tiles(h)
            for (sb, r, _) in tl:
                self.main.append(lambda sb=sb, r=r: a.mfma(V(LA(r), 4), V(ONES, 4), V(sb, 4), V(LA(r), 4)))
            for dt in range(8):
                k = len(self.items)

                def rd(sl, dt=dt):
                    a.ds_read("ds_read_b64_tr_b16", V(FR + 4 * sl, 2), V(AV + 8 * u + dt), off=vslot + u * 8192)
                    a.ds_read("ds_read_b64_tr_b16", V(FR + 4 * sl + 2, 2), V(AV + 8 * u + dt), off=vslot + u * 8192 + 4096)
                self.items.append((len(self.main), len(self.main) + len(tl) - 1, rd))
                for (sb, r, _) in tl:
                    self.main.append(lambda dt=dt, sb=sb, r=r, k=k: a.mfma(A(OA(r, dt), 4), V(FR + 4 * (k % NFR), 4), V(sb, 4), A(OA(r, dt), 4)))

        def exp(self, h, rel, dl):
            self.vx += [(rel, dl, f) for f in exp_ops([sb for sb, _, _ in self.tiles(h)])]

        def mx(self, h, rel, dl):
            ol = [max_ops(sb, 8, ta) for sb, _, ta in self.tiles(h)]
            for j in range(len(ol[0])):
                for o in ol:
                    self.vx.append((rel, dl, o[j]))

        def chk(self, h):
            tl = self.tiles(h)
            self.main.append(lambda: check(tl))

        def emit(self):
            fs = frag_stream(self.items)
            interleave(self.main, [(fs, FSC), (self.vx, VXC), (self.dm, 1)], budget=BUD)

    def sync():
        a.waitcnt(vm=0, lgkm=0)
        if "nobar" not in dbg:
            a.barrier()

    def body(s, first=False):
        g = Seg()
        if not first:
            g.Y(2 * s - 2)
            g.mx(2 * s - 1, 0, len(g.main))
            g.dm = [(DSP * k, 10 ** 6, f) for k, f in enumerate(tile_ops(True, slot_of(2 * s + 1)) + tile_ops(False, slot_of(2 * s + 2)))]
            g.chk(2 * s - 1)
            g.main.append(lambda: seg(0))
        n0 = len(g.main)
        g.X(2 * s)
        g.main.append(lambda: seg(1))
        if not first:
            g.exp(2 * s - 1, n0, len(g.main))
            n0 = len(g.main)
            g.Y(2 * s - 1)
            g.mx(2 * s, n0 + 3, len(g.main))
        else:
            g.mx(2 * s, len(g.main), len(g.main))
        g.chk(2 * s)
        g.main.append(lambda: seg(2))
        n0 = len(g.main)
        g.X(2 * s + 1)
        g.exp(2 * s, n0, len(g.main))
        g.dm = [(r, min(d, len(g.main)), f) for (r, d, f) in g.dm]
        g.emit()
        seg(3)
        a.waitcnt(vm=0, lgkm=0)
        seg(4)
        sync()
        seg(5)

    def attention():
        qproj()
        if "qonly" in dbg:
            a.misc("s_endpgm")
        run(tile_ops(True, slot_of(1)))
        run(tile_ops(False, slot_of(2)))
        stamp()
        tq = 192
        for r in range(4):
            for t in range(4):
                lo, hi = QA(2 * t, r), QA(2 * t + 1, r)
                for k, src in enumerate((lo, lo + 2, hi, hi + 2)):
                    a.valu("v_mul_f32", V(src), S(sC), V(src))
                    a.valu("v_mul_f32", V(src + 1), S(sC), V(src + 1))
                    a.valu("v_cvt_pk_bf16_f32", V(tq + k), V(src), V(src + 1))
                for k in range(4):
                    a.valu("v_accvgpr_write_b32", A(QF(r, t) + k), V(tq + k))
        vl, ta, tb = 200, 201, 202
        a.valu("v_mbcnt_lo_u32_b32", V(vl), -1, 0)
        a.valu("v_mbcnt_hi_u32_b32", V(vl), -1, V(vl))
        a.valu("v_lshlrev_b32", V(ta), 4, V(vl))
        for j in range(2):
            lo, hi = QA9(2 * j), QA9(2 * j + 1)
            for k, src in enumerate((lo, lo + 2, hi, hi + 2)):
                a.valu("v_mul_f32", V(src), S(sC), V(src))
                a.valu("v_mul_f32", V(src + 1), S(sC), V(src + 1))
                a.valu("v_cvt_pk_bf16_f32", V(tq + 4 * j + k), V(src), V(src + 1))
            if j == 0:
                a.salu("s_lshl_b32", S(sT2), S(sW), 11)
                a.valu("v_add_u32", V(tb), S(sT2), V(ta))
                a.valu("v_subrev_u32", V(vl), S(sT2), V(ta))
            a.ds_write("ds_write_b128", V(tb), V(tq + 4 * j, 4), off=WB + j * 1024)
        a.waitcnt(lgkm=0)
        a.barrier()
        for t in range(4):
            a.ds_read("ds_read_b128", A(QF(4, t), 4), V(tb if t < 2 else vl), off=WB + t * 1024)
        a.valu("v_mov_b32", V(tb), 0)
        for i in range(160):
            a.valu("v_accvgpr_write_b32", A(i), V(tb))
        for i in range(40):
            a.valu("v_mov_b32", V(NM(0) + i), 0)
        for i in range(4):
            a.valu("v_mov_b32", V(ONES + i), "0x3f803f80")
        a.salu("s_mov_b32", S(sThr), "0xff800000")
        a.waitcnt(vm=16, lgkm=0)
        a.barrier()
        if stamps:
            for k in range(12):
                a.salu("s_mov_b32", S(86 + k), 0)
        seg(11)
        body(0, True)
        body(1)
        a.salu("s_mov_b32", S(sIt), 0)
        a.flush()
        Lp = newlabel()
        a.label(Lp)
        body(2)
        body(3)
        a.salu("s_add_u32", S(sIt), S(sIt), 1)
        a.salu("s_cmp_lt_u32", None, S(sIt), 3)
        a.nop(8)
        a.misc(f"s_cbranch_scc1 {Lp}")
        g = Seg()
        g.Y(14)
        g.mx(15, 0, len(g.main))
        g.chk(15)
        g.exp(15, len(g.main), len(g.main))
        g.Y(15)
        g.emit()
        a.flush()

    orig_chk = Seg.chk

    def chk2(self, h):
        orig_chk(self, h)
        if h == 1:
            self.main.append(lambda: a.salu("s_mov_b32", S(sThr), hex(f32bits(THR))))
    Seg.chk = chk2

    attention()
    a.waitcnt(vm=0, lgkm=0)
    stamp()

    vL, vG, vI = 0, 1, 2
    t0, t1, t2, t3 = 4, 5, 6, 7
    vSt = 8
    a.valu("v_mbcnt_lo_u32_b32", V(vL), -1, 0)
    a.valu("v_mbcnt_hi_u32_b32", V(vL), -1, V(vL))
    a.valu("v_lshrrev_b32", V(vG), 4, V(vL))
    a.valu("v_and_b32", V(vI), 15, V(vL))
    a.valu("v_and_b32", V(t0), 1, V(vG))
    a.valu("v_lshrrev_b32", V(t1), 1, V(vG))
    a.valu("v_lshl_add_u32", V(t0), V(t0), 1, V(t1))
    a.valu("v_lshlrev_b32", V(t1), 4, V(vI))
    a.valu("v_lshl_add_u32", V(vSt), V(t0), 8, V(t1))
    a.barrier()
    CB = 0
    PB = 4096
    a.valu("v_mov_b32", V(t2), V(NM(4)))
    a.valu("v_mov_b32", V(t3), V(LA(4)))
    a.salu("s_lshl_b32", S(sT2), S(sW), 7)
    a.valu("v_lshlrev_b32", V(t0), 3, V(vI))
    a.valu("v_add_u32", V(t1), S(sT2), V(t0))
    a.ds_write("ds_write_b64", V(t1), V(t2, 2), off=CB)
    a.waitcnt(lgkm=0)
    a.barrier()
    ml = 12
    for w in range(2):
        a.ds_read("ds_read_b64", V(ml + 2 * w, 2), V(t0), off=CB + w * 128)
    a.valu("v_min_f32", V(t1), V(ml), V(ml + 2))
    a.valu("v_mov_b32", V(t2), 0)
    for w in range(2):
        a.valu("v_sub_f32", V(t3), V(t1), V(ml + 2 * w))
        a.valu("v_exp_f32", V(t3), V(t3))
        a.valu("v_fma_f32", V(t2), V(t3), V(ml + 2 * w + 1), V(t2))
    a.valu("v_sub_f32", V(t3), V(t1), V(NM(4)))
    a.valu("v_exp_f32", V(t3), V(t3))
    a.valu("v_rcp_f32", V(t2), V(t2))
    a.valu("v_mul_f32", V(t3), V(t3), V(t2))
    NB = 32
    for k in range(32):
        a.valu("v_accvgpr_read_b32", V(NB + k), A(OA(4, 0) + k))
    for k in range(32):
        a.valu("v_mul_f32", V(NB + k), V(NB + k), V(t3))
    a.valu("v_lshlrev_b32", V(t0), 4, V(vL))
    a.salu("s_lshl_b32", S(sT2), S(sW), 13)
    a.valu("v_add_u32", V(t1), S(sT2), V(t0))
    for dt in range(8):
        a.ds_write("ds_write_b128", V(t1), V(NB + 4 * dt, 4), off=PB + dt * 1024)
    for r in range(4):
        a.valu("v_rcp_f32", V(t2), V(LA(r)))
        a.salu("s_lshl_b32", S(sT2), S(sW), 12)
        a.salu("s_add_u32", S(sT2), S(sT2), r * 1024)
        for kk in range(4):
            o = 144 + ((r * 4 + kk) % 8) * 8
            for e in range(8):
                a.valu("v_accvgpr_read_b32", V(o + e), A(OA(r, 2 * kk) + e))
            for e in range(8):
                a.valu("v_mul_f32", V(o + e), V(o + e), V(t2))
            for e in range(4):
                a.valu("v_cvt_pk_bf16_f32", V(o + e), V(o + 2 * e), V(o + 2 * e + 1))
            a.valu("v_permlane16_swap_b32", V(o), V(o + 2))
            a.valu("v_permlane16_swap_b32", V(o + 1), V(o + 3))
            a.salu("s_add_u32", S(sT3), S(sT2), kk * 9216)
            bstore("buffer_store_dwordx4", V(o, 4), V(vSt), S(sO, 4), S(sT3))
    a.waitcnt(lgkm=0)
    a.barrier()
    a.salu("s_lshl_b32", S(sT2), S(sW), 12)
    a.valu("v_add_u32", V(t1), S(sT2), V(t0))
    RB = 64
    for j in range(4):
        for w in range(2):
            a.ds_read("ds_read_b128", V(RB + (j * 2 + w) * 4, 4), V(t1), off=PB + w * 8192 + j * 1024)
    a.salu("s_mul_i32", S(sT2), S(sW), 2 * 9216)
    a.salu("s_add_u32", S(sT2), S(sT2), 8 * 1024)
    for j in range(4):
        b0 = RB + j * 8
        for e in range(4):
            a.valu("v_add_f32", V(b0 + e), V(b0 + e), V(b0 + 4 + e))
    for jj in range(2):
        o = 144 + jj * 4
        b0, b1 = RB + (2 * jj) * 8, RB + (2 * jj + 1) * 8
        a.valu("v_cvt_pk_bf16_f32", V(o), V(b0), V(b0 + 1))
        a.valu("v_cvt_pk_bf16_f32", V(o + 1), V(b0 + 2), V(b0 + 3))
        a.valu("v_cvt_pk_bf16_f32", V(o + 2), V(b1), V(b1 + 1))
        a.valu("v_cvt_pk_bf16_f32", V(o + 3), V(b1 + 2), V(b1 + 3))
        a.valu("v_permlane16_swap_b32", V(o), V(o + 2))
        a.valu("v_permlane16_swap_b32", V(o + 1), V(o + 3))
        a.salu("s_add_u32", S(sT3), S(sT2), jj * 9216)
        bstore("buffer_store_dwordx4", V(o, 4), V(vSt), S(sO, 4), S(sT3))
    if stamps:
        stamp()
        stamp(True)
        a.salu("s_add_u32", S(sX), "s12", 0x3000000)
        a.salu("s_addc_u32", S(sX + 1), "s13", 0)
        a.salu("s_mov_b32", S(sX + 2), 0x100000)
        a.salu("s_lshl_b32", S(sT2), "s2", 10)
        a.salu("s_lshl_b32", S(sT3), S(sW), 8)
        a.salu("s_add_u32", S(sT2), S(sT2), S(sT3))
        a.salu("s_mov_b64", "exec", 1)
        a.valu("v_mov_b32", V(t1), 0)
        for i in range(nst[0]):
            a.valu("v_mov_b32", V(t0), S(SB + 2 * i))
            a.bstore("buffer_store_dword", V(t0), V(t1), S(sX, 4), S(sT2), off=4 * i)
        for i in range(12):
            a.valu("v_mov_b32", V(t0), S(86 + i))
            a.bstore("buffer_store_dword", V(t0), V(t1), S(sX, 4), S(sT2), off=128 + 4 * i)
    a.label(f"{name}_done")
    a.misc("s_endpgm")
    a.lines += slow_lines
    return a
```

```python
import struct
from asmlib import Asm, V, S, A
from sched import interleave

RING = 16384
SLOT = 16384
WB = 0
XB = 24576
XSZ = 18432
LDS_K1 = 81920
THR = 8.0
BLOCK = 128

CSCALE = 1.4426950408889634 / (128.0 ** 0.5)


def f32bits(x):
    return struct.unpack("<I", struct.pack("<f", x))[0]


def OA(r, dt):
    return (r * 8 + dt) * 4


def QF(r, t):
    return 160 + (r * 4 + t) * 4


def SS(r, kt):
    return (r * 4 + kt) * 4


S9 = 64


def NM(r):
    return 72 + 4 * r


def LA(r):
    return 92 + 4 * r


ONES = 112
DK0, DK1, DV = 116, 117, 118
T = 120
FR = 144
NFR = 16
AK = 208
AV = 216

sX, sWQ, sK, sV, sO = 16, 20, 24, 28, 32
sW = 36
sC = 37
sT0 = 38
sT1 = 39
sWQoff = 48
sDM0 = 49
sT2 = 51
sT3 = 52
sH = 53
sIt, sKg, sVg = 56, 57, 58
sThr, sLow = 59, 60


def slot_of(tile):
    return (tile + 3) % 4


def gen_k1(name, stamps=False, nt=True, dbg=()):
    a = Asm()
    a.vmn = 0
    nst = [0]
    SB = 70

    def stamp(real=False):
        if not stamps:
            return
        a.waitcnt(lgkm=0)
        a.misc(f"{'s_memrealtime' if real else 's_memtime'} s[{SB + 2 * nst[0]}:{SB + 1 + 2 * nst[0]}]")
        a.misc("s_waitcnt lgkmcnt(0)")
        nst[0] += 1

    def seg(k):
        if not stamps or "seg" not in dbg:
            return
        a.misc("s_memtime s[98:99]")
        a.waitcnt(lgkm=0)
        a.salu("s_sub_u32", "s100", "s98", "s101")
        a.salu("s_add_u32", S(86 + k), S(86 + k), "s100")
        a.salu("s_mov_b32", "s101", "s98")

    def opt(key, default):
        v = [d[len(key):] for d in dbg if d.startswith(key) and d[len(key):].isdigit()]
        return int(v[0]) if v else default

    a.label(name)

    def dma(voff, srd, soff, flags=""):
        a.dma(voff, srd, soff, flags=flags)
        a.vmn += 1

    def bload(*x, **k):
        a.bload(*x, **k)
        a.vmn += 1

    def bstore(*x, **k):
        a.bstore(*x, **k)
        a.vmn += 1

    KVF = "nt" if nt else ""

    a.salu("s_cmp_ge_u32", None, "s2", 512)
    a.misc(f"s_cbranch_scc1 {name}_done")
    a.misc("s_load_dwordx8 s[4:11], s[0:1], 0")
    a.misc("s_load_dwordx8 s[40:47], s[0:1], 40")
    a.misc("s_load_dwordx2 s[12:13], s[0:1], 96")
    vL, vG, vI = 10, 11, 12
    t0, t1, t2, t3, t4, t5 = 14, 15, 16, 17, 18, 19
    a.valu("v_and_b32", V(vL), 63, "v0")
    a.valu("v_lshrrev_b32", V(t0), 6, "v0")
    a.valu("v_lshrrev_b32", V(vG), 4, V(vL))
    a.valu("v_and_b32", V(vI), 15, V(vL))
    a.valu("v_readfirstlane_b32", S(sW), V(t0))
    a.misc("s_waitcnt lgkmcnt(0)")
    a.salu("s_lshr_b32", S(sT0), "s2", 2)
    a.salu("s_and_b32", S(sT0), S(sT0), 1)
    a.salu("s_cmp_eq_u32", None, S(sT0), 0)
    for i in range(8):
        a.salu("s_cselect_b32", S(4 + i), S(4 + i), S(40 + i))
    a.salu("s_lshr_b32", S(sT1), "s2", 7)
    a.salu("s_and_b32", S(sT2), "s2", 2)
    a.salu("s_lshl_b32", S(sT2), S(sT2), 1)
    a.salu("s_add_u32", S(sT1), S(sT1), S(sT2))
    a.salu("s_lshr_b32", S(sH), "s2", 3)
    a.salu("s_and_b32", S(sH), S(sH), 15)
    a.salu("s_and_b32", S(sT2), "s2", 1)
    a.salu("s_lshl_b32", S(sT2), S(sT2), 4)
    a.salu("s_add_u32", S(sH), S(sH), S(sT2))
    a.salu("s_mul_i32", S(sT2), S(sT1), 147456)
    a.salu("s_add_u32", S(sX), "s4", S(sT2))
    a.salu("s_addc_u32", S(sX + 1), "s5", 0)
    a.salu("s_mov_b32", S(sX + 2), 147456)
    a.salu("s_mov_b32", S(sX + 3), "0x00020000")
    a.salu("s_mov_b32", S(sWQ), "s10")
    a.salu("s_mov_b32", S(sWQ + 1), "s11")
    a.salu("s_mov_b32", S(sWQ + 2), 4194304)
    a.salu("s_mov_b32", S(sWQ + 3), "0x00020000")
    a.salu("s_lshl_b32", S(sT3), S(sT1), 5)
    a.salu("s_add_u32", S(sT3), S(sT3), S(sH))
    a.salu("s_lshl_b32", S(sT2), S(sT3), 17)
    a.salu("s_add_u32", S(sK), "s6", S(sT2))
    a.salu("s_addc_u32", S(sK + 1), "s7", 0)
    a.salu("s_mov_b32", S(sK + 2), 131072)
    a.salu("s_mov_b32", S(sK + 3), "0x00020000")
    a.salu("s_add_u32", S(sV), "s8", S(sT2))
    a.salu("s_addc_u32", S(sV + 1), "s9", 0)
    a.salu("s_mov_b32", S(sV + 2), 131072)
    a.salu("s_mov_b32", S(sV + 3), "0x00020000")
    a.salu("s_mul_i32", S(sT2), S(sT0), 9437184)
    a.salu("s_mul_i32", S(sT3), S(sT3), 36864)
    a.salu("s_add_u32", S(sT2), S(sT2), S(sT3))
    a.salu("s_add_u32", S(sO), "s12", S(sT2))
    a.salu("s_addc_u32", S(sO + 1), "s13", 0)
    a.salu("s_mov_b32", S(sO + 2), 36864)
    a.salu("s_mov_b32", S(sO + 3), "0x00020000")
    a.salu("s_lshl_b32", S(sWQoff), S(sH), 8)
    a.salu("s_mov_b32", S(sC), hex(f32bits(CSCALE)))
    a.salu("s_lshl_b32", S(sDM0), S(sW), 10)

    a.salu("s_lshl_b32", S(sT2), S(sW), 2)
    a.valu("v_add_u32", V(t0), S(sT2), V(vG))
    a.valu("v_xor_b32", V(t1), V(vI), V(t0))
    a.valu("v_lshlrev_b32", V(t1), 4, V(t1))
    a.valu("v_lshl_add_u32", V(DK0), V(t0), 8, V(t1))
    a.valu("v_add_u32", V(t2), 8, V(t0))
    a.valu("v_xor_b32", V(t1), V(vI), V(t2))
    a.valu("v_lshlrev_b32", V(t1), 4, V(t1))
    a.valu("v_lshl_add_u32", V(DK1), V(t2), 8, V(t1))
    a.valu("v_lshlrev_b32", V(t1), 1, V(t0))
    a.valu("v_xor_b32", V(t1), V(vI), V(t1))
    a.valu("v_lshlrev_b32", V(t1), 4, V(t1))
    a.valu("v_lshl_add_u32", V(DV), V(t0), 8, V(t1))

    def tile_ops(isv, slot):
        ops = []
        if "nodma" in dbg:
            return ops
        g = sVg if isv else sKg
        for i in range(8):
            def f(i=i):
                a.salu("s_add_u32", "m0", S(sDM0), RING + slot * SLOT + i * 2048)
                if isv:
                    dma(V(DV), S(sV, 4), S(g), KVF)
                    a.salu("s_add_u32", S(g), S(g), 2048)
                else:
                    dma(V(DK1 if i & 1 else DK0), S(sK, 4), S(g), KVF)
                    if i & 1:
                        a.salu("s_add_u32", S(g), S(g), 4096)
            ops.append(f)
        return ops

    def run(ops):
        for f in ops:
            f()

    a.salu("s_mov_b32", S(sKg), 0)
    a.salu("s_mov_b32", S(sVg), 0)

    sW2, sWH = 61, 62
    a.salu("s_lshl_b32", S(sW2), S(sW), 1)
    a.salu("s_lshl_b32", S(sWH), S(sW), 13)
    for t in range(4):
        a.salu("s_xor_b32", S(sT2), S(sW2), t)
        a.salu("s_lshl_b32", S(sT2), S(sT2), 2)
        a.valu("v_add_u32", V(t0), S(sT2), V(vG))
        a.valu("v_xor_b32", V(t0), V(t0), V(vI))
        a.valu("v_lshlrev_b32", V(t0), 4, V(t0))
        a.valu("v_lshl_add_u32", V(t0), V(vI), 8, V(t0))
        a.valu("v_add_u32", V(t0), RING, V(t0))
        a.valu("v_add_u32", V(AK + t), S(sWH), V(t0))
        a.valu("v_subrev_u32", V(AK + 4 + t), S(sWH), V(t0))
    a.valu("v_lshrrev_b32", V(t0), 2, V(vI))
    a.valu("v_lshl_add_u32", V(t0), V(vG), 2, V(t0))
    a.valu("v_and_b32", V(t1), 7, V(t0))
    a.valu("v_and_b32", V(t2), 3, V(vI))
    a.valu("v_lshlrev_b32", V(t2), 3, V(t2))
    a.valu("v_lshl_add_u32", V(t2), V(t0), 8, V(t2))
    a.valu("v_add_u32", V(t2), RING, V(t2))
    for dt in range(8):
        a.valu("v_xor_b32", V(t0), dt, V(t1))
        a.valu("v_lshl_add_u32", V(t0), V(t0), 5, V(t2))
        a.valu("v_add_u32", V(AV + dt), S(sWH), V(t0))
        a.valu("v_subrev_u32", V(AV + 8 + dt), S(sWH), V(t0))

    def QA(Tt, r):
        k = Tt * 4 + r
        return 4 * k if k < 28 else 144 + 4 * (k - 28)

    def QA9(j):
        return 160 + 4 * j

    AFs = lambda p: 52 * p
    XFs = lambda p: 52 * p + 32
    WS = 104
    AW = 176
    WW = 184
    XA = 186
    WQA = 190
    DXv = 191
    a.valu("v_lshrrev_b32", V(t0), 2, V(vI))
    a.valu("v_lshl_add_u32", V(t1), V(vG), 3, V(t0))
    a.valu("v_and_b32", V(t2), 3, V(vI))
    a.valu("v_lshlrev_b32", V(t2), 4, V(t2))
    a.valu("v_lshl_add_u32", V(t2), V(t1), 8, V(t2))
    a.valu("v_and_b32", V(t3), 1, V(t0))
    a.valu("v_lshrrev_b32", V(t4), 3, V(vI))
    a.valu("v_and_b32", V(t5), 1, V(vG))
    a.valu("v_lshl_add_u32", V(t4), V(t5), 1, V(t4))
    for Tt in range(8):
        t, o = Tt >> 1, Tt & 1
        a.salu("s_xor_b32", S(sT2), S(sW2), t)
        a.valu("v_xor_b32", V(t0), S(sT2), V(t4))
        a.valu("v_lshl_add_u32", V(t0), V(t0), 6, V(t2))
        a.valu("v_xor_b32", V(t1), o, V(t3))
        a.valu("v_lshl_add_u32", V(AW + Tt), V(t1), 3, V(t0))
    a.salu("s_lshl_b32", S(sT2), S(sW), 4)
    a.valu("v_lshl_add_u32", V(t0), V(vG), 1, S(sT2))
    a.valu("v_lshlrev_b32", V(t1), 2, V(t5))
    a.valu("v_xor_b32", V(t1), V(t1), V(vI))
    a.valu("v_lshlrev_b32", V(t1), 4, V(t1))
    a.valu("v_lshl_add_u32", V(WW), V(t0), 8, V(t1))
    a.valu("v_xor_b32", V(t2), 128, V(WW))
    a.valu("v_add_u32", V(WW + 1), 2048, V(t2))
    a.valu("v_lshlrev_b32", V(t1), 4, V(vI))
    a.valu("v_lshl_add_u32", V(WQA), V(t0), 13, V(t1))
    a.valu("v_lshrrev_b32", V(t0), 1, V(vI))
    a.salu("s_lshl_b32", S(sT2), S(sW), 13)
    for e in range(2):
        a.valu("v_add_u32", V(t1), 4 * e, V(vG))
        a.valu("v_xor_b32", V(t1), V(t1), V(t0))
        a.valu("v_lshlrev_b32", V(t1), 4, V(t1))
        a.valu("v_lshl_add_u32", V(t1), V(vI), 7, V(t1))
        a.valu("v_add_u32", V(t1), XB, V(t1))
        a.valu("v_add_u32", V(XA + e), S(sT2), V(t1))
        a.valu("v_add_u32", V(XA + 2 + e), 8 * 2048, V(t1))
    a.valu("v_lshrrev_b32", V(t0), 3, V(vL))
    a.salu("s_lshl_b32", S(sT2), S(sW), 2)
    a.valu("v_add_u32", V(t1), S(sT2), V(vG))
    a.valu("v_and_b32", V(t2), 7, V(vL))
    a.valu("v_xor_b32", V(t1), V(t1), V(t2))
    a.valu("v_lshlrev_b32", V(t1), 4, V(t1))
    a.valu("v_lshl_add_u32", V(DXv), V(t0), 10, V(t1))
    a.salu("s_lshl_b32", S(sT2), S(sW), 13)
    a.valu("v_add_u32", V(DXv), S(sT2), V(DXv))

    PFA, PFD = 203, 204
    a.valu("v_lshlrev_b32", V(PFA), 7, V(vL))
    a.salu("s_lshl_b32", S(sT2), S(sW), 13)
    a.valu("v_add_u32", V(PFA), S(sT2), V(PFA))
    NPF = opt("npf", 0)
    pf_list = []
    for j in range(1, 1 + NPF):
        pf_list.append((sV if j & 1 else sK, (j >> 1) * 16384))

    def pf_op(j):
        srd, off = pf_list[j]

        def f():
            a.salu("s_mov_b32", S(sT3), off)
            bload("buffer_load_dword", V(PFD), V(PFA), S(srd, 4), S(sT3))
        return f

    def load_wq_ops(c):
        base = WS + (c % 4) * 16
        ops = []
        for j in range(2):
            for e in range(2):
                def f(j=j, e=e):
                    a.salu("s_add_u32", S(sT2), S(sWQoff), (c * 32 + 8 * j + e) * 8192)
                    bload("buffer_load_dwordx4", A(base + (j * 2 + e) * 4, 4), V(WQA), S(sWQ, 4), S(sT2))
                ops.append(f)
        return ops

    xlast = {}

    def issue_x_ops(c):
        lb = XB + (c & 1) * XSZ
        ops = []
        for i in range(9):
            def f(i=i):
                a.salu("s_add_u32", "m0", S(sDM0), lb + i * 2048)
                a.salu("s_mov_b32", S(sT3), i * 16384 + c * 128)
                dma(V(DXv), S(sX, 4), S(sT3))
                xlast[c] = a.vmn
            ops.append(f)
        return ops

    def write_wq_ops(c):
        base = WS + (c % 4) * 16
        boff = WB + (c % 3) * 8192
        ops = []
        for j in range(2):
            b0 = base + j * 8
            ops.append(lambda j=j, b0=b0: a.ds_write("ds_write_b128", V(WW + j), A(b0, 4), off=boff))
            ops.append(lambda j=j, b0=b0: a.ds_write("ds_write_b64", V(WW + j), A(b0 + 4, 2), off=boff + 256 + 8))
            ops.append(lambda j=j, b0=b0: a.ds_write("ds_write_b64", V(WW + j), A(b0 + 6, 2), off=boff + 256))
        return ops

    def frag_read_ops(i):
        p = i & 1
        boff = WB + (i % 3) * 8192
        xoff = ((i // 2) & 1) * XSZ
        ops = []
        for r in range(4):
            ops.append(lambda r=r: a.ds_read("ds_read_b128", A(XFs(p) + 4 * r, 4), V(XA + (i & 1)), off=xoff + r * 2048))
        ops.append(lambda: a.ds_read("ds_read_b128", A(XFs(p) + 16, 4), V(XA + 2 + (i & 1)), off=xoff))
        for Tt in range(8):
            ops.append(lambda Tt=Tt: a.ds_read("ds_read_b64_tr_b16", A(AFs(p) + Tt * 4, 2), V(AW + Tt), off=boff))
            ops.append(lambda Tt=Tt: a.ds_read("ds_read_b64_tr_b16", A(AFs(p) + Tt * 4 + 2, 2), V(AW + Tt), off=boff + 1024))
        return ops

    stamp(True)
    if stamps:
        a.misc(f"s_getreg_b32 s{SB + 2 * nst[0]}, hwreg(HW_REG_HW_ID)")
        nst[0] += 1
        a.misc(f"s_getreg_b32 s{SB + 2 * nst[0]}, hwreg(HW_REG_XCC_ID)")
        nst[0] += 1
    stamp()
    run(load_wq_ops(0))
    run(load_wq_ops(1))
    run(issue_x_ops(0))
    run(load_wq_ops(2))
    run(load_wq_ops(3))
    run(issue_x_ops(1))
    for i in list(range(112)) + list(range(144, 176)):
        a.valu("v_mov_b32", V(i), 0)
    run(write_wq_ops(0))
    run(write_wq_ops(1))
    run(load_wq_ops(4))
    run(tile_ops(False, slot_of(0)))
    a.waitcnt(vm=a.vmn - xlast[0], lgkm=0)
    a.barrier()
    run(frag_read_ops(0))

    lbl = [0]
    slow_lines = []

    def newlabel():
        lbl[0] += 1
        return f"{name}_n{lbl[0]}"

    def qproj():
        for i in range(16):
            p = i & 1
            main = []
            for Tt in range(8):
                for r in range(4):
                    main.append(lambda Tt=Tt, r=r: a.mfma(V(QA(Tt, r), 4), A(AFs(p) + Tt * 4, 4), A(XFs(p) + 4 * r, 4), V(QA(Tt, r), 4)))
                if Tt < 4:
                    main.append(lambda Tt=Tt: a.mfma(V(QA9(Tt & 3), 4), A(AFs(p) + Tt * 4, 4), A(XFs(p) + 16, 4), V(QA9(Tt & 3), 4)))
            n = len(main)
            g = []
            if i % 2 == 1 and (i + 3) // 2 < 8:
                g += issue_x_ops((i + 3) // 2)
            wr = write_wq_ops(i + 2) if i + 2 < 16 else []
            g2 = load_wq_ops(i + 5) if i + 5 < 16 else []
            if i % 2 == 0 and i // 2 < len(pf_list):
                g2 = g2 + [pf_op(i // 2)]
            rd = frag_read_ops(i + 1) if i + 1 < 16 else []
            streams = [([(0, n, f) for f in wr] + [(6, n - 6, f) for f in rd], 1),
                       ([(1, n, f) for f in g] + [(10, n, f) for f in g2], 1)]
            interleave(main, streams, budget=2)
            c = (i + 2) // 2
            if i % 2 == 0 and c < 8:
                a.waitcnt(vm=a.vmn - xlast[c], lgkm=0)
            else:
                a.waitcnt(lgkm=0)
            a.barrier()

    def max_ops(sb, n, ta):
        ops = [lambda: a.valu("v_max3_f32", V(ta), V(sb), V(sb + 1), V(sb + 2))]
        j = 3
        while j + 1 < n:
            ops.append(lambda j=j: a.valu("v_max3_f32", V(ta), V(ta), V(sb + j), V(sb + j + 1)))
            j += 2
        if j < n:
            ops.append(lambda j=j: a.valu("v_max_f32", V(ta), V(ta), V(sb + j)))
        return ops

    def check(tiles):
        if "nocheck" in dbg:
            return
        tc, tb, td = T + 5, T + 6, T + 7
        a.valu("v_max3_f32", V(tc), V(tiles[0][2]), V(tiles[1][2]), V(tiles[2][2]))
        if len(tiles) == 5:
            a.valu("v_max3_f32", V(tc), V(tc), V(tiles[3][2]), V(tiles[4][2]))
        else:
            a.valu("v_max_f32", V(tc), V(tc), V(tiles[3][2]))
        a.valu("v_cmp_lt_f32", "vcc", S(sThr), V(tc))
        L, LB = newlabel(), newlabel()
        a.nop(5)
        a.misc(f"s_cbranch_vccnz {L}")
        a.label(LB)
        main_lines = a.lines
        saved = (list(a.hist), a.pos, list(a.lgkm), list(a.vm))
        a.lines = slow_lines
        a.label(L)
        a.nop(8)
        for (sb, r, ta) in tiles:
            for pl in ("v_permlane16_swap_b32", "v_permlane32_swap_b32"):
                a.valu("v_mov_b32", V(tb), V(ta))
                a.valu(pl, V(ta), V(tb))
                a.valu("v_max_f32", V(ta), V(ta), V(tb))
            a.valu("v_cmp_eq_f32", "vcc", 0, V(LA(r)))
            a.valu("v_max_f32", V(tb), 0, V(ta))
            a.valu("v_cndmask_b32", V(ta), V(tb), V(ta), "vcc")
            for j in range(8):
                a.valu("v_sub_f32", V(sb + j), V(sb + j), V(ta))
            for e in range(4):
                a.valu("v_sub_f32", V(NM(r) + e), V(NM(r) + e), V(ta))
            a.valu("v_exp_f32", V(tb), "-" + V(tb))
            for e in range(4):
                a.valu("v_mul_f32", V(LA(r) + e), V(LA(r) + e), V(tb))
            for k in range(32):
                a.valu("v_accvgpr_read_b32", V(td), A(OA(r, 0) + k))
                a.valu("v_mul_f32", V(td), V(td), V(tb))
                a.valu("v_accvgpr_write_b32", A(OA(r, 0) + k), V(td))
        a.nop(4)
        a.misc(f"s_branch {LB}")
        a.lines = main_lines
        a.hist, a.pos, a.lgkm, a.vm = list(saved[0]), saved[1], list(saved[2]), list(saved[3])

    def check_first(tiles):
        tb = T + 6
        for pl in ("v_permlane16_swap_b32", "v_permlane32_swap_b32"):
            for k, (sb, r, ta) in enumerate(tiles):
                a.valu("v_mov_b32", V(tb + k), V(ta))
            for k, (sb, r, ta) in enumerate(tiles):
                a.valu(pl, V(ta), V(tb + k))
            for k, (sb, r, ta) in enumerate(tiles):
                a.valu("v_max_f32", V(ta), V(ta), V(tb + k))
        for (sb, r, ta) in tiles:
            for j in range(8):
                a.valu("v_sub_f32", V(sb + j), V(sb + j), V(ta))
            for e in range(4):
                a.valu("v_sub_f32", V(NM(r) + e), V(NM(r) + e), V(ta))

    def exp_ops(bases):
        ops = []
        for b0 in bases:
            for j in range(8):
                ops.append(lambda b0=b0, j=j: a.valu("v_exp_f32", V(b0 + j), V(b0 + j)))
            for e in range(4):
                ops.append(lambda b0=b0, e=e: a.valu("v_cvt_pk_bf16_f32", V(b0 + e), V(b0 + 2 * e), V(b0 + 2 * e + 1)))
        return ops

    def opt(key, default):
        v = [d[len(key):] for d in dbg if d.startswith(key) and d[len(key):].isdigit()]
        return int(v[0]) if v else default
    LEAD = opt("lead", 8)
    BUD = opt("bud", 2)
    VXC = opt("vxc", 2)
    FSC = opt("fsc", 1)
    DSP = int([d[3:] for d in dbg if d.startswith('dsp')][0]) if any(d.startswith('dsp') for d in dbg) else 6

    def frag_stream(items):
        st = []
        for k, (fu, lu, fn) in enumerate(items):
            rel = 0 if k < NFR else items[k - NFR][1] + 1
            dl = max(rel, fu - LEAD)
            st.append((rel, dl, (lambda fn=fn, k=k: fn(k % NFR))))
        return st

    class Seg:
        def __init__(self):
            self.main, self.items, self.vx, self.dm = [], [], [], []

        def tiles(self, h):
            u = h & 1
            tl = [(SS(r, 2 * u), r, T + r) for r in range(4)]
            if u == 0:
                tl.append((S9, 4, T + 4))
            return tl

        def X(self, h):
            kslot = slot_of(2 * (h >> 1)) * SLOT
            tl = self.tiles(h)
            for ktl in range(2):
                kt = 2 * (h & 1) + ktl
                for t in range(4):
                    k = len(self.items)
                    self.items.append((len(self.main), len(self.main) + len(tl) - 1,
                                       lambda sl, kt=kt, t=t: a.ds_read("ds_read_b128", V(FR + 4 * sl, 4), V(AK + 4 * (kt >> 1) + t), off=kslot + kt * 4096)))
                    for (sb, r, _) in tl:
                        d = V(sb + 4 * ktl, 4)
                        self.main.append(lambda d=d, t=t, r=r, k=k: a.mfma(d, V(FR + 4 * (k % NFR), 4), A(QF(r, t), 4), d if t else V(NM(r), 4)))

        def Y(self, h):
            vslot = slot_of(2 * (h >> 1) + 1) * SLOT
            u = h & 1
            tl = self.tiles(h)
            for (sb, r, _) in tl:
                self.main.append(lambda sb=sb, r=r: a.mfma(V(LA(r), 4), V(ONES, 4), V(sb, 4), V(LA(r), 4)))
            for dt in range(8):
                k = len(self.items)

                def rd(sl, dt=dt):
                    a.ds_read("ds_read_b64_tr_b16", V(FR + 4 * sl, 2), V(AV + 8 * u + dt), off=vslot + u * 8192)
                    a.ds_read("ds_read_b64_tr_b16", V(FR + 4 * sl + 2, 2), V(AV + 8 * u + dt), off=vslot + u * 8192 + 4096)
                self.items.append((len(self.main), len(self.main) + len(tl) - 1, rd))
                for (sb, r, _) in tl:
                    self.main.append(lambda dt=dt, sb=sb, r=r, k=k: a.mfma(A(OA(r, dt), 4), V(FR + 4 * (k % NFR), 4), V(sb, 4), A(OA(r, dt), 4)))

        def exp(self, h, rel, dl):
            self.vx += [(rel, dl, f) for f in exp_ops([sb for sb, _, _ in self.tiles(h)])]

        def mx(self, h, rel, dl):
            ol = [max_ops(sb, 8, ta) for sb, _, ta in self.tiles(h)]
            for j in range(len(ol[0])):
                for o in ol:
                    self.vx.append((rel, dl, o[j]))

        def chk(self, h):
            tl = self.tiles(h)
            self.main.append(lambda: check(tl) if h else check_first(tl))

        def emit(self):
            fs = frag_stream(self.items)
            interleave(self.main, [(fs, FSC), (self.vx, VXC), (self.dm, 1)], budget=BUD)

    def sync():
        a.waitcnt(vm=0, lgkm=0)
        if "nobar" not in dbg:
            a.barrier()

    def body(s, first=False):
        g = Seg()
        if not first:
            g.Y(2 * s - 2)
            g.mx(2 * s - 1, 0, len(g.main))
            g.dm = [(DSP * k, 10 ** 6, f) for k, f in enumerate(tile_ops(True, slot_of(2 * s + 1)) + tile_ops(False, slot_of(2 * s + 2)))]
            g.chk(2 * s - 1)
            g.main.append(lambda: seg(0))
        n0 = len(g.main)
        g.X(2 * s)
        g.main.append(lambda: seg(1))
        if not first:
            g.exp(2 * s - 1, n0, len(g.main))
            n0 = len(g.main)
            g.Y(2 * s - 1)
            g.mx(2 * s, n0 + 3, len(g.main))
        else:
            g.mx(2 * s, len(g.main), len(g.main))
        g.chk(2 * s)
        g.main.append(lambda: seg(2))
        n0 = len(g.main)
        g.X(2 * s + 1)
        g.exp(2 * s, n0, len(g.main))
        g.dm = [(r, min(d, len(g.main)), f) for (r, d, f) in g.dm]
        g.emit()
        seg(3)
        a.waitcnt(vm=0, lgkm=0)
        seg(4)
        sync()
        seg(5)

    def attention():
        qproj()
        if "qonly" in dbg:
            a.misc("s_endpgm")
        run(tile_ops(True, slot_of(1)))
        run(tile_ops(False, slot_of(2)))
        stamp()
        tq = 192
        for r in range(4):
            for t in range(4):
                lo, hi = QA(2 * t, r), QA(2 * t + 1, r)
                for k, src in enumerate((lo, lo + 2, hi, hi + 2)):
                    a.valu("v_mul_f32", V(src), S(sC), V(src))
                    a.valu("v_mul_f32", V(src + 1), S(sC), V(src + 1))
                    a.valu("v_cvt_pk_bf16_f32", V(tq + k), V(src), V(src + 1))
                for k in range(4):
                    a.valu("v_accvgpr_write_b32", A(QF(r, t) + k), V(tq + k))
        vl, ta, tb = 200, 201, 202
        a.valu("v_mbcnt_lo_u32_b32", V(vl), -1, 0)
        a.valu("v_mbcnt_hi_u32_b32", V(vl), -1, V(vl))
        a.valu("v_lshlrev_b32", V(ta), 4, V(vl))
        for j in range(2):
            lo, hi = QA9(2 * j), QA9(2 * j + 1)
            for k, src in enumerate((lo, lo + 2, hi, hi + 2)):
                a.valu("v_mul_f32", V(src), S(sC), V(src))
                a.valu("v_mul_f32", V(src + 1), S(sC), V(src + 1))
                a.valu("v_cvt_pk_bf16_f32", V(tq + 4 * j + k), V(src), V(src + 1))
            if j == 0:
                a.salu("s_lshl_b32", S(sT2), S(sW), 11)
                a.valu("v_add_u32", V(tb), S(sT2), V(ta))
                a.valu("v_subrev_u32", V(vl), S(sT2), V(ta))
            a.ds_write("ds_write_b128", V(tb), V(tq + 4 * j, 4), off=WB + j * 1024)
        a.waitcnt(lgkm=0)
        a.barrier()
        for t in range(4):
            a.ds_read("ds_read_b128", A(QF(4, t), 4), V(tb if t < 2 else vl), off=WB + t * 1024)
        a.valu("v_mov_b32", V(tb), 0)
        for i in range(160):
            a.valu("v_accvgpr_write_b32", A(i), V(tb))
        for i in range(40):
            a.valu("v_mov_b32", V(NM(0) + i), 0)
        for i in range(4):
            a.valu("v_mov_b32", V(ONES + i), "0x3f803f80")
        a.salu("s_mov_b32", S(sThr), hex(f32bits(THR)))
        a.waitcnt(vm=16, lgkm=0)
        a.barrier()
        if stamps:
            for k in range(12):
                a.salu("s_mov_b32", S(86 + k), 0)
        seg(11)
        body(0, True)
        body(1)
        a.salu("s_mov_b32", S(sIt), 0)
        a.flush()
        Lp = newlabel()
        a.label(Lp)
        body(2)
        body(3)
        a.salu("s_add_u32", S(sIt), S(sIt), 1)
        a.salu("s_cmp_lt_u32", None, S(sIt), 3)
        a.nop(8)
        a.misc(f"s_cbranch_scc1 {Lp}")
        g = Seg()
        g.Y(14)
        g.mx(15, 0, len(g.main))
        g.chk(15)
        g.exp(15, len(g.main), len(g.main))
        g.Y(15)
        g.emit()
        a.flush()

    attention()
    a.waitcnt(vm=0, lgkm=0)
    stamp()

    vL, vG, vI = 0, 1, 2
    t0, t1, t2, t3 = 4, 5, 6, 7
    vSt = 8
    a.valu("v_mbcnt_lo_u32_b32", V(vL), -1, 0)
    a.valu("v_mbcnt_hi_u32_b32", V(vL), -1, V(vL))
    a.valu("v_lshrrev_b32", V(vG), 4, V(vL))
    a.valu("v_and_b32", V(vI), 15, V(vL))
    a.valu("v_and_b32", V(t0), 1, V(vG))
    a.valu("v_lshrrev_b32", V(t1), 1, V(vG))
    a.valu("v_lshl_add_u32", V(t0), V(t0), 1, V(t1))
    a.valu("v_lshlrev_b32", V(t1), 4, V(vI))
    a.valu("v_lshl_add_u32", V(vSt), V(t0), 8, V(t1))
    a.barrier()
    CB = 0
    PB = 4096
    a.valu("v_mov_b32", V(t2), V(NM(4)))
    a.valu("v_mov_b32", V(t3), V(LA(4)))
    a.salu("s_lshl_b32", S(sT2), S(sW), 7)
    a.valu("v_lshlrev_b32", V(t0), 3, V(vI))
    a.valu("v_add_u32", V(t1), S(sT2), V(t0))
    a.ds_write("ds_write_b64", V(t1), V(t2, 2), off=CB)
    a.waitcnt(lgkm=0)
    a.barrier()
    ml = 12
    for w in range(2):
        a.ds_read("ds_read_b64", V(ml + 2 * w, 2), V(t0), off=CB + w * 128)
    a.valu("v_min_f32", V(t1), V(ml), V(ml + 2))
    a.valu("v_mov_b32", V(t2), 0)
    for w in range(2):
        a.valu("v_sub_f32", V(t3), V(t1), V(ml + 2 * w))
        a.valu("v_exp_f32", V(t3), V(t3))
        a.valu("v_fma_f32", V(t2), V(t3), V(ml + 2 * w + 1), V(t2))
    a.valu("v_sub_f32", V(t3), V(t1), V(NM(4)))
    a.valu("v_exp_f32", V(t3), V(t3))
    a.valu("v_rcp_f32", V(t2), V(t2))
    a.valu("v_mul_f32", V(t3), V(t3), V(t2))
    NB = 32
    for k in range(32):
        a.valu("v_accvgpr_read_b32", V(NB + k), A(OA(4, 0) + k))
    for k in range(32):
        a.valu("v_mul_f32", V(NB + k), V(NB + k), V(t3))
    a.valu("v_lshlrev_b32", V(t0), 4, V(vL))
    a.salu("s_lshl_b32", S(sT2), S(sW), 13)
    a.valu("v_add_u32", V(t1), S(sT2), V(t0))
    for dt in range(8):
        a.ds_write("ds_write_b128", V(t1), V(NB + 4 * dt, 4), off=PB + dt * 1024)
    for r in range(4):
        a.valu("v_rcp_f32", V(t2), V(LA(r)))
        a.salu("s_lshl_b32", S(sT2), S(sW), 12)
        a.salu("s_add_u32", S(sT2), S(sT2), r * 1024)
        for kk in range(4):
            o = 144 + ((r * 4 + kk) % 8) * 8
            for e in range(8):
                a.valu("v_accvgpr_read_b32", V(o + e), A(OA(r, 2 * kk) + e))
            for e in range(8):
                a.valu("v_mul_f32", V(o + e), V(o + e), V(t2))
            for e in range(4):
                a.valu("v_cvt_pk_bf16_f32", V(o + e), V(o + 2 * e), V(o + 2 * e + 1))
            a.valu("v_permlane16_swap_b32", V(o), V(o + 2))
            a.valu("v_permlane16_swap_b32", V(o + 1), V(o + 3))
            a.salu("s_add_u32", S(sT3), S(sT2), kk * 9216)
            bstore("buffer_store_dwordx4", V(o, 4), V(vSt), S(sO, 4), S(sT3))
    a.waitcnt(lgkm=0)
    a.barrier()
    a.salu("s_lshl_b32", S(sT2), S(sW), 12)
    a.valu("v_add_u32", V(t1), S(sT2), V(t0))
    RB = 64
    for j in range(4):
        for w in range(2):
            a.ds_read("ds_read_b128", V(RB + (j * 2 + w) * 4, 4), V(t1), off=PB + w * 8192 + j * 1024)
    a.salu("s_mul_i32", S(sT2), S(sW), 2 * 9216)
    a.salu("s_add_u32", S(sT2), S(sT2), 8 * 1024)
    for j in range(4):
        b0 = RB + j * 8
        for e in range(4):
            a.valu("v_add_f32", V(b0 + e), V(b0 + e), V(b0 + 4 + e))
    for jj in range(2):
        o = 144 + jj * 4
        b0, b1 = RB + (2 * jj) * 8, RB + (2 * jj + 1) * 8
        a.valu("v_cvt_pk_bf16_f32", V(o), V(b0), V(b0 + 1))
        a.valu("v_cvt_pk_bf16_f32", V(o + 1), V(b0 + 2), V(b0 + 3))
        a.valu("v_cvt_pk_bf16_f32", V(o + 2), V(b1), V(b1 + 1))
        a.valu("v_cvt_pk_bf16_f32", V(o + 3), V(b1 + 2), V(b1 + 3))
        a.valu("v_permlane16_swap_b32", V(o), V(o + 2))
        a.valu("v_permlane16_swap_b32", V(o + 1), V(o + 3))
        a.salu("s_add_u32", S(sT3), S(sT2), jj * 9216)
        bstore("buffer_store_dwordx4", V(o, 4), V(vSt), S(sO, 4), S(sT3))
    if stamps:
        stamp()
        stamp(True)
        a.salu("s_add_u32", S(sX), "s12", 0x3000000)
        a.salu("s_addc_u32", S(sX + 1), "s13", 0)
        a.salu("s_mov_b32", S(sX + 2), 0x100000)
        a.salu("s_lshl_b32", S(sT2), "s2", 10)
        a.salu("s_lshl_b32", S(sT3), S(sW), 8)
        a.salu("s_add_u32", S(sT2), S(sT2), S(sT3))
        a.salu("s_mov_b64", "exec", 1)
        a.valu("v_mov_b32", V(t1), 0)
        for i in range(nst[0]):
            a.valu("v_mov_b32", V(t0), S(SB + 2 * i))
            a.bstore("buffer_store_dword", V(t0), V(t1), S(sX, 4), S(sT2), off=4 * i)
        for i in range(12):
            a.valu("v_mov_b32", V(t0), S(86 + i))
            a.bstore("buffer_store_dword", V(t0), V(t1), S(sX, 4), S(sT2), off=128 + 4 * i)
    a.label(f"{name}_done")
    a.misc("s_endpgm")
    a.lines += slow_lines
    return a
```

```python
from asmlib import Asm, V, S
from sched import interleave

WS_P = 0x1300000
STAGE = 34816
LDS_K2 = 4 * STAGE


def gen_k2(name, stamps=False):
    a = Asm()
    a.label(name)
    nst = [0]

    def stamp():
        if not stamps:
            return
        a.misc(f"s_memrealtime s[{60 + 2 * nst[0]}:{61 + 2 * nst[0]}]")
        a.waitcnt(lgkm=0)
        nst[0] += 1
    sO, sWO, sP = 16, 20, 24
    sW, sT0, sT1, sT2, sT3 = 28, 29, 30, 31, 32
    sKS, sNQ, sB, sBLK = 33, 34, 35, 36
    sDM0, sOr, sWr, sIt = 37, 38, 39, 40
    sO5g, sO5l, sOw = 41, 42, 43
    ACC = lambda nt, qt: (nt * 9 + qt) * 4
    BF = lambda p: 72 + 44 * p
    AF = lambda p: 72 + 44 * p + 36
    AO = 160
    AWo = 168
    DO = 176
    DW = 177
    T = 178
    vL, vG, vI = T, T + 1, T + 2
    t0, t1, t2, t3 = T + 4, T + 5, T + 6, T + 7

    a.salu("s_cmp_ge_u32", None, "s2", 256)
    a.misc(f"s_cbranch_scc1 {name}_done")
    a.misc("s_load_dwordx2 s[4:5], s[0:1], 32")
    a.misc("s_load_dwordx2 s[6:7], s[0:1], 72")
    a.misc("s_load_dwordx2 s[12:13], s[0:1], 96")
    a.misc("s_load_dwordx2 s[8:9], s[0:1], 88")
    a.misc("s_load_dwordx2 s[10:11], s[0:1], 80")
    a.valu("v_and_b32", V(vL), 63, "v0")
    a.valu("v_lshrrev_b32", V(T + 3), 6, "v0")
    a.valu("v_lshrrev_b32", V(vG), 4, V(vL))
    a.valu("v_and_b32", V(vI), 15, V(vL))
    a.valu("v_readfirstlane_b32", S(sW), V(T + 3))
    a.misc("s_waitcnt lgkmcnt(0)")
    a.salu("s_and_b32", S(sKS), "s2", 3)
    a.salu("s_lshr_b32", S(sBLK), "s2", 2)
    a.salu("s_and_b32", S(sBLK), S(sBLK), 1)
    a.salu("s_lshr_b32", S(sNQ), "s2", 3)
    a.salu("s_and_b32", S(sNQ), S(sNQ), 3)
    a.salu("s_lshr_b32", S(sB), "s2", 5)
    a.salu("s_cmp_eq_u32", None, S(sBLK), 0)
    a.salu("s_cselect_b32", S(sWO), "s4", "s6")
    a.salu("s_cselect_b32", S(sWO + 1), "s5", "s7")
    a.salu("s_mov_b32", S(sWO + 2), 4194304)
    a.salu("s_mov_b32", S(sWO + 3), "0x00020000")
    a.salu("s_mul_i32", S(sT0), S(sBLK), 9437184)
    a.salu("s_mul_i32", S(sT1), S(sB), 1179648)
    a.salu("s_add_u32", S(sT0), S(sT0), S(sT1))
    a.salu("s_add_u32", S(sO), "s12", S(sT0))
    a.salu("s_addc_u32", S(sO + 1), "s13", 0)
    a.salu("s_mov_b32", S(sO + 2), 1179648)
    a.salu("s_mov_b32", S(sO + 3), "0x00020000")
    sTile = 44
    a.salu("s_lshl_b32", S(sTile), S(sBLK), 3)
    a.salu("s_add_u32", S(sTile), S(sTile), S(sB))
    a.salu("s_lshl_b32", S(sTile), S(sTile), 2)
    a.salu("s_add_u32", S(sTile), S(sTile), S(sNQ))
    a.salu("s_mul_i32", S(sT0), S(sTile), 4 * 36864)
    a.salu("s_add_u32", S(sT0), S(sT0), WS_P)
    a.salu("s_add_u32", S(sP), "s12", S(sT0))
    a.salu("s_addc_u32", S(sP + 1), "s13", 0)
    a.salu("s_mov_b32", S(sP + 2), 4 * 36864)
    a.salu("s_mov_b32", S(sP + 3), "0x00020000")
    sD, sOut = 48, 52
    a.salu("s_mov_b32", S(sD), "s8")
    a.salu("s_mov_b32", S(sD + 1), "s9")
    a.salu("s_mov_b32", S(sD + 2), 256)
    a.salu("s_mov_b32", S(sD + 3), "0x00020000")
    a.salu("s_mov_b32", S(sOut), "s10")
    a.salu("s_mov_b32", S(sOut + 1), "s11")
    a.salu("s_mov_b32", S(sOut + 2), 2359296)
    a.salu("s_mov_b32", S(sOut + 3), "0x00020000")
    a.salu("s_lshl_b32", S(sDM0), S(sW), 10)
    a.salu("s_mul_i32", S(sOr), S(sKS), 8 * 36864)
    a.salu("s_lshl_b32", S(sWr), S(sKS), 20)
    a.salu("s_lshl_b32", S(sT0), S(sNQ), 8)
    a.salu("s_add_u32", S(sWr), S(sWr), S(sT0))
    a.salu("s_and_b32", S(sT0), S(sW), 1)
    a.salu("s_add_u32", S(sT0), S(sT0), 16)
    a.salu("s_lshl_b32", S(sO5l), S(sT0), 10)
    a.valu("v_lshlrev_b32", V(DO), 4, V(vL))
    a.salu("s_lshl_b32", S(sT0), S(sW), 2)
    a.valu("v_add_u32", V(t0), S(sT0), V(vG))
    a.salu("s_lshr_b32", S(sT0), S(sW), 1)
    a.salu("s_lshl_b32", S(sT0), S(sT0), 2)
    a.valu("v_add_u32", V(t1), S(sT0), V(vG))
    a.valu("v_lshlrev_b32", V(t1), 1, V(t1))
    a.valu("v_xor_b32", V(t1), V(vI), V(t1))
    a.valu("v_lshlrev_b32", V(t1), 4, V(t1))
    a.valu("v_lshl_add_u32", V(DW), V(t0), 10, V(t1))
    for st in range(4):
        a.valu("v_add_u32", V(AO + 2 * st), st * STAGE, V(DO))
    a.valu("v_lshrrev_b32", V(t0), 2, V(vI))
    a.valu("v_lshl_add_u32", V(t1), V(vG), 3, V(t0))
    a.valu("v_and_b32", V(t2), 1, V(vG))
    a.valu("v_lshl_add_u32", V(t2), V(t2), 2, V(t0))
    a.valu("v_and_b32", V(t3), 3, V(vI))
    a.valu("v_lshlrev_b32", V(t3), 3, V(t3))
    a.valu("v_lshl_add_u32", V(t3), V(t1), 8, V(t3))
    a.salu("s_lshl_b32", S(sT0), S(sW), 1)
    for nt in range(2):
        a.salu("s_add_u32", S(sT1), S(sT0), nt)
        a.valu("v_xor_b32", V(t0), S(sT1), V(t2))
        a.valu("v_lshl_add_u32", V(t0), V(t0), 5, V(t3))
        for st in range(4):
            a.valu("v_add_u32", V(AWo + 2 * st + nt), st * STAGE + 18432, V(t0))

    def issue_ops(st, half):
        lb = st * STAGE
        ops = []
        for i in range(5):
            def f(i=i):
                if i < 4:
                    a.salu("s_add_u32", "m0", S(sDM0), lb + i * 4096)
                    a.salu("s_add_u32", S(sT3), S(sOr), i * 4096)
                    a.salu("s_add_u32", S(sT3), S(sT3), S(sDM0))
                else:
                    a.salu("s_add_u32", "m0", S(sO5l), lb)
                    a.salu("s_add_u32", S(sT3), S(sOr), S(sO5l))
                a.dma(V(DO), S(sO, 4), S(sT3))
                if i == 4:
                    a.salu("s_add_u32", S(sOr), S(sOr), 18432)
            ops.append(f)
        for i in range(4):
            def f(i=i):
                a.salu("s_add_u32", "m0", S(sDM0), lb + 18432 + i * 4096)
                a.salu("s_add_u32", S(sT3), S(sWr), (16 * i) * 1024)
                a.dma(V(DW), S(sWO, 4), S(sT3))
                if i == 3:
                    a.salu("s_add_u32", S(sWr), S(sWr), 64 * 1024)
            ops.append(f)
        return ops

    def read_ops(st, e, p):
        ops = []
        for nt in range(2):
            ops.append(lambda nt=nt: a.ds_read("ds_read_b64_tr_b16", V(AF(p) + 4 * nt, 2), V(AWo + 2 * st + nt), off=e * 8192))
            ops.append(lambda nt=nt: a.ds_read("ds_read_b64_tr_b16", V(AF(p) + 4 * nt + 2, 2), V(AWo + 2 * st + nt), off=e * 8192 + 1024))
        for qt in range(9):
            ops.append(lambda qt=qt: a.ds_read("ds_read_b128", V(BF(p) + 4 * qt, 4), V(AO + 2 * st), off=(e * 9 + qt) * 1024))
        return ops

    def mf(p):
        m = []
        for qt in range(9):
            for nt in range(2):
                m.append(lambda qt=qt, nt=nt: a.mfma(V(ACC(nt, qt), 4), V(AF(p) + 4 * nt, 4), V(BF(p) + 4 * qt, 4), V(ACC(nt, qt), 4)))
        return m

    stamp()
    for st in range(3):
        for f in issue_ops(st, st & 1):
            f()
    for i in range(72):
        a.valu("v_mov_b32", V(i), 0)
    a.salu("s_mov_b32", S(sIt), 0)
    a.waitcnt(vm=9, lgkm=0)
    a.barrier()
    stamp()
    for f in read_ops(0, 0, 0):
        f()
    a.nop(4)
    a.label(f"{name}_loop")
    for kt in range(4):
        if kt == 1:
            a.salu("s_cmp_eq_u32", None, S(sIt), 3)
            a.salu("s_cselect_b32", S(sO + 2), 0, S(sO + 2))
            a.salu("s_cselect_b32", S(sWO + 2), 0, S(sWO + 2))
        dm = issue_ops((kt + 3) % 4, (kt + 3) & 1)
        interleave(mf(0), [[(0, 18, f) for f in read_ops(kt, 1, 1)], [(0, 18, f) for f in dm[:5]]], budget=2)
        interleave(mf(1), [[(0, 18, f) for f in read_ops((kt + 1) % 4, 0, 0)], [(0, 18, f) for f in dm[5:]]], budget=2)
        a.waitcnt(vm=9)
        a.barrier()
    a.salu("s_add_u32", S(sIt), S(sIt), 1)
    a.salu("s_cmp_lt_u32", None, S(sIt), 4)
    a.nop(4)
    a.misc(f"s_cbranch_scc1 {name}_loop")
    a.waitcnt(vm=0, lgkm=0)
    stamp()
    a.valu("v_lshlrev_b32", V(t0), 4, V(vL))
    a.salu("s_mul_i32", S(sT0), S(sW), 9216)
    a.salu("s_mul_i32", S(sT1), S(sKS), 36864)
    a.salu("s_add_u32", S(sT1), S(sT1), S(sT0))
    for qt in range(9):
        o = 72 + 4 * qt
        for nt in range(2):
            c = ACC(nt, qt)
            a.valu("v_cvt_pk_bf16_f32", V(o + 2 * nt), V(c), V(c + 1))
            a.valu("v_cvt_pk_bf16_f32", V(o + 2 * nt + 1), V(c + 2), V(c + 3))
        if qt % 4 == 0:
            a.salu("s_add_u32", S(sT2), S(sT1), qt * 1024)
        a.bstore("buffer_store_dwordx4", V(o, 4), V(t0), S(sP, 4), S(sT2), off=(qt % 4) * 1024)
    a.label(f"{name}_fin")
    if stamps:
        a.waitcnt(vm=0)
        stamp()
        a.salu("s_add_u32", S(sO), "s12", 0x3100000)
        a.salu("s_addc_u32", S(sO + 1), "s13", 0)
        a.salu("s_mov_b32", S(sO + 2), 0x100000)
        a.salu("s_lshl_b32", S(sT2), "s2", 10)
        a.salu("s_lshl_b32", S(sT3), S(sW), 8)
        a.salu("s_add_u32", S(sT2), S(sT2), S(sT3))
        a.salu("s_mov_b64", "exec", 1)
        a.valu("v_mov_b32", V(t1), 0)
        for i in range(nst[0]):
            a.valu("v_mov_b32", V(t0), S(60 + 2 * i))
            a.bstore("buffer_store_dword", V(t0), V(t1), S(sO, 4), S(sT2), off=4 * i)
    a.label(f"{name}_done")
    a.misc("s_endpgm")
    return a


def gen_k3(name, stamps=False):
    a = Asm()
    a.label(name)
    if stamps:
        a.misc("s_memrealtime s[60:61]")
    a.salu("s_cmp_ge_u32", None, "s2", 576)
    a.misc(f"s_cbranch_scc1 {name}_done")
    a.misc("s_load_dwordx2 s[4:5], s[0:1], 80")
    a.misc("s_load_dwordx2 s[12:13], s[0:1], 96")
    a.valu("v_lshrrev_b32", "v1", 6, "v0")
    a.valu("v_readfirstlane_b32", "s20", "v1")
    a.valu("v_and_b32", "v2", 63, "v0")
    a.valu("v_lshrrev_b32", "v3", 4, "v2")
    a.valu("v_and_b32", "v4", 15, "v2")
    a.valu("v_lshlrev_b32", "v5", 4, "v2")
    a.valu("v_lshlrev_b32", "v6", 3, "v3")
    a.valu("v_lshl_add_u32", "v6", "v4", 11, "v6")
    a.misc("s_waitcnt lgkmcnt(0)")
    a.salu("s_add_u32", "s8", "s12", WS_P)
    a.salu("s_addc_u32", "s9", "s13", 0)
    a.salu("s_mov_b32", "s10", 64 * 4 * 36864)
    a.salu("s_mov_b32", "s11", "0x00020000")
    a.salu("s_mov_b32", "s16", "s4")
    a.salu("s_mov_b32", "s17", "s5")
    a.salu("s_mov_b32", "s18", 2359296)
    a.salu("s_mov_b32", "s19", "0x00020000")
    a.salu("s_mul_hi_u32", "s21", "s2", 477218589)
    a.salu("s_mul_i32", "s22", "s21", 9)
    a.salu("s_sub_u32", "s22", "s2", "s22")
    a.salu("s_mul_i32", "s23", "s21", 4 * 36864)
    a.salu("s_mul_i32", "s24", "s20", 9216)
    a.salu("s_add_u32", "s23", "s23", "s24")
    a.salu("s_lshl_b32", "s24", "s22", 10)
    a.salu("s_add_u32", "s23", "s23", "s24")
    for ks in range(4):
        a.salu("s_add_u32", "s25", "s23", ks * 36864)
        a.bload("buffer_load_dwordx4", V(56 + ks * 4, 4), "v5", "s[8:11]", "s25")
    a.salu("s_and_b32", "s26", "s21", 3)
    a.salu("s_lshr_b32", "s27", "s21", 2)
    a.salu("s_and_b32", "s28", "s27", 7)
    a.salu("s_lshr_b32", "s27", "s27", 3)
    a.salu("s_mul_i32", "s29", "s28", 144 * 2048)
    a.salu("s_lshl_b32", "s27", "s27", 10)
    a.salu("s_add_u32", "s29", "s29", "s27")
    a.salu("s_lshl_b32", "s26", "s26", 8)
    a.salu("s_add_u32", "s29", "s29", "s26")
    a.salu("s_lshl_b32", "s26", "s20", 6)
    a.salu("s_add_u32", "s29", "s29", "s26")
    a.salu("s_lshl_b32", "s26", "s22", 15)
    a.salu("s_add_u32", "s29", "s29", "s26")
    for ks in range(4):
        for e in range(4):
            a.valu("v_lshlrev_b32", V(16 + ks * 8 + 2 * e), 16, V(56 + ks * 4 + e))
            a.valu("v_and_b32", V(16 + ks * 8 + 2 * e + 1), "0xffff0000", V(56 + ks * 4 + e))
    for e in range(8):
        a.valu("v_add_f32", V(16 + e), V(16 + e), V(24 + e))
    for e in range(8):
        a.valu("v_add_f32", V(32 + e), V(32 + e), V(40 + e))
    for e in range(8):
        a.valu("v_add_f32", V(16 + e), V(16 + e), V(32 + e))
    for e in range(4):
        a.valu("v_cvt_pk_bf16_f32", V(48 + e), V(16 + 2 * e), V(17 + 2 * e))
    a.bstore("buffer_store_dwordx2", "v[48:49]", "v6", "s[16:19]", "s29")
    a.bstore("buffer_store_dwordx2", "v[50:51]", "v6", "s[16:19]", "s29", off=32)
    if stamps:
        a.waitcnt(vm=0)
        a.misc("s_memrealtime s[62:63]")
        a.misc("s_waitcnt lgkmcnt(0)")
        a.salu("s_add_u32", "s8", "s12", 0x3200000)
        a.salu("s_addc_u32", "s9", "s13", 0)
        a.salu("s_mov_b32", "s10", 0x100000)
        a.salu("s_lshl_b32", "s20", "s2", 10)
        a.salu("s_mov_b64", "exec", 1)
        a.valu("v_mov_b32", "v1", 0)
        a.valu("v_mov_b32", "v2", "s60")
        a.valu("v_mov_b32", "v3", "s62")
        a.bstore("buffer_store_dwordx2", "v[2:3]", "v1", "s[8:11]", "s20")
    a.label(f"{name}_done")
    a.misc("s_endpgm")
    return a
```

```python
import struct
from asmlib import Asm, V, S, A
from sched import interleave

RING = 16384
SLOT = 16384
WB = 0
XB = 24576
XSZ = 18432
LDS_K1 = 81920
THR = 8.0
BLOCK = 128

CSCALE = 1.4426950408889634 / (128.0 ** 0.5)


def f32bits(x):
    return struct.unpack("<I", struct.pack("<f", x))[0]


def OA(r, dt):
    return (r * 8 + dt) * 4


def QF(r, t):
    return 160 + (r * 4 + t) * 4


def SS(r, kt):
    return (r * 4 + kt) * 4


S9 = 64


def NM(r):
    return 72 + 4 * r


def LA(r):
    return 92 + 4 * r


ONES = 112
DK0, DK1, DV = 116, 117, 118
T = 120
FR = 144
NFR = 16
AK = 208
AV = 216

sX, sWQ, sK, sV, sO = 16, 20, 24, 28, 32
sW = 36
sC = 37
sT0 = 38
sT1 = 39
sWQoff = 48
sDM0 = 49
sT2 = 51
sT3 = 52
sH = 53
sIt, sKg, sVg = 56, 57, 58
sThr, sLow = 59, 60


def slot_of(tile):
    return (tile + 3) % 4


def gen_k1(name, stamps=False, nt=True, dbg=()):
    a = Asm()
    a.vmn = 0
    nst = [0]
    SB = 70

    def stamp(real=False):
        if not stamps:
            return
        a.waitcnt(lgkm=0)
        a.misc(f"{'s_memrealtime' if real else 's_memtime'} s[{SB + 2 * nst[0]}:{SB + 1 + 2 * nst[0]}]")
        a.misc("s_waitcnt lgkmcnt(0)")
        nst[0] += 1

    def seg(k):
        if not stamps or "seg" not in dbg:
            return
        a.misc("s_memtime s[98:99]")
        a.waitcnt(lgkm=0)
        a.salu("s_sub_u32", "s100", "s98", "s101")
        a.salu("s_add_u32", S(86 + k), S(86 + k), "s100")
        a.salu("s_mov_b32", "s101", "s98")

    def opt(key, default):
        v = [d[len(key):] for d in dbg if d.startswith(key) and d[len(key):].isdigit()]
        return int(v[0]) if v else default

    a.label(name)

    def dma(voff, srd, soff, flags=""):
        a.dma(voff, srd, soff, flags=flags)
        a.vmn += 1

    def bload(*x, **k):
        a.bload(*x, **k)
        a.vmn += 1

    def bstore(*x, **k):
        a.bstore(*x, **k)
        a.vmn += 1

    KVF = "nt" if nt else ""

    a.salu("s_cmp_ge_u32", None, "s2", 512)
    a.misc(f"s_cbranch_scc1 {name}_done")
    a.misc("s_load_dwordx8 s[4:11], s[0:1], 0")
    a.misc("s_load_dwordx8 s[40:47], s[0:1], 40")
    a.misc("s_load_dwordx2 s[12:13], s[0:1], 96")
    vL, vG, vI = 10, 11, 12
    t0, t1, t2, t3, t4, t5 = 14, 15, 16, 17, 18, 19
    a.valu("v_and_b32", V(vL), 63, "v0")
    a.valu("v_lshrrev_b32", V(t0), 6, "v0")
    a.valu("v_lshrrev_b32", V(vG), 4, V(vL))
    a.valu("v_and_b32", V(vI), 15, V(vL))
    a.valu("v_readfirstlane_b32", S(sW), V(t0))
    a.misc("s_waitcnt lgkmcnt(0)")
    a.salu("s_lshr_b32", S(sT0), "s2", 2)
    a.salu("s_and_b32", S(sT0), S(sT0), 1)
    a.salu("s_cmp_eq_u32", None, S(sT0), 0)
    for i in range(8):
        a.salu("s_cselect_b32", S(4 + i), S(4 + i), S(40 + i))
    a.salu("s_lshr_b32", S(sT1), "s2", 7)
    a.salu("s_and_b32", S(sT2), "s2", 2)
    a.salu("s_lshl_b32", S(sT2), S(sT2), 1)
    a.salu("s_add_u32", S(sT1), S(sT1), S(sT2))
    a.salu("s_lshr_b32", S(sH), "s2", 3)
    a.salu("s_and_b32", S(sH), S(sH), 15)
    a.salu("s_and_b32", S(sT2), "s2", 1)
    a.salu("s_lshl_b32", S(sT2), S(sT2), 4)
    a.salu("s_add_u32", S(sH), S(sH), S(sT2))
    a.salu("s_mul_i32", S(sT2), S(sT1), 147456)
    a.salu("s_add_u32", S(sX), "s4", S(sT2))
    a.salu("s_addc_u32", S(sX + 1), "s5", 0)
    a.salu("s_mov_b32", S(sX + 2), 147456)
    a.salu("s_mov_b32", S(sX + 3), "0x00020000")
    a.salu("s_mov_b32", S(sWQ), "s10")
    a.salu("s_mov_b32", S(sWQ + 1), "s11")
    a.salu("s_mov_b32", S(sWQ + 2), 4194304)
    a.salu("s_mov_b32", S(sWQ + 3), "0x00020000")
    a.salu("s_lshl_b32", S(sT3), S(sT1), 5)
    a.salu("s_add_u32", S(sT3), S(sT3), S(sH))
    a.salu("s_lshl_b32", S(sT2), S(sT3), 17)
    a.salu("s_add_u32", S(sK), "s6", S(sT2))
    a.salu("s_addc_u32", S(sK + 1), "s7", 0)
    a.salu("s_mov_b32", S(sK + 2), 131072)
    a.salu("s_mov_b32", S(sK + 3), "0x00020000")
    a.salu("s_add_u32", S(sV), "s8", S(sT2))
    a.salu("s_addc_u32", S(sV + 1), "s9", 0)
    a.salu("s_mov_b32", S(sV + 2), 131072)
    a.salu("s_mov_b32", S(sV + 3), "0x00020000")
    a.salu("s_mul_i32", S(sT2), S(sT0), 9437184)
    a.salu("s_mul_i32", S(sT3), S(sT3), 36864)
    a.salu("s_add_u32", S(sT2), S(sT2), S(sT3))
    a.salu("s_add_u32", S(sO), "s12", S(sT2))
    a.salu("s_addc_u32", S(sO + 1), "s13", 0)
    a.salu("s_mov_b32", S(sO + 2), 36864)
    a.salu("s_mov_b32", S(sO + 3), "0x00020000")
    a.salu("s_lshl_b32", S(sWQoff), S(sH), 8)
    a.salu("s_mov_b32", S(sC), hex(f32bits(CSCALE)))
    a.salu("s_lshl_b32", S(sDM0), S(sW), 10)

    a.salu("s_lshl_b32", S(sT2), S(sW), 2)
    a.valu("v_add_u32", V(t0), S(sT2), V(vG))
    a.valu("v_xor_b32", V(t1), V(vI), V(t0))
    a.valu("v_lshlrev_b32", V(t1), 4, V(t1))
    a.valu("v_lshl_add_u32", V(DK0), V(t0), 8, V(t1))
    a.valu("v_add_u32", V(t2), 8, V(t0))
    a.valu("v_xor_b32", V(t1), V(vI), V(t2))
    a.valu("v_lshlrev_b32", V(t1), 4, V(t1))
    a.valu("v_lshl_add_u32", V(DK1), V(t2), 8, V(t1))
    a.valu("v_lshlrev_b32", V(t1), 1, V(t0))
    a.valu("v_xor_b32", V(t1), V(vI), V(t1))
    a.valu("v_lshlrev_b32", V(t1), 4, V(t1))
    a.valu("v_lshl_add_u32", V(DV), V(t0), 8, V(t1))

    def tile_ops(isv, slot):
        ops = []
        if "nodma" in dbg:
            return ops
        g = sVg if isv else sKg
        for i in range(8):
            def f(i=i):
                a.salu("s_add_u32", "m0", S(sDM0), RING + slot * SLOT + i * 2048)
                if isv:
                    dma(V(DV), S(sV, 4), S(g), KVF)
                    a.salu("s_add_u32", S(g), S(g), 2048)
                else:
                    dma(V(DK1 if i & 1 else DK0), S(sK, 4), S(g), KVF)
                    if i & 1:
                        a.salu("s_add_u32", S(g), S(g), 4096)
            ops.append(f)
        return ops

    def run(ops):
        for f in ops:
            f()

    a.salu("s_mov_b32", S(sKg), 0)
    a.salu("s_mov_b32", S(sVg), 0)

    sW2, sWH = 61, 62
    a.salu("s_lshl_b32", S(sW2), S(sW), 1)
    a.salu("s_lshl_b32", S(sWH), S(sW), 13)
    for t in range(4):
        a.salu("s_xor_b32", S(sT2), S(sW2), t)
        a.salu("s_lshl_b32", S(sT2), S(sT2), 2)
        a.valu("v_add_u32", V(t0), S(sT2), V(vG))
        a.valu("v_xor_b32", V(t0), V(t0), V(vI))
        a.valu("v_lshlrev_b32", V(t0), 4, V(t0))
        a.valu("v_lshl_add_u32", V(t0), V(vI), 8, V(t0))
        a.valu("v_add_u32", V(t0), RING, V(t0))
        a.valu("v_add_u32", V(AK + t), S(sWH), V(t0))
        a.valu("v_subrev_u32", V(AK + 4 + t), S(sWH), V(t0))
    a.valu("v_lshrrev_b32", V(t0), 2, V(vI))
    a.valu("v_lshl_add_u32", V(t0), V(vG), 2, V(t0))
    a.valu("v_and_b32", V(t1), 7, V(t0))
    a.valu("v_and_b32", V(t2), 3, V(vI))
    a.valu("v_lshlrev_b32", V(t2), 3, V(t2))
    a.valu("v_lshl_add_u32", V(t2), V(t0), 8, V(t2))
    a.valu("v_add_u32", V(t2), RING, V(t2))
    for dt in range(8):
        a.valu("v_xor_b32", V(t0), dt, V(t1))
        a.valu("v_lshl_add_u32", V(t0), V(t0), 5, V(t2))
        a.valu("v_add_u32", V(AV + dt), S(sWH), V(t0))
        a.valu("v_subrev_u32", V(AV + 8 + dt), S(sWH), V(t0))

    def QA(Tt, r):
        k = Tt * 4 + r
        return 4 * k if k < 28 else 144 + 4 * (k - 28)

    def QA9(j):
        return 160 + 4 * j

    AFs = lambda p: 52 * p
    XFs = lambda p: 52 * p + 32
    WS = 104
    AW = 176
    WW = 184
    XA = 186
    WQA = 190
    DXv = 191
    a.valu("v_lshrrev_b32", V(t0), 2, V(vI))
    a.valu("v_lshl_add_u32", V(t1), V(vG), 3, V(t0))
    a.valu("v_and_b32", V(t2), 3, V(vI))
    a.valu("v_lshlrev_b32", V(t2), 4, V(t2))
    a.valu("v_lshl_add_u32", V(t2), V(t1), 8, V(t2))
    a.valu("v_and_b32", V(t3), 1, V(t0))
    a.valu("v_lshrrev_b32", V(t4), 3, V(vI))
    a.valu("v_and_b32", V(t5), 1, V(vG))
    a.valu("v_lshl_add_u32", V(t4), V(t5), 1, V(t4))
    for Tt in range(8):
        t, o = Tt >> 1, Tt & 1
        a.salu("s_xor_b32", S(sT2), S(sW2), t)
        a.valu("v_xor_b32", V(t0), S(sT2), V(t4))
        a.valu("v_lshl_add_u32", V(t0), V(t0), 6, V(t2))
        a.valu("v_xor_b32", V(t1), o, V(t3))
        a.valu("v_lshl_add_u32", V(AW + Tt), V(t1), 3, V(t0))
    a.salu("s_lshl_b32", S(sT2), S(sW), 4)
    a.valu("v_lshl_add_u32", V(t0), V(vG), 1, S(sT2))
    a.valu("v_lshlrev_b32", V(t1), 2, V(t5))
    a.valu("v_xor_b32", V(t1), V(t1), V(vI))
    a.valu("v_lshlrev_b32", V(t1), 4, V(t1))
    a.valu("v_lshl_add_u32", V(WW), V(t0), 8, V(t1))
    a.valu("v_xor_b32", V(t2), 128, V(WW))
    a.valu("v_add_u32", V(WW + 1), 2048, V(t2))
    a.valu("v_lshlrev_b32", V(t1), 4, V(vI))
    a.valu("v_lshl_add_u32", V(WQA), V(t0), 13, V(t1))
    a.valu("v_lshrrev_b32", V(t0), 1, V(vI))
    a.salu("s_lshl_b32", S(sT2), S(sW), 13)
    for e in range(2):
        a.valu("v_add_u32", V(t1), 4 * e, V(vG))
        a.valu("v_xor_b32", V(t1), V(t1), V(t0))
        a.valu("v_lshlrev_b32", V(t1), 4, V(t1))
        a.valu("v_lshl_add_u32", V(t1), V(vI), 7, V(t1))
        a.valu("v_add_u32", V(t1), XB, V(t1))
        a.valu("v_add_u32", V(XA + e), S(sT2), V(t1))
        a.valu("v_add_u32", V(XA + 2 + e), 8 * 2048, V(t1))
    a.valu("v_lshrrev_b32", V(t0), 3, V(vL))
    a.salu("s_lshl_b32", S(sT2), S(sW), 2)
    a.valu("v_add_u32", V(t1), S(sT2), V(vG))
    a.valu("v_and_b32", V(t2), 7, V(vL))
    a.valu("v_xor_b32", V(t1), V(t1), V(t2))
    a.valu("v_lshlrev_b32", V(t1), 4, V(t1))
    a.valu("v_lshl_add_u32", V(DXv), V(t0), 10, V(t1))
    a.salu("s_lshl_b32", S(sT2), S(sW), 13)
    a.valu("v_add_u32", V(DXv), S(sT2), V(DXv))

    PFA, PFD = 203, 204
    a.valu("v_lshlrev_b32", V(PFA), 7, V(vL))
    a.salu("s_lshl_b32", S(sT2), S(sW), 13)
    a.valu("v_add_u32", V(PFA), S(sT2), V(PFA))
    NPF = opt("npf", 0)
    pf_list = []
    for j in range(1, 1 + NPF):
        pf_list.append((sV if j & 1 else sK, (j >> 1) * 16384))

    def pf_op(j):
        srd, off = pf_list[j]

        def f():
            a.salu("s_mov_b32", S(sT3), off)
            bload("buffer_load_dword", V(PFD), V(PFA), S(srd, 4), S(sT3))
        return f

    def load_wq_ops(c):
        base = WS + (c % 4) * 16
        ops = []
        for j in range(2):
            for e in range(2):
                def f(j=j, e=e):
                    a.salu("s_add_u32", S(sT2), S(sWQoff), (c * 32 + 8 * j + e) * 8192)
                    bload("buffer_load_dwordx4", A(base + (j * 2 + e) * 4, 4), V(WQA), S(sWQ, 4), S(sT2))
                ops.append(f)
        return ops

    xlast = {}

    def issue_x_ops(c):
        lb = XB + (c & 1) * XSZ
        ops = []
        for i in range(9):
            def f(i=i):
                a.salu("s_add_u32", "m0", S(sDM0), lb + i * 2048)
                a.salu("s_mov_b32", S(sT3), i * 16384 + c * 128)
                dma(V(DXv), S(sX, 4), S(sT3))
                xlast[c] = a.vmn
            ops.append(f)
        return ops

    def write_wq_ops(c):
        base = WS + (c % 4) * 16
        boff = WB + (c % 3) * 8192
        ops = []
        for j in range(2):
            b0 = base + j * 8
            ops.append(lambda j=j, b0=b0: a.ds_write("ds_write_b128", V(WW + j), A(b0, 4), off=boff))
            ops.append(lambda j=j, b0=b0: a.ds_write("ds_write_b64", V(WW + j), A(b0 + 4, 2), off=boff + 256 + 8))
            ops.append(lambda j=j, b0=b0: a.ds_write("ds_write_b64", V(WW + j), A(b0 + 6, 2), off=boff + 256))
        return ops

    def frag_read_ops(i):
        p = i & 1
        boff = WB + (i % 3) * 8192
        xoff = ((i // 2) & 1) * XSZ
        ops = []
        for r in range(4):
            ops.append(lambda r=r: a.ds_read("ds_read_b128", A(XFs(p) + 4 * r, 4), V(XA + (i & 1)), off=xoff + r * 2048))
        ops.append(lambda: a.ds_read("ds_read_b128", A(XFs(p) + 16, 4), V(XA + 2 + (i & 1)), off=xoff))
        for Tt in range(8):
            ops.append(lambda Tt=Tt: a.ds_read("ds_read_b64_tr_b16", A(AFs(p) + Tt * 4, 2), V(AW + Tt), off=boff))
            ops.append(lambda Tt=Tt: a.ds_read("ds_read_b64_tr_b16", A(AFs(p) + Tt * 4 + 2, 2), V(AW + Tt), off=boff + 1024))
        return ops

    stamp(True)
    if stamps:
        a.misc(f"s_getreg_b32 s{SB + 2 * nst[0]}, hwreg(HW_REG_HW_ID)")
        nst[0] += 1
        a.misc(f"s_getreg_b32 s{SB + 2 * nst[0]}, hwreg(HW_REG_XCC_ID)")
        nst[0] += 1
    stamp()
    run(load_wq_ops(0))
    run(load_wq_ops(1))
    run(issue_x_ops(0))
    run(load_wq_ops(2))
    run(load_wq_ops(3))
    run(issue_x_ops(1))
    for i in list(range(112)) + list(range(144, 176)):
        a.valu("v_mov_b32", V(i), 0)
    run(write_wq_ops(0))
    run(write_wq_ops(1))
    run(load_wq_ops(4))
    K0S = opt("k0s", 0)
    if K0S == 0:
        run(tile_ops(False, slot_of(0)))
    a.waitcnt(vm=a.vmn - xlast[0], lgkm=0)
    a.barrier()
    run(frag_read_ops(0))

    lbl = [0]
    slow_lines = []

    def newlabel():
        lbl[0] += 1
        return f"{name}_n{lbl[0]}"

    def qproj():
        for i in range(16):
            p = i & 1
            main = []
            for Tt in range(8):
                for r in range(4):
                    main.append(lambda Tt=Tt, r=r: a.mfma(V(QA(Tt, r), 4), A(AFs(p) + Tt * 4, 4), A(XFs(p) + 4 * r, 4), V(QA(Tt, r), 4)))
                if Tt < 4:
                    main.append(lambda Tt=Tt: a.mfma(V(QA9(Tt & 3), 4), A(AFs(p) + Tt * 4, 4), A(XFs(p) + 16, 4), V(QA9(Tt & 3), 4)))
            n = len(main)
            g = []
            if i % 2 == 1 and (i + 3) // 2 < 8:
                g += issue_x_ops((i + 3) // 2)
            wr = write_wq_ops(i + 2) if i + 2 < 16 else []
            g2 = load_wq_ops(i + 5) if i + 5 < 16 else []
            if K0S and i == K0S:
                g2 = g2 + tile_ops(False, slot_of(0))
            if i % 2 == 0 and i // 2 < len(pf_list):
                g2 = g2 + [pf_op(i // 2)]
            rd = frag_read_ops(i + 1) if i + 1 < 16 else []
            streams = [([(0, n, f) for f in wr] + [(6, n - 6, f) for f in rd], 1),
                       ([(1, n, f) for f in g] + [(10, n, f) for f in g2], 1)]
            interleave(main, streams, budget=2)
            c = (i + 2) // 2
            if i % 2 == 0 and c < 8:
                a.waitcnt(vm=a.vmn - xlast[c], lgkm=0)
            else:
                a.waitcnt(lgkm=0)
            a.barrier()

    def max_ops(sb, n, ta):
        ops = [lambda: a.valu("v_max3_f32", V(ta), V(sb), V(sb + 1), V(sb + 2))]
        j = 3
        while j + 1 < n:
            ops.append(lambda j=j: a.valu("v_max3_f32", V(ta), V(ta), V(sb + j), V(sb + j + 1)))
            j += 2
        if j < n:
            ops.append(lambda j=j: a.valu("v_max_f32", V(ta), V(ta), V(sb + j)))
        return ops

    def check(tiles):
        if "nocheck" in dbg:
            return
        tc, tb, td = T + 5, T + 6, T + 7
        a.valu("v_max3_f32", V(tc), V(tiles[0][2]), V(tiles[1][2]), V(tiles[2][2]))
        if len(tiles) == 5:
            a.valu("v_max3_f32", V(tc), V(tc), V(tiles[3][2]), V(tiles[4][2]))
        else:
            a.valu("v_max_f32", V(tc), V(tc), V(tiles[3][2]))
        a.valu("v_cmp_lt_f32", "vcc", S(sThr), V(tc))
        L, LB = newlabel(), newlabel()
        a.nop(5)
        a.misc(f"s_cbranch_vccnz {L}")
        a.label(LB)
        main_lines = a.lines
        saved = (list(a.hist), a.pos, list(a.lgkm), list(a.vm))
        a.lines = slow_lines
        a.label(L)
        a.nop(8)
        for (sb, r, ta) in tiles:
            for pl in ("v_permlane16_swap_b32", "v_permlane32_swap_b32"):
                a.valu("v_mov_b32", V(tb), V(ta))
                a.valu(pl, V(ta), V(tb))
                a.valu("v_max_f32", V(ta), V(ta), V(tb))
            a.valu("v_cmp_eq_f32", "vcc", 0, V(LA(r)))
            a.valu("v_max_f32", V(tb), 0, V(ta))
            a.valu("v_cndmask_b32", V(ta), V(tb), V(ta), "vcc")
            for j in range(8):
                a.valu("v_sub_f32", V(sb + j), V(sb + j), V(ta))
            for e in range(4):
                a.valu("v_sub_f32", V(NM(r) + e), V(NM(r) + e), V(ta))
            a.valu("v_exp_f32", V(tb), "-" + V(tb))
            for e in range(4):
                a.valu("v_mul_f32", V(LA(r) + e), V(LA(r) + e), V(tb))
            for k in range(32):
                a.valu("v_accvgpr_read_b32", V(td), A(OA(r, 0) + k))
                a.valu("v_mul_f32", V(td), V(td), V(tb))
                a.valu("v_accvgpr_write_b32", A(OA(r, 0) + k), V(td))
        a.nop(4)
        a.misc(f"s_branch {LB}")
        a.lines = main_lines
        a.hist, a.pos, a.lgkm, a.vm = list(saved[0]), saved[1], list(saved[2]), list(saved[3])

    def check_first(tiles):
        tb = T + 6
        for pl in ("v_permlane16_swap_b32", "v_permlane32_swap_b32"):
            for k, (sb, r, ta) in enumerate(tiles):
                a.valu("v_mov_b32", V(tb + k), V(ta))
            for k, (sb, r, ta) in enumerate(tiles):
                a.valu(pl, V(ta), V(tb + k))
            for k, (sb, r, ta) in enumerate(tiles):
                a.valu("v_max_f32", V(ta), V(ta), V(tb + k))
        for (sb, r, ta) in tiles:
            for j in range(8):
                a.valu("v_sub_f32", V(sb + j), V(sb + j), V(ta))
            for e in range(4):
                a.valu("v_sub_f32", V(NM(r) + e), V(NM(r) + e), V(ta))

    def exp_ops(bases):
        ops = []
        for b0 in bases:
            for j in range(8):
                ops.append(lambda b0=b0, j=j: a.valu("v_exp_f32", V(b0 + j), V(b0 + j)))
            for e in range(4):
                ops.append(lambda b0=b0, e=e: a.valu("v_cvt_pk_bf16_f32", V(b0 + e), V(b0 + 2 * e), V(b0 + 2 * e + 1)))
        return ops

    def opt(key, default):
        v = [d[len(key):] for d in dbg if d.startswith(key) and d[len(key):].isdigit()]
        return int(v[0]) if v else default
    LEAD = opt("lead", 8)
    BUD = opt("bud", 2)
    VXC = opt("vxc", 2)
    FSC = opt("fsc", 1)
    DSP = int([d[3:] for d in dbg if d.startswith('dsp')][0]) if any(d.startswith('dsp') for d in dbg) else 6

    def frag_stream(items):
        st = []
        for k, (fu, lu, fn) in enumerate(items):
            rel = 0 if k < NFR else items[k - NFR][1] + 1
            dl = max(rel, fu - LEAD)
            st.append((rel, dl, (lambda fn=fn, k=k: fn(k % NFR))))
        return st

    class Seg:
        def __init__(self):
            self.main, self.items, self.vx, self.dm = [], [], [], []

        def tiles(self, h):
            u = h & 1
            tl = [(SS(r, 2 * u), r, T + r) for r in range(4)]
            if u == 0:
                tl.append((S9, 4, T + 4))
            return tl

        def X(self, h):
            kslot = slot_of(2 * (h >> 1)) * SLOT
            tl = self.tiles(h)
            for ktl in range(2):
                kt = 2 * (h & 1) + ktl
                for t in range(4):
                    k = len(self.items)
                    self.items.append((len(self.main), len(self.main) + len(tl) - 1,
                                       lambda sl, kt=kt, t=t: a.ds_read("ds_read_b128", V(FR + 4 * sl, 4), V(AK + 4 * (kt >> 1) + t), off=kslot + kt * 4096)))
                    for (sb, r, _) in tl:
                        d = V(sb + 4 * ktl, 4)
                        self.main.append(lambda d=d, t=t, r=r, k=k: a.mfma(d, V(FR + 4 * (k % NFR), 4), A(QF(r, t), 4), d if t else V(NM(r), 4)))

        def Y(self, h):
            vslot = slot_of(2 * (h >> 1) + 1) * SLOT
            u = h & 1
            tl = self.tiles(h)
            for (sb, r, _) in tl:
                self.main.append(lambda sb=sb, r=r: a.mfma(V(LA(r), 4), V(ONES, 4), V(sb, 4), V(LA(r), 4)))
            for dt in range(8):
                k = len(self.items)

                def rd(sl, dt=dt):
                    a.ds_read("ds_read_b64_tr_b16", V(FR + 4 * sl, 2), V(AV + 8 * u + dt), off=vslot + u * 8192)
                    a.ds_read("ds_read_b64_tr_b16", V(FR + 4 * sl + 2, 2), V(AV + 8 * u + dt), off=vslot + u * 8192 + 4096)
                self.items.append((len(self.main), len(self.main) + len(tl) - 1, rd))
                for (sb, r, _) in tl:
                    self.main.append(lambda dt=dt, sb=sb, r=r, k=k: a.mfma(A(OA(r, dt), 4), V(FR + 4 * (k % NFR), 4), V(sb, 4), A(OA(r, dt), 4)))

        def exp(self, h, rel, dl):
            self.vx += [(rel, dl, f) for f in exp_ops([sb for sb, _, _ in self.tiles(h)])]

        def mx(self, h, rel, dl):
            ol = [max_ops(sb, 8, ta) for sb, _, ta in self.tiles(h)]
            for j in range(len(ol[0])):
                for o in ol:
                    self.vx.append((rel, dl, o[j]))

        def chk(self, h):
            tl = self.tiles(h)
            self.main.append(lambda: check(tl) if h else check_first(tl))

        def emit(self):
            fs = frag_stream(self.items)
            interleave(self.main, [(fs, FSC), (self.vx, VXC), (self.dm, 1)], budget=BUD)

    def sync():
        a.waitcnt(vm=0, lgkm=0)
        if "nobar" not in dbg:
            a.barrier()

    def body(s, first=False):
        g = Seg()
        if not first:
            g.Y(2 * s - 2)
            g.mx(2 * s - 1, 0, len(g.main))
            g.dm = [(DSP * k, 10 ** 6, f) for k, f in enumerate(tile_ops(True, slot_of(2 * s + 1)) + tile_ops(False, slot_of(2 * s + 2)))]
            g.chk(2 * s - 1)
            g.main.append(lambda: seg(0))
        n0 = len(g.main)
        g.X(2 * s)
        g.main.append(lambda: seg(1))
        if not first:
            g.exp(2 * s - 1, n0, len(g.main))
            n0 = len(g.main)
            g.Y(2 * s - 1)
            g.mx(2 * s, n0 + 3, len(g.main))
        else:
            g.mx(2 * s, len(g.main), len(g.main))
        g.chk(2 * s)
        g.main.append(lambda: seg(2))
        n0 = len(g.main)
        g.X(2 * s + 1)
        g.exp(2 * s, n0, len(g.main))
        g.dm = [(r, min(d, len(g.main)), f) for (r, d, f) in g.dm]
        g.emit()
        seg(3)
        a.waitcnt(vm=0, lgkm=0)
        seg(4)
        sync()
        seg(5)

    def attention():
        qproj()
        if "qonly" in dbg:
            a.misc("s_endpgm")
        run(tile_ops(True, slot_of(1)))
        run(tile_ops(False, slot_of(2)))
        stamp()
        tq = 192
        for r in range(4):
            for t in range(4):
                lo, hi = QA(2 * t, r), QA(2 * t + 1, r)
                for k, src in enumerate((lo, lo + 2, hi, hi + 2)):
                    a.valu("v_mul_f32", V(src), S(sC), V(src))
                    a.valu("v_mul_f32", V(src + 1), S(sC), V(src + 1))
                    a.valu("v_cvt_pk_bf16_f32", V(tq + k), V(src), V(src + 1))
                for k in range(4):
                    a.valu("v_accvgpr_write_b32", A(QF(r, t) + k), V(tq + k))
        vl, ta, tb = 200, 201, 202
        a.valu("v_mbcnt_lo_u32_b32", V(vl), -1, 0)
        a.valu("v_mbcnt_hi_u32_b32", V(vl), -1, V(vl))
        a.valu("v_lshlrev_b32", V(ta), 4, V(vl))
        for j in range(2):
            lo, hi = QA9(2 * j), QA9(2 * j + 1)
            for k, src in enumerate((lo, lo + 2, hi, hi + 2)):
                a.valu("v_mul_f32", V(src), S(sC), V(src))
                a.valu("v_mul_f32", V(src + 1), S(sC), V(src + 1))
                a.valu("v_cvt_pk_bf16_f32", V(tq + 4 * j + k), V(src), V(src + 1))
            if j == 0:
                a.salu("s_lshl_b32", S(sT2), S(sW), 11)
                a.valu("v_add_u32", V(tb), S(sT2), V(ta))
                a.valu("v_subrev_u32", V(vl), S(sT2), V(ta))
            a.ds_write("ds_write_b128", V(tb), V(tq + 4 * j, 4), off=WB + j * 1024)
        a.waitcnt(lgkm=0)
        a.barrier()
        for t in range(4):
            a.ds_read("ds_read_b128", A(QF(4, t), 4), V(tb if t < 2 else vl), off=WB + t * 1024)
        a.valu("v_mov_b32", V(tb), 0)
        for i in range(160):
            a.valu("v_accvgpr_write_b32", A(i), V(tb))
        for i in range(40):
            a.valu("v_mov_b32", V(NM(0) + i), 0)
        for i in range(4):
            a.valu("v_mov_b32", V(ONES + i), "0x3f803f80")
        a.salu("s_mov_b32", S(sThr), hex(f32bits(THR)))
        a.waitcnt(vm=16, lgkm=0)
        a.barrier()
        if stamps:
            for k in range(12):
                a.salu("s_mov_b32", S(86 + k), 0)
        seg(11)
        body(0, True)
        body(1)
        a.salu("s_mov_b32", S(sIt), 0)
        a.flush()
        Lp = newlabel()
        a.label(Lp)
        body(2)
        body(3)
        a.salu("s_add_u32", S(sIt), S(sIt), 1)
        a.salu("s_cmp_lt_u32", None, S(sIt), 3)
        a.nop(8)
        a.misc(f"s_cbranch_scc1 {Lp}")
        g = Seg()
        g.Y(14)
        g.mx(15, 0, len(g.main))
        g.chk(15)
        g.exp(15, len(g.main), len(g.main))
        g.Y(15)
        g.emit()
        a.flush()

    attention()
    a.waitcnt(vm=0, lgkm=0)
    stamp()

    vL, vG, vI = 0, 1, 2
    t0, t1, t2, t3 = 4, 5, 6, 7
    vSt = 8
    a.valu("v_mbcnt_lo_u32_b32", V(vL), -1, 0)
    a.valu("v_mbcnt_hi_u32_b32", V(vL), -1, V(vL))
    a.valu("v_lshrrev_b32", V(vG), 4, V(vL))
    a.valu("v_and_b32", V(vI), 15, V(vL))
    a.valu("v_and_b32", V(t0), 1, V(vG))
    a.valu("v_lshrrev_b32", V(t1), 1, V(vG))
    a.valu("v_lshl_add_u32", V(t0), V(t0), 1, V(t1))
    a.valu("v_lshlrev_b32", V(t1), 4, V(vI))
    a.valu("v_lshl_add_u32", V(vSt), V(t0), 8, V(t1))
    a.barrier()
    CB = 0
    PB = 4096
    a.valu("v_mov_b32", V(t2), V(NM(4)))
    a.valu("v_mov_b32", V(t3), V(LA(4)))
    a.salu("s_lshl_b32", S(sT2), S(sW), 7)
    a.valu("v_lshlrev_b32", V(t0), 3, V(vI))
    a.valu("v_add_u32", V(t1), S(sT2), V(t0))
    a.ds_write("ds_write_b64", V(t1), V(t2, 2), off=CB)
    a.waitcnt(lgkm=0)
    a.barrier()
    ml = 12
    for w in range(2):
        a.ds_read("ds_read_b64", V(ml + 2 * w, 2), V(t0), off=CB + w * 128)
    a.valu("v_min_f32", V(t1), V(ml), V(ml + 2))
    a.valu("v_mov_b32", V(t2), 0)
    for w in range(2):
        a.valu("v_sub_f32", V(t3), V(t1), V(ml + 2 * w))
        a.valu("v_exp_f32", V(t3), V(t3))
        a.valu("v_fma_f32", V(t2), V(t3), V(ml + 2 * w + 1), V(t2))
    a.valu("v_sub_f32", V(t3), V(t1), V(NM(4)))
    a.valu("v_exp_f32", V(t3), V(t3))
    a.valu("v_rcp_f32", V(t2), V(t2))
    a.valu("v_mul_f32", V(t3), V(t3), V(t2))
    NB = 32
    for k in range(32):
        a.valu("v_accvgpr_read_b32", V(NB + k), A(OA(4, 0) + k))
    for k in range(32):
        a.valu("v_mul_f32", V(NB + k), V(NB + k), V(t3))
    a.valu("v_lshlrev_b32", V(t0), 4, V(vL))
    a.salu("s_lshl_b32", S(sT2), S(sW), 13)
    a.valu("v_add_u32", V(t1), S(sT2), V(t0))
    for dt in range(8):
        a.ds_write("ds_write_b128", V(t1), V(NB + 4 * dt, 4), off=PB + dt * 1024)
    for r in range(4):
        a.valu("v_rcp_f32", V(t2), V(LA(r)))
        a.salu("s_lshl_b32", S(sT2), S(sW), 12)
        a.salu("s_add_u32", S(sT2), S(sT2), r * 1024)
        for kk in range(4):
            o = 144 + ((r * 4 + kk) % 8) * 8
            for e in range(8):
                a.valu("v_accvgpr_read_b32", V(o + e), A(OA(r, 2 * kk) + e))
            for e in range(8):
                a.valu("v_mul_f32", V(o + e), V(o + e), V(t2))
            for e in range(4):
                a.valu("v_cvt_pk_bf16_f32", V(o + e), V(o + 2 * e), V(o + 2 * e + 1))
            a.valu("v_permlane16_swap_b32", V(o), V(o + 2))
            a.valu("v_permlane16_swap_b32", V(o + 1), V(o + 3))
            a.salu("s_add_u32", S(sT3), S(sT2), kk * 9216)
            bstore("buffer_store_dwordx4", V(o, 4), V(vSt), S(sO, 4), S(sT3), flags="sc0 sc1")
    a.waitcnt(lgkm=0)
    a.barrier()
    a.salu("s_lshl_b32", S(sT2), S(sW), 12)
    a.valu("v_add_u32", V(t1), S(sT2), V(t0))
    RB = 64
    for j in range(4):
        for w in range(2):
            a.ds_read("ds_read_b128", V(RB + (j * 2 + w) * 4, 4), V(t1), off=PB + w * 8192 + j * 1024)
    a.salu("s_mul_i32", S(sT2), S(sW), 2 * 9216)
    a.salu("s_add_u32", S(sT2), S(sT2), 8 * 1024)
    for j in range(4):
        b0 = RB + j * 8
        for e in range(4):
            a.valu("v_add_f32", V(b0 + e), V(b0 + e), V(b0 + 4 + e))
    for jj in range(2):
        o = 144 + jj * 4
        b0, b1 = RB + (2 * jj) * 8, RB + (2 * jj + 1) * 8
        a.valu("v_cvt_pk_bf16_f32", V(o), V(b0), V(b0 + 1))
        a.valu("v_cvt_pk_bf16_f32", V(o + 1), V(b0 + 2), V(b0 + 3))
        a.valu("v_cvt_pk_bf16_f32", V(o + 2), V(b1), V(b1 + 1))
        a.valu("v_cvt_pk_bf16_f32", V(o + 3), V(b1 + 2), V(b1 + 3))
        a.valu("v_permlane16_swap_b32", V(o), V(o + 2))
        a.valu("v_permlane16_swap_b32", V(o + 1), V(o + 3))
        a.salu("s_add_u32", S(sT3), S(sT2), jj * 9216)
        bstore("buffer_store_dwordx4", V(o, 4), V(vSt), S(sO, 4), S(sT3), flags="sc0 sc1")
    if stamps:
        stamp()
        stamp(True)
        a.salu("s_add_u32", S(sX), "s12", 0x3000000)
        a.salu("s_addc_u32", S(sX + 1), "s13", 0)
        a.salu("s_mov_b32", S(sX + 2), 0x100000)
        a.salu("s_lshl_b32", S(sT2), "s2", 10)
        a.salu("s_lshl_b32", S(sT3), S(sW), 8)
        a.salu("s_add_u32", S(sT2), S(sT2), S(sT3))
        a.salu("s_mov_b64", "exec", 1)
        a.valu("v_mov_b32", V(t1), 0)
        for i in range(nst[0]):
            a.valu("v_mov_b32", V(t0), S(SB + 2 * i))
            a.bstore("buffer_store_dword", V(t0), V(t1), S(sX, 4), S(sT2), off=4 * i)
        for i in range(12):
            a.valu("v_mov_b32", V(t0), S(86 + i))
            a.bstore("buffer_store_dword", V(t0), V(t1), S(sX, 4), S(sT2), off=128 + 4 * i)
    a.label(f"{name}_done")
    a.misc("s_endpgm")
    a.lines += slow_lines
    return a
```

```python
from asmlib import Asm, V, S
from sched import interleave

WS_P = 0x1300000
K2SP = 0
STAGE = 34816
LDS_K2 = 4 * STAGE


def gen_k2(name, stamps=False):
    a = Asm()
    a.label(name)
    nst = [0]

    def stamp():
        if not stamps:
            return
        a.misc(f"s_memrealtime s[{60 + 2 * nst[0]}:{61 + 2 * nst[0]}]")
        a.waitcnt(lgkm=0)
        nst[0] += 1
    sO, sWO, sP = 16, 20, 24
    sW, sT0, sT1, sT2, sT3 = 28, 29, 30, 31, 32
    sKS, sNQ, sB, sBLK = 33, 34, 35, 36
    sDM0, sOr, sWr, sIt = 37, 38, 39, 40
    sO5g, sO5l, sOw = 41, 42, 43
    ACC = lambda nt, qt: (nt * 9 + qt) * 4
    BF = lambda p: 72 + 44 * p
    AF = lambda p: 72 + 44 * p + 36
    AO = 160
    AWo = 168
    DO = 176
    DW = 177
    T = 178
    vL, vG, vI = T, T + 1, T + 2
    t0, t1, t2, t3 = T + 4, T + 5, T + 6, T + 7

    a.salu("s_cmp_ge_u32", None, "s2", 256)
    a.misc(f"s_cbranch_scc1 {name}_done")
    a.misc("s_load_dwordx2 s[4:5], s[0:1], 32")
    a.misc("s_load_dwordx2 s[6:7], s[0:1], 72")
    a.misc("s_load_dwordx2 s[12:13], s[0:1], 96")
    a.misc("s_load_dwordx2 s[8:9], s[0:1], 88")
    a.misc("s_load_dwordx2 s[10:11], s[0:1], 80")
    a.valu("v_and_b32", V(vL), 63, "v0")
    a.valu("v_lshrrev_b32", V(T + 3), 6, "v0")
    a.valu("v_lshrrev_b32", V(vG), 4, V(vL))
    a.valu("v_and_b32", V(vI), 15, V(vL))
    a.valu("v_readfirstlane_b32", S(sW), V(T + 3))
    a.misc("s_waitcnt lgkmcnt(0)")
    a.salu("s_and_b32", S(sKS), "s2", 3)
    a.salu("s_lshr_b32", S(sBLK), "s2", 2)
    a.salu("s_and_b32", S(sBLK), S(sBLK), 1)
    a.salu("s_lshr_b32", S(sNQ), "s2", 3)
    a.salu("s_and_b32", S(sNQ), S(sNQ), 3)
    a.salu("s_lshr_b32", S(sB), "s2", 5)
    a.salu("s_cmp_eq_u32", None, S(sBLK), 0)
    a.salu("s_cselect_b32", S(sWO), "s4", "s6")
    a.salu("s_cselect_b32", S(sWO + 1), "s5", "s7")
    a.salu("s_mov_b32", S(sWO + 2), 4194304)
    a.salu("s_mov_b32", S(sWO + 3), "0x00020000")
    a.salu("s_mul_i32", S(sT0), S(sBLK), 9437184)
    a.salu("s_mul_i32", S(sT1), S(sB), 1179648)
    a.salu("s_add_u32", S(sT0), S(sT0), S(sT1))
    a.salu("s_add_u32", S(sO), "s12", S(sT0))
    a.salu("s_addc_u32", S(sO + 1), "s13", 0)
    a.salu("s_mov_b32", S(sO + 2), 1179648)
    a.salu("s_mov_b32", S(sO + 3), "0x00020000")
    sTile = 44
    a.salu("s_lshl_b32", S(sTile), S(sBLK), 3)
    a.salu("s_add_u32", S(sTile), S(sTile), S(sB))
    a.salu("s_lshl_b32", S(sTile), S(sTile), 2)
    a.salu("s_add_u32", S(sTile), S(sTile), S(sNQ))
    a.salu("s_mul_i32", S(sT0), S(sTile), 4 * 36864)
    a.salu("s_add_u32", S(sT0), S(sT0), WS_P)
    a.salu("s_add_u32", S(sP), "s12", S(sT0))
    a.salu("s_addc_u32", S(sP + 1), "s13", 0)
    a.salu("s_mov_b32", S(sP + 2), 4 * 36864)
    a.salu("s_mov_b32", S(sP + 3), "0x00020000")
    sD, sOut = 48, 52
    a.salu("s_mov_b32", S(sD), "s8")
    a.salu("s_mov_b32", S(sD + 1), "s9")
    a.salu("s_mov_b32", S(sD + 2), 256)
    a.salu("s_mov_b32", S(sD + 3), "0x00020000")
    a.salu("s_mov_b32", S(sOut), "s10")
    a.salu("s_mov_b32", S(sOut + 1), "s11")
    a.salu("s_mov_b32", S(sOut + 2), 2359296)
    a.salu("s_mov_b32", S(sOut + 3), "0x00020000")
    a.salu("s_lshl_b32", S(sDM0), S(sW), 10)
    a.salu("s_mul_i32", S(sOr), S(sKS), 8 * 36864)
    a.salu("s_lshl_b32", S(sWr), S(sKS), 20)
    a.salu("s_lshl_b32", S(sT0), S(sNQ), 8)
    a.salu("s_add_u32", S(sWr), S(sWr), S(sT0))
    a.salu("s_and_b32", S(sT0), S(sW), 1)
    a.salu("s_add_u32", S(sT0), S(sT0), 16)
    a.salu("s_lshl_b32", S(sO5l), S(sT0), 10)
    a.valu("v_lshlrev_b32", V(DO), 4, V(vL))
    a.salu("s_lshl_b32", S(sT0), S(sW), 2)
    a.valu("v_add_u32", V(t0), S(sT0), V(vG))
    a.salu("s_lshr_b32", S(sT0), S(sW), 1)
    a.salu("s_lshl_b32", S(sT0), S(sT0), 2)
    a.valu("v_add_u32", V(t1), S(sT0), V(vG))
    a.valu("v_lshlrev_b32", V(t1), 1, V(t1))
    a.valu("v_xor_b32", V(t1), V(vI), V(t1))
    a.valu("v_lshlrev_b32", V(t1), 4, V(t1))
    a.valu("v_lshl_add_u32", V(DW), V(t0), 10, V(t1))
    for st in range(4):
        a.valu("v_add_u32", V(AO + 2 * st), st * STAGE, V(DO))
    a.valu("v_lshrrev_b32", V(t0), 2, V(vI))
    a.valu("v_lshl_add_u32", V(t1), V(vG), 3, V(t0))
    a.valu("v_and_b32", V(t2), 1, V(vG))
    a.valu("v_lshl_add_u32", V(t2), V(t2), 2, V(t0))
    a.valu("v_and_b32", V(t3), 3, V(vI))
    a.valu("v_lshlrev_b32", V(t3), 3, V(t3))
    a.valu("v_lshl_add_u32", V(t3), V(t1), 8, V(t3))
    a.salu("s_lshl_b32", S(sT0), S(sW), 1)
    for nt in range(2):
        a.salu("s_add_u32", S(sT1), S(sT0), nt)
        a.valu("v_xor_b32", V(t0), S(sT1), V(t2))
        a.valu("v_lshl_add_u32", V(t0), V(t0), 5, V(t3))
        for st in range(4):
            a.valu("v_add_u32", V(AWo + 2 * st + nt), st * STAGE + 18432, V(t0))

    def issue_ops(st, half):
        lb = st * STAGE
        ops = []
        for i in range(5):
            def f(i=i):
                if i < 4:
                    a.salu("s_add_u32", "m0", S(sDM0), lb + i * 4096)
                    a.salu("s_add_u32", S(sT3), S(sOr), i * 4096)
                    a.salu("s_add_u32", S(sT3), S(sT3), S(sDM0))
                else:
                    a.salu("s_add_u32", "m0", S(sO5l), lb)
                    a.salu("s_add_u32", S(sT3), S(sOr), S(sO5l))
                a.dma(V(DO), S(sO, 4), S(sT3))
                if i == 4:
                    a.salu("s_add_u32", S(sOr), S(sOr), 18432)
            ops.append(f)
        for i in range(4):
            def f(i=i):
                a.salu("s_add_u32", "m0", S(sDM0), lb + 18432 + i * 4096)
                a.salu("s_add_u32", S(sT3), S(sWr), (16 * i) * 1024)
                a.dma(V(DW), S(sWO, 4), S(sT3))
                if i == 3:
                    a.salu("s_add_u32", S(sWr), S(sWr), 64 * 1024)
            ops.append(f)
        return ops

    def read_ops(st, e, p):
        ops = []
        for nt in range(2):
            ops.append(lambda nt=nt: a.ds_read("ds_read_b64_tr_b16", V(AF(p) + 4 * nt, 2), V(AWo + 2 * st + nt), off=e * 8192))
            ops.append(lambda nt=nt: a.ds_read("ds_read_b64_tr_b16", V(AF(p) + 4 * nt + 2, 2), V(AWo + 2 * st + nt), off=e * 8192 + 1024))
        for qt in range(9):
            ops.append(lambda qt=qt: a.ds_read("ds_read_b128", V(BF(p) + 4 * qt, 4), V(AO + 2 * st), off=(e * 9 + qt) * 1024))
        return ops

    def mf(p):
        m = []
        for qt in range(9):
            for nt in range(2):
                m.append(lambda qt=qt, nt=nt: a.mfma(V(ACC(nt, qt), 4), V(AF(p) + 4 * nt, 4), V(BF(p) + 4 * qt, 4), V(ACC(nt, qt), 4)))
        return m

    stamp()
    for st in range(3):
        for f in issue_ops(st, st & 1):
            f()
    for i in range(72):
        a.valu("v_mov_b32", V(i), 0)
    a.salu("s_mov_b32", S(sIt), 0)
    a.waitcnt(vm=9, lgkm=0)
    a.barrier()
    stamp()
    for f in read_ops(0, 0, 0):
        f()
    a.nop(4)
    a.label(f"{name}_loop")
    for kt in range(4):
        if kt == 1:
            a.salu("s_cmp_eq_u32", None, S(sIt), 3)
            a.salu("s_cselect_b32", S(sO + 2), 0, S(sO + 2))
            a.salu("s_cselect_b32", S(sWO + 2), 0, S(sWO + 2))
        dm = issue_ops((kt + 3) % 4, (kt + 3) & 1)
        SP = K2SP
        interleave(mf(0), [[(0, 16, f) for f in read_ops(kt, 1, 1)], [(SP * k, 18, f) for k, f in enumerate(dm[:5])]], budget=2)
        interleave(mf(1), [[(0, 16, f) for f in read_ops((kt + 1) % 4, 0, 0)], [(SP * k, 18, f) for k, f in enumerate(dm[5:])]], budget=2)
        a.waitcnt(vm=9)
        a.barrier()
    a.salu("s_add_u32", S(sIt), S(sIt), 1)
    a.salu("s_cmp_lt_u32", None, S(sIt), 4)
    a.nop(4)
    a.misc(f"s_cbranch_scc1 {name}_loop")
    a.waitcnt(vm=0, lgkm=0)
    stamp()
    a.valu("v_lshlrev_b32", V(t0), 4, V(vL))
    a.salu("s_mul_i32", S(sT0), S(sW), 9216)
    a.salu("s_mul_i32", S(sT1), S(sKS), 36864)
    a.salu("s_add_u32", S(sT1), S(sT1), S(sT0))
    for qt in range(9):
        o = 72 + 4 * qt
        for nt in range(2):
            c = ACC(nt, qt)
            a.valu("v_cvt_pk_bf16_f32", V(o + 2 * nt), V(c), V(c + 1))
            a.valu("v_cvt_pk_bf16_f32", V(o + 2 * nt + 1), V(c + 2), V(c + 3))
        if qt % 4 == 0:
            a.salu("s_add_u32", S(sT2), S(sT1), qt * 1024)
        a.bstore("buffer_store_dwordx4", V(o, 4), V(t0), S(sP, 4), S(sT2), off=(qt % 4) * 1024, flags="sc0 sc1")
    a.label(f"{name}_fin")
    if stamps:
        a.waitcnt(vm=0)
        stamp()
        a.salu("s_add_u32", S(sO), "s12", 0x3100000)
        a.salu("s_addc_u32", S(sO + 1), "s13", 0)
        a.salu("s_mov_b32", S(sO + 2), 0x100000)
        a.salu("s_lshl_b32", S(sT2), "s2", 10)
        a.salu("s_lshl_b32", S(sT3), S(sW), 8)
        a.salu("s_add_u32", S(sT2), S(sT2), S(sT3))
        a.salu("s_mov_b64", "exec", 1)
        a.valu("v_mov_b32", V(t1), 0)
        for i in range(nst[0]):
            a.valu("v_mov_b32", V(t0), S(60 + 2 * i))
            a.bstore("buffer_store_dword", V(t0), V(t1), S(sO, 4), S(sT2), off=4 * i)
    a.label(f"{name}_done")
    a.misc("s_endpgm")
    return a


def gen_k3(name, stamps=False):
    a = Asm()
    a.label(name)
    if stamps:
        a.misc("s_memrealtime s[60:61]")
    a.salu("s_cmp_ge_u32", None, "s2", 576)
    a.misc(f"s_cbranch_scc1 {name}_done")
    a.misc("s_load_dwordx2 s[4:5], s[0:1], 80")
    a.misc("s_load_dwordx2 s[12:13], s[0:1], 96")
    a.valu("v_lshrrev_b32", "v1", 6, "v0")
    a.valu("v_readfirstlane_b32", "s20", "v1")
    a.valu("v_and_b32", "v2", 63, "v0")
    a.valu("v_lshrrev_b32", "v3", 4, "v2")
    a.valu("v_and_b32", "v4", 15, "v2")
    a.valu("v_lshlrev_b32", "v5", 4, "v2")
    a.valu("v_lshlrev_b32", "v6", 3, "v3")
    a.valu("v_lshl_add_u32", "v6", "v4", 11, "v6")
    a.misc("s_waitcnt lgkmcnt(0)")
    a.salu("s_add_u32", "s8", "s12", WS_P)
    a.salu("s_addc_u32", "s9", "s13", 0)
    a.salu("s_mov_b32", "s10", 64 * 4 * 36864)
    a.salu("s_mov_b32", "s11", "0x00020000")
    a.salu("s_mov_b32", "s16", "s4")
    a.salu("s_mov_b32", "s17", "s5")
    a.salu("s_mov_b32", "s18", 2359296)
    a.salu("s_mov_b32", "s19", "0x00020000")
    a.salu("s_mul_hi_u32", "s21", "s2", 477218589)
    a.salu("s_mul_i32", "s22", "s21", 9)
    a.salu("s_sub_u32", "s22", "s2", "s22")
    a.salu("s_mul_i32", "s23", "s21", 4 * 36864)
    a.salu("s_mul_i32", "s24", "s20", 9216)
    a.salu("s_add_u32", "s23", "s23", "s24")
    a.salu("s_lshl_b32", "s24", "s22", 10)
    a.salu("s_add_u32", "s23", "s23", "s24")
    for ks in range(4):
        a.salu("s_add_u32", "s25", "s23", ks * 36864)
        a.bload("buffer_load_dwordx4", V(56 + ks * 4, 4), "v5", "s[8:11]", "s25")
    a.salu("s_and_b32", "s26", "s21", 3)
    a.salu("s_lshr_b32", "s27", "s21", 2)
    a.salu("s_and_b32", "s28", "s27", 7)
    a.salu("s_lshr_b32", "s27", "s27", 3)
    a.salu("s_mul_i32", "s29", "s28", 144 * 2048)
    a.salu("s_lshl_b32", "s27", "s27", 10)
    a.salu("s_add_u32", "s29", "s29", "s27")
    a.salu("s_lshl_b32", "s26", "s26", 8)
    a.salu("s_add_u32", "s29", "s29", "s26")
    a.salu("s_lshl_b32", "s26", "s20", 6)
    a.salu("s_add_u32", "s29", "s29", "s26")
    a.salu("s_lshl_b32", "s26", "s22", 15)
    a.salu("s_add_u32", "s29", "s29", "s26")
    for ks in range(4):
        for e in range(4):
            a.valu("v_lshlrev_b32", V(16 + ks * 8 + 2 * e), 16, V(56 + ks * 4 + e))
            a.valu("v_and_b32", V(16 + ks * 8 + 2 * e + 1), "0xffff0000", V(56 + ks * 4 + e))
    for e in range(8):
        a.valu("v_add_f32", V(16 + e), V(16 + e), V(24 + e))
    for e in range(8):
        a.valu("v_add_f32", V(32 + e), V(32 + e), V(40 + e))
    for e in range(8):
        a.valu("v_add_f32", V(16 + e), V(16 + e), V(32 + e))
    for e in range(4):
        a.valu("v_cvt_pk_bf16_f32", V(48 + e), V(16 + 2 * e), V(17 + 2 * e))
    a.bstore("buffer_store_dwordx2", "v[48:49]", "v6", "s[16:19]", "s29")
    a.bstore("buffer_store_dwordx2", "v[50:51]", "v6", "s[16:19]", "s29", off=32)
    if stamps:
        a.waitcnt(vm=0)
        a.misc("s_memrealtime s[62:63]")
        a.misc("s_waitcnt lgkmcnt(0)")
        a.salu("s_add_u32", "s8", "s12", 0x3200000)
        a.salu("s_addc_u32", "s9", "s13", 0)
        a.salu("s_mov_b32", "s10", 0x100000)
        a.salu("s_lshl_b32", "s20", "s2", 10)
        a.salu("s_mov_b64", "exec", 1)
        a.valu("v_mov_b32", "v1", 0)
        a.valu("v_mov_b32", "v2", "s60")
        a.valu("v_mov_b32", "v3", "s62")
        a.bstore("buffer_store_dwordx2", "v[2:3]", "v1", "s[8:11]", "s20")
    a.label(f"{name}_done")
    a.misc("s_endpgm")
    return a
```

```python
import struct
from asmlib import Asm, V, S, A
from sched import interleave

RING = 16384
SLOT = 16384
WB = 0
XB = 24576
XSZ = 18432
LDS_K1 = 81920
THR = 8.0
BLOCK = 128

CSCALE = 1.4426950408889634 / (128.0 ** 0.5)


def f32bits(x):
    return struct.unpack("<I", struct.pack("<f", x))[0]


def OA(r, dt):
    return (r * 8 + dt) * 4


def QF(r, t):
    return 160 + (r * 4 + t) * 4


def SS(r, kt):
    return (r * 4 + kt) * 4


S9 = 64


def NM(r):
    return 72 + 4 * r


def LA(r):
    return 92 + 4 * r


ONES = 112
DK0, DK1, DV = 116, 117, 118
T = 120
FR = 144
NFR = 16
AK = 208
AV = 216

sX, sWQ, sK, sV, sO = 16, 20, 24, 28, 32
sW = 36
sC = 37
sT0 = 38
sT1 = 39
sWQoff = 48
sDM0 = 49
sT2 = 51
sT3 = 52
sH = 53
sIt, sKg, sVg = 56, 57, 58
sThr, sLow = 59, 60


def slot_of(tile):
    return (tile + 3) % 4


def gen_k1(name, stamps=False, nt=True, dbg=()):
    a = Asm()
    a.vmn = 0
    nst = [0]
    SB = 70

    def stamp(real=False):
        if not stamps:
            return
        a.waitcnt(lgkm=0)
        a.misc(f"{'s_memrealtime' if real else 's_memtime'} s[{SB + 2 * nst[0]}:{SB + 1 + 2 * nst[0]}]")
        a.misc("s_waitcnt lgkmcnt(0)")
        nst[0] += 1

    def seg(k):
        if not stamps or "seg" not in dbg:
            return
        a.misc("s_memtime s[98:99]")
        a.waitcnt(lgkm=0)
        a.salu("s_sub_u32", "s100", "s98", "s101")
        a.salu("s_add_u32", S(86 + k), S(86 + k), "s100")
        a.salu("s_mov_b32", "s101", "s98")

    def opt(key, default):
        v = [d[len(key):] for d in dbg if d.startswith(key) and d[len(key):].isdigit()]
        return int(v[0]) if v else default

    a.label(name)

    def dma(voff, srd, soff, flags=""):
        a.dma(voff, srd, soff, flags=flags)
        a.vmn += 1

    def bload(*x, **k):
        a.bload(*x, **k)
        a.vmn += 1

    def bstore(*x, **k):
        a.bstore(*x, **k)
        a.vmn += 1

    KVF = "nt" if nt else ""

    a.salu("s_cmp_ge_u32", None, "s2", 512)
    a.misc(f"s_cbranch_scc1 {name}_done")
    a.misc("s_load_dwordx8 s[4:11], s[0:1], 0")
    a.misc("s_load_dwordx8 s[40:47], s[0:1], 40")
    a.misc("s_load_dwordx2 s[12:13], s[0:1], 96")
    vL, vG, vI = 10, 11, 12
    t0, t1, t2, t3, t4, t5 = 14, 15, 16, 17, 18, 19
    a.valu("v_and_b32", V(vL), 63, "v0")
    a.valu("v_lshrrev_b32", V(t0), 6, "v0")
    a.valu("v_lshrrev_b32", V(vG), 4, V(vL))
    a.valu("v_and_b32", V(vI), 15, V(vL))
    a.valu("v_readfirstlane_b32", S(sW), V(t0))
    a.misc("s_waitcnt lgkmcnt(0)")
    a.salu("s_lshr_b32", S(sT0), "s2", 2)
    a.salu("s_and_b32", S(sT0), S(sT0), 1)
    a.salu("s_cmp_eq_u32", None, S(sT0), 0)
    for i in range(8):
        a.salu("s_cselect_b32", S(4 + i), S(4 + i), S(40 + i))
    a.salu("s_lshr_b32", S(sT1), "s2", 7)
    a.salu("s_and_b32", S(sT2), "s2", 2)
    a.salu("s_lshl_b32", S(sT2), S(sT2), 1)
    a.salu("s_add_u32", S(sT1), S(sT1), S(sT2))
    a.salu("s_lshr_b32", S(sH), "s2", 3)
    a.salu("s_and_b32", S(sH), S(sH), 15)
    a.salu("s_and_b32", S(sT2), "s2", 1)
    a.salu("s_lshl_b32", S(sT2), S(sT2), 4)
    a.salu("s_add_u32", S(sH), S(sH), S(sT2))
    a.salu("s_mul_i32", S(sT2), S(sT1), 147456)
    a.salu("s_add_u32", S(sX), "s4", S(sT2))
    a.salu("s_addc_u32", S(sX + 1), "s5", 0)
    a.salu("s_mov_b32", S(sX + 2), 147456)
    a.salu("s_mov_b32", S(sX + 3), "0x00020000")
    a.salu("s_mov_b32", S(sWQ), "s10")
    a.salu("s_mov_b32", S(sWQ + 1), "s11")
    a.salu("s_mov_b32", S(sWQ + 2), 4194304)
    a.salu("s_mov_b32", S(sWQ + 3), "0x00020000")
    a.salu("s_lshl_b32", S(sT3), S(sT1), 5)
    a.salu("s_add_u32", S(sT3), S(sT3), S(sH))
    a.salu("s_lshl_b32", S(sT2), S(sT3), 17)
    a.salu("s_add_u32", S(sK), "s6", S(sT2))
    a.salu("s_addc_u32", S(sK + 1), "s7", 0)
    a.salu("s_mov_b32", S(sK + 2), 131072)
    a.salu("s_mov_b32", S(sK + 3), "0x00020000")
    a.salu("s_add_u32", S(sV), "s8", S(sT2))
    a.salu("s_addc_u32", S(sV + 1), "s9", 0)
    a.salu("s_mov_b32", S(sV + 2), 131072)
    a.salu("s_mov_b32", S(sV + 3), "0x00020000")
    a.salu("s_mul_i32", S(sT2), S(sT0), 9437184)
    a.salu("s_mul_i32", S(sT3), S(sT3), 36864)
    a.salu("s_add_u32", S(sT2), S(sT2), S(sT3))
    a.salu("s_add_u32", S(sO), "s12", S(sT2))
    a.salu("s_addc_u32", S(sO + 1), "s13", 0)
    a.salu("s_mov_b32", S(sO + 2), 36864)
    a.salu("s_mov_b32", S(sO + 3), "0x00020000")
    a.salu("s_lshl_b32", S(sWQoff), S(sH), 8)
    a.salu("s_mov_b32", S(sC), hex(f32bits(CSCALE)))
    a.salu("s_lshl_b32", S(sDM0), S(sW), 10)

    a.salu("s_lshl_b32", S(sT2), S(sW), 2)
    a.valu("v_add_u32", V(t0), S(sT2), V(vG))
    a.valu("v_xor_b32", V(t1), V(vI), V(t0))
    a.valu("v_lshlrev_b32", V(t1), 4, V(t1))
    a.valu("v_lshl_add_u32", V(DK0), V(t0), 8, V(t1))
    a.valu("v_add_u32", V(t2), 8, V(t0))
    a.valu("v_xor_b32", V(t1), V(vI), V(t2))
    a.valu("v_lshlrev_b32", V(t1), 4, V(t1))
    a.valu("v_lshl_add_u32", V(DK1), V(t2), 8, V(t1))
    a.valu("v_lshlrev_b32", V(t1), 1, V(t0))
    a.valu("v_xor_b32", V(t1), V(vI), V(t1))
    a.valu("v_lshlrev_b32", V(t1), 4, V(t1))
    a.valu("v_lshl_add_u32", V(DV), V(t0), 8, V(t1))

    def tile_ops(isv, slot):
        ops = []
        if "nodma" in dbg:
            return ops
        g = sVg if isv else sKg
        for i in range(8):
            def f(i=i):
                a.salu("s_add_u32", "m0", S(sDM0), RING + slot * SLOT + i * 2048)
                if isv:
                    dma(V(DV), S(sV, 4), S(g), KVF)
                    a.salu("s_add_u32", S(g), S(g), 2048)
                else:
                    dma(V(DK1 if i & 1 else DK0), S(sK, 4), S(g), KVF)
                    if i & 1:
                        a.salu("s_add_u32", S(g), S(g), 4096)
            ops.append(f)
        return ops

    def run(ops):
        for f in ops:
            f()

    a.salu("s_mov_b32", S(sKg), 0)
    a.salu("s_mov_b32", S(sVg), 0)

    sW2, sWH = 61, 62
    a.salu("s_lshl_b32", S(sW2), S(sW), 1)
    a.salu("s_lshl_b32", S(sWH), S(sW), 13)
    for t in range(4):
        a.salu("s_xor_b32", S(sT2), S(sW2), t)
        a.salu("s_lshl_b32", S(sT2), S(sT2), 2)
        a.valu("v_add_u32", V(t0), S(sT2), V(vG))
        a.valu("v_xor_b32", V(t0), V(t0), V(vI))
        a.valu("v_lshlrev_b32", V(t0), 4, V(t0))
        a.valu("v_lshl_add_u32", V(t0), V(vI), 8, V(t0))
        a.valu("v_add_u32", V(t0), RING, V(t0))
        a.valu("v_add_u32", V(AK + t), S(sWH), V(t0))
        a.valu("v_subrev_u32", V(AK + 4 + t), S(sWH), V(t0))
    a.valu("v_lshrrev_b32", V(t0), 2, V(vI))
    a.valu("v_lshl_add_u32", V(t0), V(vG), 2, V(t0))
    a.valu("v_and_b32", V(t1), 7, V(t0))
    a.valu("v_and_b32", V(t2), 3, V(vI))
    a.valu("v_lshlrev_b32", V(t2), 3, V(t2))
    a.valu("v_lshl_add_u32", V(t2), V(t0), 8, V(t2))
    a.valu("v_add_u32", V(t2), RING, V(t2))
    for dt in range(8):
        a.valu("v_xor_b32", V(t0), dt, V(t1))
        a.valu("v_lshl_add_u32", V(t0), V(t0), 5, V(t2))
        a.valu("v_add_u32", V(AV + dt), S(sWH), V(t0))
        a.valu("v_subrev_u32", V(AV + 8 + dt), S(sWH), V(t0))

    def QA(Tt, r):
        k = Tt * 4 + r
        return 4 * k if k < 28 else 144 + 4 * (k - 28)

    def QA9(j):
        return 160 + 4 * j

    AFs = lambda p: 52 * p
    XFs = lambda p: 52 * p + 32
    WS = 104
    AW = 176
    WW = 184
    XA = 186
    WQA = 190
    DXv = 191
    a.valu("v_lshrrev_b32", V(t0), 2, V(vI))
    a.valu("v_lshl_add_u32", V(t1), V(vG), 3, V(t0))
    a.valu("v_and_b32", V(t2), 3, V(vI))
    a.valu("v_lshlrev_b32", V(t2), 4, V(t2))
    a.valu("v_lshl_add_u32", V(t2), V(t1), 8, V(t2))
    a.valu("v_and_b32", V(t3), 1, V(t0))
    a.valu("v_lshrrev_b32", V(t4), 3, V(vI))
    a.valu("v_and_b32", V(t5), 1, V(vG))
    a.valu("v_lshl_add_u32", V(t4), V(t5), 1, V(t4))
    for Tt in range(8):
        t, o = Tt >> 1, Tt & 1
        a.salu("s_xor_b32", S(sT2), S(sW2), t)
        a.valu("v_xor_b32", V(t0), S(sT2), V(t4))
        a.valu("v_lshl_add_u32", V(t0), V(t0), 6, V(t2))
        a.valu("v_xor_b32", V(t1), o, V(t3))
        a.valu("v_lshl_add_u32", V(AW + Tt), V(t1), 3, V(t0))
    a.salu("s_lshl_b32", S(sT2), S(sW), 4)
    a.valu("v_lshl_add_u32", V(t0), V(vG), 1, S(sT2))
    a.valu("v_lshlrev_b32", V(t1), 2, V(t5))
    a.valu("v_xor_b32", V(t1), V(t1), V(vI))
    a.valu("v_lshlrev_b32", V(t1), 4, V(t1))
    a.valu("v_lshl_add_u32", V(WW), V(t0), 8, V(t1))
    a.valu("v_xor_b32", V(t2), 128, V(WW))
    a.valu("v_add_u32", V(WW + 1), 2048, V(t2))
    a.valu("v_lshlrev_b32", V(t1), 4, V(vI))
    a.valu("v_lshl_add_u32", V(WQA), V(t0), 13, V(t1))
    a.valu("v_lshrrev_b32", V(t0), 1, V(vI))
    a.salu("s_lshl_b32", S(sT2), S(sW), 13)
    for e in range(2):
        a.valu("v_add_u32", V(t1), 4 * e, V(vG))
        a.valu("v_xor_b32", V(t1), V(t1), V(t0))
        a.valu("v_lshlrev_b32", V(t1), 4, V(t1))
        a.valu("v_lshl_add_u32", V(t1), V(vI), 7, V(t1))
        a.valu("v_add_u32", V(t1), XB, V(t1))
        a.valu("v_add_u32", V(XA + e), S(sT2), V(t1))
        a.valu("v_add_u32", V(XA + 2 + e), 8 * 2048, V(t1))
    a.valu("v_lshrrev_b32", V(t0), 3, V(vL))
    a.salu("s_lshl_b32", S(sT2), S(sW), 2)
    a.valu("v_add_u32", V(t1), S(sT2), V(vG))
    a.valu("v_and_b32", V(t2), 7, V(vL))
    a.valu("v_xor_b32", V(t1), V(t1), V(t2))
    a.valu("v_lshlrev_b32", V(t1), 4, V(t1))
    a.valu("v_lshl_add_u32", V(DXv), V(t0), 10, V(t1))
    a.salu("s_lshl_b32", S(sT2), S(sW), 13)
    a.valu("v_add_u32", V(DXv), S(sT2), V(DXv))

    PFA, PFD = 203, 204
    a.valu("v_lshlrev_b32", V(PFA), 7, V(vL))
    a.salu("s_lshl_b32", S(sT2), S(sW), 13)
    a.valu("v_add_u32", V(PFA), S(sT2), V(PFA))
    NPF = opt("npf", 0)
    pf_list = []
    for j in range(1, 1 + NPF):
        pf_list.append((sV if j & 1 else sK, (j >> 1) * 16384))

    def pf_op(j):
        srd, off = pf_list[j]

        def f():
            a.salu("s_mov_b32", S(sT3), off)
            bload("buffer_load_dword", V(PFD), V(PFA), S(srd, 4), S(sT3))
        return f

    RPF = [A(168 + 4 * k, 4) for k in range(22)] + [V(232, 4), V(236, 4)]
    rpf_tiles = [(True, 1), (False, 2), (True, 3)]

    def rpf_load_ops():
        ops = []
        for n, (isv, tile) in enumerate(rpf_tiles):
            g = sVg if isv else sKg
            for i in range(8):
                def f(n=n, i=i, isv=isv, g=g):
                    if isv:
                        bload("buffer_load_dwordx4", RPF[n * 8 + i], V(DV), S(sV, 4), S(g), flags=KVF)
                        a.salu("s_add_u32", S(g), S(g), 2048)
                    else:
                        bload("buffer_load_dwordx4", RPF[n * 8 + i], V(DK1 if i & 1 else DK0), S(sK, 4), S(g), flags=KVF)
                        if i & 1:
                            a.salu("s_add_u32", S(g), S(g), 4096)
                ops.append(f)
        return ops

    def rpf_write():
        va = 240
        a.valu("v_mbcnt_lo_u32_b32", V(va), -1, 0)
        a.valu("v_mbcnt_hi_u32_b32", V(va), -1, V(va))
        a.valu("v_lshlrev_b32", V(va), 4, V(va))
        a.valu("v_add_u32", V(va), S(sDM0), V(va))
        for n, (isv, tile) in enumerate(rpf_tiles):
            for i in range(8):
                a.ds_write("ds_write_b128", V(va), RPF[n * 8 + i], off=RING + slot_of(tile) * SLOT + i * 2048)

    def load_wq_ops(c):
        base = WS + (c % 4) * 16
        ops = []
        for j in range(2):
            for e in range(2):
                def f(j=j, e=e):
                    a.salu("s_add_u32", S(sT2), S(sWQoff), (c * 32 + 8 * j + e) * 8192)
                    bload("buffer_load_dwordx4", A(base + (j * 2 + e) * 4, 4), V(WQA), S(sWQ, 4), S(sT2))
                ops.append(f)
        return ops

    xlast = {}

    def issue_x_ops(c):
        lb = XB + (c & 1) * XSZ
        ops = []
        for i in range(9):
            def f(i=i):
                a.salu("s_add_u32", "m0", S(sDM0), lb + i * 2048)
                a.salu("s_mov_b32", S(sT3), i * 16384 + c * 128)
                dma(V(DXv), S(sX, 4), S(sT3))
                xlast[c] = a.vmn
            ops.append(f)
        return ops

    def write_wq_ops(c):
        base = WS + (c % 4) * 16
        boff = WB + (c % 3) * 8192
        ops = []
        for j in range(2):
            b0 = base + j * 8
            ops.append(lambda j=j, b0=b0: a.ds_write("ds_write_b128", V(WW + j), A(b0, 4), off=boff))
            ops.append(lambda j=j, b0=b0: a.ds_write("ds_write_b64", V(WW + j), A(b0 + 4, 2), off=boff + 256 + 8))
            ops.append(lambda j=j, b0=b0: a.ds_write("ds_write_b64", V(WW + j), A(b0 + 6, 2), off=boff + 256))
        return ops

    def frag_read_ops(i):
        p = i & 1
        boff = WB + (i % 3) * 8192
        xoff = ((i // 2) & 1) * XSZ
        ops = []
        for r in range(4):
            ops.append(lambda r=r: a.ds_read("ds_read_b128", A(XFs(p) + 4 * r, 4), V(XA + (i & 1)), off=xoff + r * 2048))
        ops.append(lambda: a.ds_read("ds_read_b128", A(XFs(p) + 16, 4), V(XA + 2 + (i & 1)), off=xoff))
        for Tt in range(8):
            ops.append(lambda Tt=Tt: a.ds_read("ds_read_b64_tr_b16", A(AFs(p) + Tt * 4, 2), V(AW + Tt), off=boff))
            ops.append(lambda Tt=Tt: a.ds_read("ds_read_b64_tr_b16", A(AFs(p) + Tt * 4 + 2, 2), V(AW + Tt), off=boff + 1024))
        return ops

    stamp(True)
    if stamps:
        a.misc(f"s_getreg_b32 s{SB + 2 * nst[0]}, hwreg(HW_REG_HW_ID)")
        nst[0] += 1
        a.misc(f"s_getreg_b32 s{SB + 2 * nst[0]}, hwreg(HW_REG_XCC_ID)")
        nst[0] += 1
    stamp()
    run(load_wq_ops(0))
    run(load_wq_ops(1))
    run(issue_x_ops(0))
    run(load_wq_ops(2))
    run(load_wq_ops(3))
    run(issue_x_ops(1))
    for i in list(range(112)) + list(range(144, 176)):
        a.valu("v_mov_b32", V(i), 0)
    run(write_wq_ops(0))
    run(write_wq_ops(1))
    run(load_wq_ops(4))
    K0S = opt("k0s", 0)
    RP = opt("rp", 1)
    if K0S == 0:
        run(tile_ops(False, slot_of(0)))
    a.waitcnt(vm=a.vmn - xlast[0], lgkm=0)
    a.barrier()
    run(frag_read_ops(0))

    lbl = [0]
    slow_lines = []

    def newlabel():
        lbl[0] += 1
        return f"{name}_n{lbl[0]}"

    def qproj():
        for i in range(16):
            p = i & 1
            main = []
            for Tt in range(8):
                for r in range(4):
                    main.append(lambda Tt=Tt, r=r: a.mfma(V(QA(Tt, r), 4), A(AFs(p) + Tt * 4, 4), A(XFs(p) + 4 * r, 4), V(QA(Tt, r), 4)))
                if Tt < 4:
                    main.append(lambda Tt=Tt: a.mfma(V(QA9(Tt & 3), 4), A(AFs(p) + Tt * 4, 4), A(XFs(p) + 16, 4), V(QA9(Tt & 3), 4)))
            n = len(main)
            g = []
            if i % 2 == 1 and (i + 3) // 2 < 8:
                g += issue_x_ops((i + 3) // 2)
            wr = write_wq_ops(i + 2) if i + 2 < 16 else []
            g2 = load_wq_ops(i + 5) if i + 5 < 16 else []
            if RP and i >= 12:
                if i == 12:
                    rpf_ops = rpf_load_ops()
                g2 = g2 + rpf_ops[(i - 12) * 6:(i - 11) * 6]
            if K0S and i == K0S:
                g2 = g2 + tile_ops(False, slot_of(0))
            if i % 2 == 0 and i // 2 < len(pf_list):
                g2 = g2 + [pf_op(i // 2)]
            rd = frag_read_ops(i + 1) if i + 1 < 16 else []
            streams = [([(0, n, f) for f in wr] + [(6, n - 6, f) for f in rd], 1),
                       ([(1, n, f) for f in g] + [(10, n, f) for f in g2], 1)]
            interleave(main, streams, budget=2)
            c = (i + 2) // 2
            if i % 2 == 0 and c < 8:
                a.waitcnt(vm=a.vmn - xlast[c], lgkm=0)
            else:
                a.waitcnt(lgkm=0)
            a.barrier()

    def max_ops(sb, n, ta):
        ops = [lambda: a.valu("v_max3_f32", V(ta), V(sb), V(sb + 1), V(sb + 2))]
        j = 3
        while j + 1 < n:
            ops.append(lambda j=j: a.valu("v_max3_f32", V(ta), V(ta), V(sb + j), V(sb + j + 1)))
            j += 2
        if j < n:
            ops.append(lambda j=j: a.valu("v_max_f32", V(ta), V(ta), V(sb + j)))
        return ops

    def check(tiles):
        if "nocheck" in dbg:
            return
        tc, tb, td = T + 5, T + 6, T + 7
        a.valu("v_max3_f32", V(tc), V(tiles[0][2]), V(tiles[1][2]), V(tiles[2][2]))
        if len(tiles) == 5:
            a.valu("v_max3_f32", V(tc), V(tc), V(tiles[3][2]), V(tiles[4][2]))
        else:
            a.valu("v_max_f32", V(tc), V(tc), V(tiles[3][2]))
        a.valu("v_cmp_lt_f32", "vcc", S(sThr), V(tc))
        L, LB = newlabel(), newlabel()
        a.nop(5)
        a.misc(f"s_cbranch_vccnz {L}")
        a.label(LB)
        main_lines = a.lines
        saved = (list(a.hist), a.pos, list(a.lgkm), list(a.vm))
        a.lines = slow_lines
        a.label(L)
        a.nop(8)
        for (sb, r, ta) in tiles:
            for pl in ("v_permlane16_swap_b32", "v_permlane32_swap_b32"):
                a.valu("v_mov_b32", V(tb), V(ta))
                a.valu(pl, V(ta), V(tb))
                a.valu("v_max_f32", V(ta), V(ta), V(tb))
            a.valu("v_cmp_eq_f32", "vcc", 0, V(LA(r)))
            a.valu("v_max_f32", V(tb), 0, V(ta))
            a.valu("v_cndmask_b32", V(ta), V(tb), V(ta), "vcc")
            for j in range(8):
                a.valu("v_sub_f32", V(sb + j), V(sb + j), V(ta))
            for e in range(4):
                a.valu("v_sub_f32", V(NM(r) + e), V(NM(r) + e), V(ta))
            a.valu("v_exp_f32", V(tb), "-" + V(tb))
            for e in range(4):
                a.valu("v_mul_f32", V(LA(r) + e), V(LA(r) + e), V(tb))
            for k in range(32):
                a.valu("v_accvgpr_read_b32", V(td), A(OA(r, 0) + k))
                a.valu("v_mul_f32", V(td), V(td), V(tb))
                a.valu("v_accvgpr_write_b32", A(OA(r, 0) + k), V(td))
        a.nop(4)
        a.misc(f"s_branch {LB}")
        a.lines = main_lines
        a.hist, a.pos, a.lgkm, a.vm = list(saved[0]), saved[1], list(saved[2]), list(saved[3])

    def check_first(tiles):
        tb = T + 6
        for pl in ("v_permlane16_swap_b32", "v_permlane32_swap_b32"):
            for k, (sb, r, ta) in enumerate(tiles):
                a.valu("v_mov_b32", V(tb + k), V(ta))
            for k, (sb, r, ta) in enumerate(tiles):
                a.valu(pl, V(ta), V(tb + k))
            for k, (sb, r, ta) in enumerate(tiles):
                a.valu("v_max_f32", V(ta), V(ta), V(tb + k))
        for (sb, r, ta) in tiles:
            for j in range(8):
                a.valu("v_sub_f32", V(sb + j), V(sb + j), V(ta))
            for e in range(4):
                a.valu("v_sub_f32", V(NM(r) + e), V(NM(r) + e), V(ta))

    def exp_ops(bases):
        ops = []
        for b0 in bases:
            for j in range(8):
                ops.append(lambda b0=b0, j=j: a.valu("v_exp_f32", V(b0 + j), V(b0 + j)))
            for e in range(4):
                ops.append(lambda b0=b0, e=e: a.valu("v_cvt_pk_bf16_f32", V(b0 + e), V(b0 + 2 * e), V(b0 + 2 * e + 1)))
        return ops

    def opt(key, default):
        v = [d[len(key):] for d in dbg if d.startswith(key) and d[len(key):].isdigit()]
        return int(v[0]) if v else default
    LEAD = opt("lead", 8)
    BUD = opt("bud", 2)
    VXC = opt("vxc", 2)
    FSC = opt("fsc", 1)
    DSP = int([d[3:] for d in dbg if d.startswith('dsp')][0]) if any(d.startswith('dsp') for d in dbg) else 6

    def frag_stream(items):
        st = []
        for k, (fu, lu, fn) in enumerate(items):
            rel = 0 if k < NFR else items[k - NFR][1] + 1
            dl = max(rel, fu - LEAD)
            st.append((rel, dl, (lambda fn=fn, k=k: fn(k % NFR))))
        return st

    class Seg:
        def __init__(self):
            self.main, self.items, self.vx, self.dm = [], [], [], []

        def tiles(self, h):
            u = h & 1
            tl = [(SS(r, 2 * u), r, T + r) for r in range(4)]
            if u == 0:
                tl.append((S9, 4, T + 4))
            return tl

        def X(self, h):
            kslot = slot_of(2 * (h >> 1)) * SLOT
            tl = self.tiles(h)
            for ktl in range(2):
                kt = 2 * (h & 1) + ktl
                for t in range(4):
                    k = len(self.items)
                    self.items.append((len(self.main), len(self.main) + len(tl) - 1,
                                       lambda sl, kt=kt, t=t: a.ds_read("ds_read_b128", V(FR + 4 * sl, 4), V(AK + 4 * (kt >> 1) + t), off=kslot + kt * 4096)))
                    for (sb, r, _) in tl:
                        d = V(sb + 4 * ktl, 4)
                        self.main.append(lambda d=d, t=t, r=r, k=k: a.mfma(d, V(FR + 4 * (k % NFR), 4), A(QF(r, t), 4), d if t else V(NM(r), 4)))

        def Y(self, h):
            vslot = slot_of(2 * (h >> 1) + 1) * SLOT
            u = h & 1
            tl = self.tiles(h)
            for (sb, r, _) in tl:
                self.main.append(lambda sb=sb, r=r: a.mfma(V(LA(r), 4), V(ONES, 4), V(sb, 4), V(LA(r), 4)))
            for dt in range(8):
                k = len(self.items)

                def rd(sl, dt=dt):
                    a.ds_read("ds_read_b64_tr_b16", V(FR + 4 * sl, 2), V(AV + 8 * u + dt), off=vslot + u * 8192)
                    a.ds_read("ds_read_b64_tr_b16", V(FR + 4 * sl + 2, 2), V(AV + 8 * u + dt), off=vslot + u * 8192 + 4096)
                self.items.append((len(self.main), len(self.main) + len(tl) - 1, rd))
                for (sb, r, _) in tl:
                    self.main.append(lambda dt=dt, sb=sb, r=r, k=k: a.mfma(A(OA(r, dt), 4), V(FR + 4 * (k % NFR), 4), V(sb, 4), A(OA(r, dt), 4)))

        def exp(self, h, rel, dl):
            self.vx += [(rel, dl, f) for f in exp_ops([sb for sb, _, _ in self.tiles(h)])]

        def mx(self, h, rel, dl):
            ol = [max_ops(sb, 8, ta) for sb, _, ta in self.tiles(h)]
            for j in range(len(ol[0])):
                for o in ol:
                    self.vx.append((rel, dl, o[j]))

        def chk(self, h):
            tl = self.tiles(h)
            self.main.append(lambda: check(tl) if h else check_first(tl))

        def emit(self):
            fs = frag_stream(self.items)
            interleave(self.main, [(fs, FSC), (self.vx, VXC), (self.dm, 1)], budget=BUD)

    def sync():
        a.waitcnt(vm=0, lgkm=0)
        if "nobar" not in dbg:
            a.barrier()

    def body(s, first=False):
        g = Seg()
        if not first:
            g.Y(2 * s - 2)
            g.mx(2 * s - 1, 0, len(g.main))
            g.dm = [(DSP * k, 10 ** 6, f) for k, f in enumerate(([] if (RP and s == 1) else tile_ops(True, slot_of(2 * s + 1))) + tile_ops(False, slot_of(2 * s + 2)))]
            g.chk(2 * s - 1)
            g.main.append(lambda: seg(0))
        n0 = len(g.main)
        g.X(2 * s)
        g.main.append(lambda: seg(1))
        if not first:
            g.exp(2 * s - 1, n0, len(g.main))
            n0 = len(g.main)
            g.Y(2 * s - 1)
            g.mx(2 * s, n0 + 3, len(g.main))
        else:
            g.mx(2 * s, len(g.main), len(g.main))
        g.chk(2 * s)
        g.main.append(lambda: seg(2))
        n0 = len(g.main)
        g.X(2 * s + 1)
        g.exp(2 * s, n0, len(g.main))
        g.dm = [(r, min(d, len(g.main)), f) for (r, d, f) in g.dm]
        g.emit()
        seg(3)
        a.waitcnt(vm=0, lgkm=0)
        seg(4)
        sync()
        seg(5)

    def attention():
        qproj()
        if "qonly" in dbg:
            a.misc("s_endpgm")
        if RP:
            rpf_write()
        else:
            run(tile_ops(True, slot_of(1)))
            run(tile_ops(False, slot_of(2)))
        stamp()
        tq = 192
        for r in range(4):
            for t in range(4):
                lo, hi = QA(2 * t, r), QA(2 * t + 1, r)
                for k, src in enumerate((lo, lo + 2, hi, hi + 2)):
                    a.valu("v_mul_f32", V(src), S(sC), V(src))
                    a.valu("v_mul_f32", V(src + 1), S(sC), V(src + 1))
                    a.valu("v_cvt_pk_bf16_f32", V(tq + k), V(src), V(src + 1))
                for k in range(4):
                    a.valu("v_accvgpr_write_b32", A(QF(r, t) + k), V(tq + k))
        vl, ta, tb = 200, 201, 202
        a.valu("v_mbcnt_lo_u32_b32", V(vl), -1, 0)
        a.valu("v_mbcnt_hi_u32_b32", V(vl), -1, V(vl))
        a.valu("v_lshlrev_b32", V(ta), 4, V(vl))
        for j in range(2):
            lo, hi = QA9(2 * j), QA9(2 * j + 1)
            for k, src in enumerate((lo, lo + 2, hi, hi + 2)):
                a.valu("v_mul_f32", V(src), S(sC), V(src))
                a.valu("v_mul_f32", V(src + 1), S(sC), V(src + 1))
                a.valu("v_cvt_pk_bf16_f32", V(tq + 4 * j + k), V(src), V(src + 1))
            if j == 0:
                a.salu("s_lshl_b32", S(sT2), S(sW), 11)
                a.valu("v_add_u32", V(tb), S(sT2), V(ta))
                a.valu("v_subrev_u32", V(vl), S(sT2), V(ta))
            a.ds_write("ds_write_b128", V(tb), V(tq + 4 * j, 4), off=WB + j * 1024)
        a.waitcnt(lgkm=0)
        a.barrier()
        for t in range(4):
            a.ds_read("ds_read_b128", A(QF(4, t), 4), V(tb if t < 2 else vl), off=WB + t * 1024)
        a.valu("v_mov_b32", V(tb), 0)
        for i in range(160):
            a.valu("v_accvgpr_write_b32", A(i), V(tb))
        for i in range(40):
            a.valu("v_mov_b32", V(NM(0) + i), 0)
        for i in range(4):
            a.valu("v_mov_b32", V(ONES + i), "0x3f803f80")
        a.salu("s_mov_b32", S(sThr), hex(f32bits(THR)))
        a.waitcnt(vm=0 if RP else 16, lgkm=0)
        a.barrier()
        if stamps:
            for k in range(12):
                a.salu("s_mov_b32", S(86 + k), 0)
        seg(11)
        body(0, True)
        body(1)
        a.salu("s_mov_b32", S(sIt), 0)
        a.flush()
        Lp = newlabel()
        a.label(Lp)
        body(2)
        body(3)
        a.salu("s_add_u32", S(sIt), S(sIt), 1)
        a.salu("s_cmp_lt_u32", None, S(sIt), 3)
        a.nop(8)
        a.misc(f"s_cbranch_scc1 {Lp}")
        g = Seg()
        g.Y(14)
        g.mx(15, 0, len(g.main))
        g.chk(15)
        g.exp(15, len(g.main), len(g.main))
        g.Y(15)
        g.emit()
        a.flush()

    attention()
    a.waitcnt(vm=0, lgkm=0)
    stamp()

    vL, vG, vI = 0, 1, 2
    t0, t1, t2, t3 = 4, 5, 6, 7
    vSt = 8
    a.valu("v_mbcnt_lo_u32_b32", V(vL), -1, 0)
    a.valu("v_mbcnt_hi_u32_b32", V(vL), -1, V(vL))
    a.valu("v_lshrrev_b32", V(vG), 4, V(vL))
    a.valu("v_and_b32", V(vI), 15, V(vL))
    a.valu("v_and_b32", V(t0), 1, V(vG))
    a.valu("v_lshrrev_b32", V(t1), 1, V(vG))
    a.valu("v_lshl_add_u32", V(t0), V(t0), 1, V(t1))
    a.valu("v_lshlrev_b32", V(t1), 4, V(vI))
    a.valu("v_lshl_add_u32", V(vSt), V(t0), 8, V(t1))
    a.barrier()
    CB = 0
    PB = 4096
    a.valu("v_mov_b32", V(t2), V(NM(4)))
    a.valu("v_mov_b32", V(t3), V(LA(4)))
    a.salu("s_lshl_b32", S(sT2), S(sW), 7)
    a.valu("v_lshlrev_b32", V(t0), 3, V(vI))
    a.valu("v_add_u32", V(t1), S(sT2), V(t0))
    a.ds_write("ds_write_b64", V(t1), V(t2, 2), off=CB)
    a.waitcnt(lgkm=0)
    a.barrier()
    ml = 12
    for w in range(2):
        a.ds_read("ds_read_b64", V(ml + 2 * w, 2), V(t0), off=CB + w * 128)
    a.valu("v_min_f32", V(t1), V(ml), V(ml + 2))
    a.valu("v_mov_b32", V(t2), 0)
    for w in range(2):
        a.valu("v_sub_f32", V(t3), V(t1), V(ml + 2 * w))
        a.valu("v_exp_f32", V(t3), V(t3))
        a.valu("v_fma_f32", V(t2), V(t3), V(ml + 2 * w + 1), V(t2))
    a.valu("v_sub_f32", V(t3), V(t1), V(NM(4)))
    a.valu("v_exp_f32", V(t3), V(t3))
    a.valu("v_rcp_f32", V(t2), V(t2))
    a.valu("v_mul_f32", V(t3), V(t3), V(t2))
    NB = 32
    for k in range(32):
        a.valu("v_accvgpr_read_b32", V(NB + k), A(OA(4, 0) + k))
    for k in range(32):
        a.valu("v_mul_f32", V(NB + k), V(NB + k), V(t3))
    a.valu("v_lshlrev_b32", V(t0), 4, V(vL))
    a.salu("s_lshl_b32", S(sT2), S(sW), 13)
    a.valu("v_add_u32", V(t1), S(sT2), V(t0))
    for dt in range(8):
        a.ds_write("ds_write_b128", V(t1), V(NB + 4 * dt, 4), off=PB + dt * 1024)
    for r in range(4):
        a.valu("v_rcp_f32", V(t2), V(LA(r)))
        a.salu("s_lshl_b32", S(sT2), S(sW), 12)
        a.salu("s_add_u32", S(sT2), S(sT2), r * 1024)
        for kk in range(4):
            o = 144 + ((r * 4 + kk) % 8) * 8
            for e in range(8):
                a.valu("v_accvgpr_read_b32", V(o + e), A(OA(r, 2 * kk) + e))
            for e in range(8):
                a.valu("v_mul_f32", V(o + e), V(o + e), V(t2))
            for e in range(4):
                a.valu("v_cvt_pk_bf16_f32", V(o + e), V(o + 2 * e), V(o + 2 * e + 1))
            a.valu("v_permlane16_swap_b32", V(o), V(o + 2))
            a.valu("v_permlane16_swap_b32", V(o + 1), V(o + 3))
            a.salu("s_add_u32", S(sT3), S(sT2), kk * 9216)
            bstore("buffer_store_dwordx4", V(o, 4), V(vSt), S(sO, 4), S(sT3), flags="sc0 sc1")
    a.waitcnt(lgkm=0)
    a.barrier()
    a.salu("s_lshl_b32", S(sT2), S(sW), 12)
    a.valu("v_add_u32", V(t1), S(sT2), V(t0))
    RB = 64
    for j in range(4):
        for w in range(2):
            a.ds_read("ds_read_b128", V(RB + (j * 2 + w) * 4, 4), V(t1), off=PB + w * 8192 + j * 1024)
    a.salu("s_mul_i32", S(sT2), S(sW), 2 * 9216)
    a.salu("s_add_u32", S(sT2), S(sT2), 8 * 1024)
    for j in range(4):
        b0 = RB + j * 8
        for e in range(4):
            a.valu("v_add_f32", V(b0 + e), V(b0 + e), V(b0 + 4 + e))
    for jj in range(2):
        o = 144 + jj * 4
        b0, b1 = RB + (2 * jj) * 8, RB + (2 * jj + 1) * 8
        a.valu("v_cvt_pk_bf16_f32", V(o), V(b0), V(b0 + 1))
        a.valu("v_cvt_pk_bf16_f32", V(o + 1), V(b0 + 2), V(b0 + 3))
        a.valu("v_cvt_pk_bf16_f32", V(o + 2), V(b1), V(b1 + 1))
        a.valu("v_cvt_pk_bf16_f32", V(o + 3), V(b1 + 2), V(b1 + 3))
        a.valu("v_permlane16_swap_b32", V(o), V(o + 2))
        a.valu("v_permlane16_swap_b32", V(o + 1), V(o + 3))
        a.salu("s_add_u32", S(sT3), S(sT2), jj * 9216)
        bstore("buffer_store_dwordx4", V(o, 4), V(vSt), S(sO, 4), S(sT3), flags="sc0 sc1")
    if stamps:
        stamp()
        stamp(True)
        a.salu("s_add_u32", S(sX), "s12", 0x3000000)
        a.salu("s_addc_u32", S(sX + 1), "s13", 0)
        a.salu("s_mov_b32", S(sX + 2), 0x100000)
        a.salu("s_lshl_b32", S(sT2), "s2", 10)
        a.salu("s_lshl_b32", S(sT3), S(sW), 8)
        a.salu("s_add_u32", S(sT2), S(sT2), S(sT3))
        a.salu("s_mov_b64", "exec", 1)
        a.valu("v_mov_b32", V(t1), 0)
        for i in range(nst[0]):
            a.valu("v_mov_b32", V(t0), S(SB + 2 * i))
            a.bstore("buffer_store_dword", V(t0), V(t1), S(sX, 4), S(sT2), off=4 * i)
        for i in range(12):
            a.valu("v_mov_b32", V(t0), S(86 + i))
            a.bstore("buffer_store_dword", V(t0), V(t1), S(sX, 4), S(sT2), off=128 + 4 * i)
    a.label(f"{name}_done")
    a.misc("s_endpgm")
    a.lines += slow_lines
    return a
```

```python
import struct
from asmlib import Asm, V, S, A
from sched import interleave

RING = 16384
SLOT = 16384
WB = 0
XB = 24576
XSZ = 18432
LDS_K1 = 81920
THR = 8.0
BLOCK = 128

CSCALE = 1.4426950408889634 / (128.0 ** 0.5)


def f32bits(x):
    return struct.unpack("<I", struct.pack("<f", x))[0]


def OA(r, dt):
    return (r * 8 + dt) * 4


def QF(r, t):
    return 160 + (r * 4 + t) * 4


def SS(r, kt):
    return (r * 4 + kt) * 4


S9 = 64


def NM(r):
    return 72 + 4 * r


def LA(r):
    return 92 + 4 * r


ONES = 112
DK0, DK1, DV = 116, 117, 118
T = 120
FR = 144
NFR = 16
AK = 208
AV = 216

sX, sWQ, sK, sV, sO = 16, 20, 24, 28, 32
sW = 36
sC = 37
sT0 = 38
sT1 = 39
sWQoff = 48
sDM0 = 49
sT2 = 51
sT3 = 52
sH = 53
sIt, sKg, sVg = 56, 57, 58
sThr, sLow = 59, 60


def slot_of(tile):
    return (tile + 3) % 4


def gen_k1(name, stamps=False, nt=True, dbg=()):
    a = Asm()
    a.vmn = 0
    nst = [0]
    SB = 70

    def stamp(real=False):
        if not stamps:
            return
        a.waitcnt(lgkm=0)
        a.misc(f"{'s_memrealtime' if real else 's_memtime'} s[{SB + 2 * nst[0]}:{SB + 1 + 2 * nst[0]}]")
        a.misc("s_waitcnt lgkmcnt(0)")
        nst[0] += 1

    def seg(k):
        if not stamps or "seg" not in dbg:
            return
        a.misc("s_memtime s[98:99]")
        a.waitcnt(lgkm=0)
        a.salu("s_sub_u32", "s100", "s98", "s101")
        a.salu("s_add_u32", S(86 + k), S(86 + k), "s100")
        a.salu("s_mov_b32", "s101", "s98")

    def opt(key, default):
        v = [d[len(key):] for d in dbg if d.startswith(key) and d[len(key):].isdigit()]
        return int(v[0]) if v else default

    a.label(name)

    def dma(voff, srd, soff, flags=""):
        a.dma(voff, srd, soff, flags=flags)
        a.vmn += 1

    def bload(*x, **k):
        a.bload(*x, **k)
        a.vmn += 1

    def bstore(*x, **k):
        a.bstore(*x, **k)
        a.vmn += 1

    KVF = "nt" if nt else ""

    a.salu("s_cmp_ge_u32", None, "s2", 512)
    a.misc(f"s_cbranch_scc1 {name}_done")
    a.misc("s_load_dwordx8 s[4:11], s[0:1], 0")
    a.misc("s_load_dwordx8 s[40:47], s[0:1], 40")
    a.misc("s_load_dwordx2 s[12:13], s[0:1], 96")
    vL, vG, vI = 10, 11, 12
    t0, t1, t2, t3, t4, t5 = 14, 15, 16, 17, 18, 19
    a.valu("v_and_b32", V(vL), 63, "v0")
    a.valu("v_lshrrev_b32", V(t0), 6, "v0")
    a.valu("v_lshrrev_b32", V(vG), 4, V(vL))
    a.valu("v_and_b32", V(vI), 15, V(vL))
    a.valu("v_readfirstlane_b32", S(sW), V(t0))
    a.misc("s_waitcnt lgkmcnt(0)")
    a.salu("s_lshr_b32", S(sT0), "s2", 2)
    a.salu("s_and_b32", S(sT0), S(sT0), 1)
    a.salu("s_cmp_eq_u32", None, S(sT0), 0)
    for i in range(8):
        a.salu("s_cselect_b32", S(4 + i), S(4 + i), S(40 + i))
    a.salu("s_lshr_b32", S(sT1), "s2", 7)
    a.salu("s_and_b32", S(sT2), "s2", 2)
    a.salu("s_lshl_b32", S(sT2), S(sT2), 1)
    a.salu("s_add_u32", S(sT1), S(sT1), S(sT2))
    a.salu("s_lshr_b32", S(sH), "s2", 3)
    a.salu("s_and_b32", S(sH), S(sH), 15)
    a.salu("s_and_b32", S(sT2), "s2", 1)
    a.salu("s_lshl_b32", S(sT2), S(sT2), 4)
    a.salu("s_add_u32", S(sH), S(sH), S(sT2))
    a.salu("s_mul_i32", S(sT2), S(sT1), 147456)
    a.salu("s_add_u32", S(sX), "s4", S(sT2))
    a.salu("s_addc_u32", S(sX + 1), "s5", 0)
    a.salu("s_mov_b32", S(sX + 2), 147456)
    a.salu("s_mov_b32", S(sX + 3), "0x00020000")
    a.salu("s_mov_b32", S(sWQ), "s10")
    a.salu("s_mov_b32", S(sWQ + 1), "s11")
    a.salu("s_mov_b32", S(sWQ + 2), 4194304)
    a.salu("s_mov_b32", S(sWQ + 3), "0x00020000")
    a.salu("s_lshl_b32", S(sT3), S(sT1), 5)
    a.salu("s_add_u32", S(sT3), S(sT3), S(sH))
    a.salu("s_lshl_b32", S(sT2), S(sT3), 17)
    a.salu("s_add_u32", S(sK), "s6", S(sT2))
    a.salu("s_addc_u32", S(sK + 1), "s7", 0)
    a.salu("s_mov_b32", S(sK + 2), 131072)
    a.salu("s_mov_b32", S(sK + 3), "0x00020000")
    a.salu("s_add_u32", S(sV), "s8", S(sT2))
    a.salu("s_addc_u32", S(sV + 1), "s9", 0)
    a.salu("s_mov_b32", S(sV + 2), 131072)
    a.salu("s_mov_b32", S(sV + 3), "0x00020000")
    a.salu("s_mul_i32", S(sT2), S(sT0), 9437184)
    a.salu("s_mul_i32", S(sT3), S(sT3), 36864)
    a.salu("s_add_u32", S(sT2), S(sT2), S(sT3))
    a.salu("s_add_u32", S(sO), "s12", S(sT2))
    a.salu("s_addc_u32", S(sO + 1), "s13", 0)
    a.salu("s_mov_b32", S(sO + 2), 36864)
    a.salu("s_mov_b32", S(sO + 3), "0x00020000")
    a.salu("s_lshl_b32", S(sWQoff), S(sH), 8)
    a.salu("s_mov_b32", S(sC), hex(f32bits(CSCALE)))
    a.salu("s_lshl_b32", S(sDM0), S(sW), 10)

    a.salu("s_lshl_b32", S(sT2), S(sW), 2)
    a.valu("v_add_u32", V(t0), S(sT2), V(vG))
    a.valu("v_xor_b32", V(t1), V(vI), V(t0))
    a.valu("v_lshlrev_b32", V(t1), 4, V(t1))
    a.valu("v_lshl_add_u32", V(DK0), V(t0), 8, V(t1))
    a.valu("v_add_u32", V(t2), 8, V(t0))
    a.valu("v_xor_b32", V(t1), V(vI), V(t2))
    a.valu("v_lshlrev_b32", V(t1), 4, V(t1))
    a.valu("v_lshl_add_u32", V(DK1), V(t2), 8, V(t1))
    a.valu("v_lshlrev_b32", V(t1), 1, V(t0))
    a.valu("v_xor_b32", V(t1), V(vI), V(t1))
    a.valu("v_lshlrev_b32", V(t1), 4, V(t1))
    a.valu("v_lshl_add_u32", V(DV), V(t0), 8, V(t1))

    def tile_ops(isv, slot):
        ops = []
        if "nodma" in dbg:
            return ops
        g = sVg if isv else sKg
        for i in range(8):
            def f(i=i):
                a.salu("s_add_u32", "m0", S(sDM0), RING + slot * SLOT + i * 2048)
                if isv:
                    dma(V(DV), S(sV, 4), S(g), KVF)
                    a.salu("s_add_u32", S(g), S(g), 2048)
                else:
                    dma(V(DK1 if i & 1 else DK0), S(sK, 4), S(g), KVF)
                    if i & 1:
                        a.salu("s_add_u32", S(g), S(g), 4096)
            ops.append(f)
        return ops

    def run(ops):
        for f in ops:
            f()

    a.salu("s_mov_b32", S(sKg), 0)
    a.salu("s_mov_b32", S(sVg), 0)

    sW2, sWH = 61, 62
    a.salu("s_lshl_b32", S(sW2), S(sW), 1)
    a.salu("s_lshl_b32", S(sWH), S(sW), 13)
    for t in range(4):
        a.salu("s_xor_b32", S(sT2), S(sW2), t)
        a.salu("s_lshl_b32", S(sT2), S(sT2), 2)
        a.valu("v_add_u32", V(t0), S(sT2), V(vG))
        a.valu("v_xor_b32", V(t0), V(t0), V(vI))
        a.valu("v_lshlrev_b32", V(t0), 4, V(t0))
        a.valu("v_lshl_add_u32", V(t0), V(vI), 8, V(t0))
        a.valu("v_add_u32", V(t0), RING, V(t0))
        a.valu("v_add_u32", V(AK + t), S(sWH), V(t0))
        a.valu("v_subrev_u32", V(AK + 4 + t), S(sWH), V(t0))
    a.valu("v_lshrrev_b32", V(t0), 2, V(vI))
    a.valu("v_lshl_add_u32", V(t0), V(vG), 2, V(t0))
    a.valu("v_and_b32", V(t1), 7, V(t0))
    a.valu("v_and_b32", V(t2), 3, V(vI))
    a.valu("v_lshlrev_b32", V(t2), 3, V(t2))
    a.valu("v_lshl_add_u32", V(t2), V(t0), 8, V(t2))
    a.valu("v_add_u32", V(t2), RING, V(t2))
    for dt in range(8):
        a.valu("v_xor_b32", V(t0), dt, V(t1))
        a.valu("v_lshl_add_u32", V(t0), V(t0), 5, V(t2))
        a.valu("v_add_u32", V(AV + dt), S(sWH), V(t0))
        a.valu("v_subrev_u32", V(AV + 8 + dt), S(sWH), V(t0))

    def QA(Tt, r):
        k = Tt * 4 + r
        return 4 * k if k < 28 else 144 + 4 * (k - 28)

    def QA9(j):
        return 160 + 4 * j

    AFs = lambda p: 52 * p
    XFs = lambda p: 52 * p + 32
    WS = 104
    AW = 176
    WW = 184
    XA = 186
    WQA = 190
    DXv = 191
    a.valu("v_lshrrev_b32", V(t0), 2, V(vI))
    a.valu("v_lshl_add_u32", V(t1), V(vG), 3, V(t0))
    a.valu("v_and_b32", V(t2), 3, V(vI))
    a.valu("v_lshlrev_b32", V(t2), 4, V(t2))
    a.valu("v_lshl_add_u32", V(t2), V(t1), 8, V(t2))
    a.valu("v_and_b32", V(t3), 1, V(t0))
    a.valu("v_lshrrev_b32", V(t4), 3, V(vI))
    a.valu("v_and_b32", V(t5), 1, V(vG))
    a.valu("v_lshl_add_u32", V(t4), V(t5), 1, V(t4))
    for Tt in range(8):
        t, o = Tt >> 1, Tt & 1
        a.salu("s_xor_b32", S(sT2), S(sW2), t)
        a.valu("v_xor_b32", V(t0), S(sT2), V(t4))
        a.valu("v_lshl_add_u32", V(t0), V(t0), 6, V(t2))
        a.valu("v_xor_b32", V(t1), o, V(t3))
        a.valu("v_lshl_add_u32", V(AW + Tt), V(t1), 3, V(t0))
    a.salu("s_lshl_b32", S(sT2), S(sW), 4)
    a.valu("v_lshl_add_u32", V(t0), V(vG), 1, S(sT2))
    a.valu("v_lshlrev_b32", V(t1), 2, V(t5))
    a.valu("v_xor_b32", V(t1), V(t1), V(vI))
    a.valu("v_lshlrev_b32", V(t1), 4, V(t1))
    a.valu("v_lshl_add_u32", V(WW), V(t0), 8, V(t1))
    a.valu("v_xor_b32", V(t2), 128, V(WW))
    a.valu("v_add_u32", V(WW + 1), 2048, V(t2))
    a.valu("v_lshlrev_b32", V(t1), 4, V(vI))
    a.valu("v_lshl_add_u32", V(WQA), V(t0), 13, V(t1))
    a.valu("v_lshrrev_b32", V(t0), 1, V(vI))
    a.salu("s_lshl_b32", S(sT2), S(sW), 13)
    for e in range(2):
        a.valu("v_add_u32", V(t1), 4 * e, V(vG))
        a.valu("v_xor_b32", V(t1), V(t1), V(t0))
        a.valu("v_lshlrev_b32", V(t1), 4, V(t1))
        a.valu("v_lshl_add_u32", V(t1), V(vI), 7, V(t1))
        a.valu("v_add_u32", V(t1), XB, V(t1))
        a.valu("v_add_u32", V(XA + e), S(sT2), V(t1))
        a.valu("v_add_u32", V(XA + 2 + e), 8 * 2048, V(t1))
    a.valu("v_lshrrev_b32", V(t0), 3, V(vL))
    a.salu("s_lshl_b32", S(sT2), S(sW), 2)
    a.valu("v_add_u32", V(t1), S(sT2), V(vG))
    a.valu("v_and_b32", V(t2), 7, V(vL))
    a.valu("v_xor_b32", V(t1), V(t1), V(t2))
    a.valu("v_lshlrev_b32", V(t1), 4, V(t1))
    a.valu("v_lshl_add_u32", V(DXv), V(t0), 10, V(t1))
    a.salu("s_lshl_b32", S(sT2), S(sW), 13)
    a.valu("v_add_u32", V(DXv), S(sT2), V(DXv))

    PFA, PFD = 203, 204
    a.valu("v_lshlrev_b32", V(PFA), 7, V(vL))
    a.salu("s_lshl_b32", S(sT2), S(sW), 13)
    a.valu("v_add_u32", V(PFA), S(sT2), V(PFA))
    NPF = opt("npf", 0)
    pf_list = []
    for j in range(1, 1 + NPF):
        pf_list.append((sV if j & 1 else sK, (j >> 1) * 16384))

    def pf_op(j):
        srd, off = pf_list[j]

        def f():
            a.salu("s_mov_b32", S(sT3), off)
            bload("buffer_load_dword", V(PFD), V(PFA), S(srd, 4), S(sT3))
        return f

    RPF = [A(168 + 4 * k, 4) for k in range(22)] + [V(232, 4), V(236, 4)]
    rpf_tiles = [(True, 1), (False, 2), (True, 3)]

    def rpf_load_ops():
        ops = []
        for n, (isv, tile) in enumerate(rpf_tiles):
            g = sVg if isv else sKg
            for i in range(8):
                def f(n=n, i=i, isv=isv, g=g):
                    if isv:
                        bload("buffer_load_dwordx4", RPF[n * 8 + i], V(DV), S(sV, 4), S(g), flags=KVF)
                        a.salu("s_add_u32", S(g), S(g), 2048)
                    else:
                        bload("buffer_load_dwordx4", RPF[n * 8 + i], V(DK1 if i & 1 else DK0), S(sK, 4), S(g), flags=KVF)
                        if i & 1:
                            a.salu("s_add_u32", S(g), S(g), 4096)
                ops.append(f)
        return ops

    def rpf_write():
        va = 240
        a.valu("v_mbcnt_lo_u32_b32", V(va), -1, 0)
        a.valu("v_mbcnt_hi_u32_b32", V(va), -1, V(va))
        a.valu("v_lshlrev_b32", V(va), 4, V(va))
        a.valu("v_add_u32", V(va), S(sDM0), V(va))
        for n, (isv, tile) in enumerate(rpf_tiles):
            for i in range(8):
                a.ds_write("ds_write_b128", V(va), RPF[n * 8 + i], off=RING + slot_of(tile) * SLOT + i * 2048)

    def load_wq_ops(c):
        base = WS + (c % 4) * 16
        ops = []
        for j in range(2):
            for e in range(2):
                def f(j=j, e=e):
                    a.salu("s_add_u32", S(sT2), S(sWQoff), (c * 32 + 8 * j + e) * 8192)
                    bload("buffer_load_dwordx4", A(base + (j * 2 + e) * 4, 4), V(WQA), S(sWQ, 4), S(sT2))
                ops.append(f)
        return ops

    xlast = {}

    def issue_x_ops(c):
        lb = XB + (c & 1) * XSZ
        ops = []
        for i in range(9):
            def f(i=i):
                a.salu("s_add_u32", "m0", S(sDM0), lb + i * 2048)
                a.salu("s_mov_b32", S(sT3), i * 16384 + c * 128)
                dma(V(DXv), S(sX, 4), S(sT3))
                xlast[c] = a.vmn
            ops.append(f)
        return ops

    def write_wq_ops(c):
        base = WS + (c % 4) * 16
        boff = WB + (c % 3) * 8192
        ops = []
        for j in range(2):
            b0 = base + j * 8
            ops.append(lambda j=j, b0=b0: a.ds_write("ds_write_b128", V(WW + j), A(b0, 4), off=boff))
            ops.append(lambda j=j, b0=b0: a.ds_write("ds_write_b64", V(WW + j), A(b0 + 4, 2), off=boff + 256 + 8))
            ops.append(lambda j=j, b0=b0: a.ds_write("ds_write_b64", V(WW + j), A(b0 + 6, 2), off=boff + 256))
        return ops

    def frag_read_ops(i):
        p = i & 1
        boff = WB + (i % 3) * 8192
        xoff = ((i // 2) & 1) * XSZ
        ops = []
        for r in range(4):
            ops.append(lambda r=r: a.ds_read("ds_read_b128", A(XFs(p) + 4 * r, 4), V(XA + (i & 1)), off=xoff + r * 2048))
        ops.append(lambda: a.ds_read("ds_read_b128", A(XFs(p) + 16, 4), V(XA + 2 + (i & 1)), off=xoff))
        for Tt in range(8):
            ops.append(lambda Tt=Tt: a.ds_read("ds_read_b64_tr_b16", A(AFs(p) + Tt * 4, 2), V(AW + Tt), off=boff))
            ops.append(lambda Tt=Tt: a.ds_read("ds_read_b64_tr_b16", A(AFs(p) + Tt * 4 + 2, 2), V(AW + Tt), off=boff + 1024))
        return ops

    stamp(True)
    if stamps:
        a.misc(f"s_getreg_b32 s{SB + 2 * nst[0]}, hwreg(HW_REG_HW_ID)")
        nst[0] += 1
        a.misc(f"s_getreg_b32 s{SB + 2 * nst[0]}, hwreg(HW_REG_XCC_ID)")
        nst[0] += 1
    stamp()
    run(load_wq_ops(0))
    run(load_wq_ops(1))
    run(issue_x_ops(0))
    run(load_wq_ops(2))
    run(load_wq_ops(3))
    run(issue_x_ops(1))
    for i in list(range(112)) + list(range(144, 176)):
        a.valu("v_mov_b32", V(i), 0)
    run(write_wq_ops(0))
    run(write_wq_ops(1))
    run(load_wq_ops(4))
    K0S = opt("k0s", 0)
    RP = opt("rp", 1)
    if K0S == 0:
        run(tile_ops(False, slot_of(0)))
    a.waitcnt(vm=a.vmn - xlast[0], lgkm=0)
    a.barrier()
    run(frag_read_ops(0))

    lbl = [0]
    slow_lines = []

    def newlabel():
        lbl[0] += 1
        return f"{name}_n{lbl[0]}"

    def qproj():
        for i in range(16):
            p = i & 1
            main = []
            for Tt in range(8):
                for r in range(4):
                    main.append(lambda Tt=Tt, r=r: a.mfma(V(QA(Tt, r), 4), A(AFs(p) + Tt * 4, 4), A(XFs(p) + 4 * r, 4), V(QA(Tt, r), 4)))
                if Tt < 4:
                    main.append(lambda Tt=Tt: a.mfma(V(QA9(Tt & 3), 4), A(AFs(p) + Tt * 4, 4), A(XFs(p) + 16, 4), V(QA9(Tt & 3), 4)))
            n = len(main)
            g = []
            if i % 2 == 1 and (i + 3) // 2 < 8:
                g += issue_x_ops((i + 3) // 2)
            wr = write_wq_ops(i + 2) if i + 2 < 16 else []
            g2 = load_wq_ops(i + 5) if i + 5 < 16 else []
            RPS = opt("rps", 4)
            RPN = opt("rpn", 2)
            if RP and i >= RPS:
                if i == RPS:
                    rpf_ops = rpf_load_ops()
                g2 = g2 + rpf_ops[(i - RPS) * RPN:(i - RPS + 1) * RPN]
            if K0S and i == K0S:
                g2 = g2 + tile_ops(False, slot_of(0))
            if i % 2 == 0 and i // 2 < len(pf_list):
                g2 = g2 + [pf_op(i // 2)]
            rd = frag_read_ops(i + 1) if i + 1 < 16 else []
            streams = [([(0, n, f) for f in wr] + [(6, n - 6, f) for f in rd], 1),
                       ([(1, n, f) for f in g] + [(10, n, f) for f in g2], 1)]
            interleave(main, streams, budget=2)
            c = (i + 2) // 2
            if i % 2 == 0 and c < 8:
                a.waitcnt(vm=a.vmn - xlast[c], lgkm=0)
            else:
                a.waitcnt(lgkm=0)
            a.barrier()

    def max_ops(sb, n, ta):
        ops = [lambda: a.valu("v_max3_f32", V(ta), V(sb), V(sb + 1), V(sb + 2))]
        j = 3
        while j + 1 < n:
            ops.append(lambda j=j: a.valu("v_max3_f32", V(ta), V(ta), V(sb + j), V(sb + j + 1)))
            j += 2
        if j < n:
            ops.append(lambda j=j: a.valu("v_max_f32", V(ta), V(ta), V(sb + j)))
        return ops

    def check(tiles):
        if "nocheck" in dbg:
            return
        tc, tb, td = T + 5, T + 6, T + 7
        a.valu("v_max3_f32", V(tc), V(tiles[0][2]), V(tiles[1][2]), V(tiles[2][2]))
        if len(tiles) == 5:
            a.valu("v_max3_f32", V(tc), V(tc), V(tiles[3][2]), V(tiles[4][2]))
        else:
            a.valu("v_max_f32", V(tc), V(tc), V(tiles[3][2]))
        a.valu("v_cmp_lt_f32", "vcc", S(sThr), V(tc))
        L, LB = newlabel(), newlabel()
        a.nop(5)
        a.misc(f"s_cbranch_vccnz {L}")
        a.label(LB)
        main_lines = a.lines
        saved = (list(a.hist), a.pos, list(a.lgkm), list(a.vm))
        a.lines = slow_lines
        a.label(L)
        a.nop(8)
        for (sb, r, ta) in tiles:
            for pl in ("v_permlane16_swap_b32", "v_permlane32_swap_b32"):
                a.valu("v_mov_b32", V(tb), V(ta))
                a.valu(pl, V(ta), V(tb))
                a.valu("v_max_f32", V(ta), V(ta), V(tb))
            a.valu("v_cmp_eq_f32", "vcc", 0, V(LA(r)))
            a.valu("v_max_f32", V(tb), 0, V(ta))
            a.valu("v_cndmask_b32", V(ta), V(tb), V(ta), "vcc")
            for j in range(8):
                a.valu("v_sub_f32", V(sb + j), V(sb + j), V(ta))
            for e in range(4):
                a.valu("v_sub_f32", V(NM(r) + e), V(NM(r) + e), V(ta))
            a.valu("v_exp_f32", V(tb), "-" + V(tb))
            for e in range(4):
                a.valu("v_mul_f32", V(LA(r) + e), V(LA(r) + e), V(tb))
            for k in range(32):
                a.valu("v_accvgpr_read_b32", V(td), A(OA(r, 0) + k))
                a.valu("v_mul_f32", V(td), V(td), V(tb))
                a.valu("v_accvgpr_write_b32", A(OA(r, 0) + k), V(td))
        a.nop(4)
        a.misc(f"s_branch {LB}")
        a.lines = main_lines
        a.hist, a.pos, a.lgkm, a.vm = list(saved[0]), saved[1], list(saved[2]), list(saved[3])

    def check_first(tiles):
        tb = T + 6
        for pl in ("v_permlane16_swap_b32", "v_permlane32_swap_b32"):
            for k, (sb, r, ta) in enumerate(tiles):
                a.valu("v_mov_b32", V(tb + k), V(ta))
            for k, (sb, r, ta) in enumerate(tiles):
                a.valu(pl, V(ta), V(tb + k))
            for k, (sb, r, ta) in enumerate(tiles):
                a.valu("v_max_f32", V(ta), V(ta), V(tb + k))
        for (sb, r, ta) in tiles:
            for j in range(8):
                a.valu("v_sub_f32", V(sb + j), V(sb + j), V(ta))
            for e in range(4):
                a.valu("v_sub_f32", V(NM(r) + e), V(NM(r) + e), V(ta))

    def exp_ops(bases):
        ops = []
        for b0 in bases:
            for j in range(8):
                ops.append(lambda b0=b0, j=j: a.valu("v_exp_f32", V(b0 + j), V(b0 + j)))
            for e in range(4):
                ops.append(lambda b0=b0, e=e: a.valu("v_cvt_pk_bf16_f32", V(b0 + e), V(b0 + 2 * e), V(b0 + 2 * e + 1)))
        return ops

    def opt(key, default):
        v = [d[len(key):] for d in dbg if d.startswith(key) and d[len(key):].isdigit()]
        return int(v[0]) if v else default
    LEAD = opt("lead", 8)
    BUD = opt("bud", 2)
    VXC = opt("vxc", 2)
    FSC = opt("fsc", 1)
    DSP = int([d[3:] for d in dbg if d.startswith('dsp')][0]) if any(d.startswith('dsp') for d in dbg) else 6

    def frag_stream(items):
        st = []
        for k, (fu, lu, fn) in enumerate(items):
            rel = 0 if k < NFR else items[k - NFR][1] + 1
            dl = max(rel, fu - LEAD)
            st.append((rel, dl, (lambda fn=fn, k=k: fn(k % NFR))))
        return st

    class Seg:
        def __init__(self):
            self.main, self.items, self.vx, self.dm = [], [], [], []

        def tiles(self, h):
            u = h & 1
            tl = [(SS(r, 2 * u), r, T + r) for r in range(4)]
            if u == 0:
                tl.append((S9, 4, T + 4))
            return tl

        def X(self, h):
            kslot = slot_of(2 * (h >> 1)) * SLOT
            tl = self.tiles(h)
            for ktl in range(2):
                kt = 2 * (h & 1) + ktl
                for t in range(4):
                    k = len(self.items)
                    self.items.append((len(self.main), len(self.main) + len(tl) - 1,
                                       lambda sl, kt=kt, t=t: a.ds_read("ds_read_b128", V(FR + 4 * sl, 4), V(AK + 4 * (kt >> 1) + t), off=kslot + kt * 4096)))
                    for (sb, r, _) in tl:
                        d = V(sb + 4 * ktl, 4)
                        self.main.append(lambda d=d, t=t, r=r, k=k: a.mfma(d, V(FR + 4 * (k % NFR), 4), A(QF(r, t), 4), d if t else V(NM(r), 4)))

        def Y(self, h):
            vslot = slot_of(2 * (h >> 1) + 1) * SLOT
            u = h & 1
            tl = self.tiles(h)
            for (sb, r, _) in tl:
                self.main.append(lambda sb=sb, r=r: a.mfma(V(LA(r), 4), V(ONES, 4), V(sb, 4), V(LA(r), 4)))
            for dt in range(8):
                k = len(self.items)

                def rd(sl, dt=dt):
                    a.ds_read("ds_read_b64_tr_b16", V(FR + 4 * sl, 2), V(AV + 8 * u + dt), off=vslot + u * 8192)
                    a.ds_read("ds_read_b64_tr_b16", V(FR + 4 * sl + 2, 2), V(AV + 8 * u + dt), off=vslot + u * 8192 + 4096)
                self.items.append((len(self.main), len(self.main) + len(tl) - 1, rd))
                for (sb, r, _) in tl:
                    self.main.append(lambda dt=dt, sb=sb, r=r, k=k: a.mfma(A(OA(r, dt), 4), V(FR + 4 * (k % NFR), 4), V(sb, 4), A(OA(r, dt), 4)))

        def exp(self, h, rel, dl):
            self.vx += [(rel, dl, f) for f in exp_ops([sb for sb, _, _ in self.tiles(h)])]

        def mx(self, h, rel, dl):
            ol = [max_ops(sb, 8, ta) for sb, _, ta in self.tiles(h)]
            for j in range(len(ol[0])):
                for o in ol:
                    self.vx.append((rel, dl, o[j]))

        def chk(self, h):
            tl = self.tiles(h)
            self.main.append(lambda: check(tl) if h else check_first(tl))

        def emit(self):
            fs = frag_stream(self.items)
            interleave(self.main, [(fs, FSC), (self.vx, VXC), (self.dm, 1)], budget=BUD)

    def sync():
        a.waitcnt(vm=0, lgkm=0)
        if "nobar" not in dbg:
            a.barrier()

    def body(s, first=False):
        g = Seg()
        if not first:
            g.Y(2 * s - 2)
            g.mx(2 * s - 1, 0, len(g.main))
            g.dm = [(DSP * k, 10 ** 6, f) for k, f in enumerate(([] if (RP and s == 1) else tile_ops(True, slot_of(2 * s + 1))) + tile_ops(False, slot_of(2 * s + 2)))]
            g.chk(2 * s - 1)
            g.main.append(lambda: seg(0))
        n0 = len(g.main)
        g.X(2 * s)
        g.main.append(lambda: seg(1))
        if not first:
            g.exp(2 * s - 1, n0, len(g.main))
            n0 = len(g.main)
            g.Y(2 * s - 1)
            g.mx(2 * s, n0 + 3, len(g.main))
        else:
            g.mx(2 * s, len(g.main), len(g.main))
        g.chk(2 * s)
        g.main.append(lambda: seg(2))
        n0 = len(g.main)
        g.X(2 * s + 1)
        g.exp(2 * s, n0, len(g.main))
        g.dm = [(r, min(d, len(g.main)), f) for (r, d, f) in g.dm]
        g.emit()
        seg(3)
        a.waitcnt(vm=0, lgkm=0)
        seg(4)
        sync()
        seg(5)

    def attention():
        qproj()
        if "qonly" in dbg:
            a.misc("s_endpgm")
        if RP:
            rpf_write()
        else:
            run(tile_ops(True, slot_of(1)))
            run(tile_ops(False, slot_of(2)))
        stamp()
        tq = 192
        for r in range(4):
            for t in range(4):
                lo, hi = QA(2 * t, r), QA(2 * t + 1, r)
                for k, src in enumerate((lo, lo + 2, hi, hi + 2)):
                    a.valu("v_mul_f32", V(src), S(sC), V(src))
                    a.valu("v_mul_f32", V(src + 1), S(sC), V(src + 1))
                    a.valu("v_cvt_pk_bf16_f32", V(tq + k), V(src), V(src + 1))
                for k in range(4):
                    a.valu("v_accvgpr_write_b32", A(QF(r, t) + k), V(tq + k))
        vl, ta, tb = 200, 201, 202
        a.valu("v_mbcnt_lo_u32_b32", V(vl), -1, 0)
        a.valu("v_mbcnt_hi_u32_b32", V(vl), -1, V(vl))
        a.valu("v_lshlrev_b32", V(ta), 4, V(vl))
        for j in range(2):
            lo, hi = QA9(2 * j), QA9(2 * j + 1)
            for k, src in enumerate((lo, lo + 2, hi, hi + 2)):
                a.valu("v_mul_f32", V(src), S(sC), V(src))
                a.valu("v_mul_f32", V(src + 1), S(sC), V(src + 1))
                a.valu("v_cvt_pk_bf16_f32", V(tq + 4 * j + k), V(src), V(src + 1))
            if j == 0:
                a.salu("s_lshl_b32", S(sT2), S(sW), 11)
                a.valu("v_add_u32", V(tb), S(sT2), V(ta))
                a.valu("v_subrev_u32", V(vl), S(sT2), V(ta))
            a.ds_write("ds_write_b128", V(tb), V(tq + 4 * j, 4), off=WB + j * 1024)
        a.waitcnt(lgkm=0)
        a.barrier()
        for t in range(4):
            a.ds_read("ds_read_b128", A(QF(4, t), 4), V(tb if t < 2 else vl), off=WB + t * 1024)
        a.valu("v_mov_b32", V(tb), 0)
        for i in range(160):
            a.valu("v_accvgpr_write_b32", A(i), V(tb))
        for i in range(40):
            a.valu("v_mov_b32", V(NM(0) + i), 0)
        for i in range(4):
            a.valu("v_mov_b32", V(ONES + i), "0x3f803f80")
        a.salu("s_mov_b32", S(sThr), hex(f32bits(THR)))
        a.waitcnt(vm=0 if RP else 16, lgkm=0)
        a.barrier()
        if stamps:
            for k in range(12):
                a.salu("s_mov_b32", S(86 + k), 0)
        seg(11)
        body(0, True)
        body(1)
        a.salu("s_mov_b32", S(sIt), 0)
        a.flush()
        Lp = newlabel()
        a.label(Lp)
        body(2)
        body(3)
        a.salu("s_add_u32", S(sIt), S(sIt), 1)
        a.salu("s_cmp_lt_u32", None, S(sIt), 3)
        a.nop(8)
        a.misc(f"s_cbranch_scc1 {Lp}")
        g = Seg()
        g.Y(14)
        g.mx(15, 0, len(g.main))
        g.chk(15)
        g.exp(15, len(g.main), len(g.main))
        g.Y(15)
        g.emit()
        a.flush()

    attention()
    a.waitcnt(vm=0, lgkm=0)
    stamp()

    vL, vG, vI = 0, 1, 2
    t0, t1, t2, t3 = 4, 5, 6, 7
    vSt = 8
    a.valu("v_mbcnt_lo_u32_b32", V(vL), -1, 0)
    a.valu("v_mbcnt_hi_u32_b32", V(vL), -1, V(vL))
    a.valu("v_lshrrev_b32", V(vG), 4, V(vL))
    a.valu("v_and_b32", V(vI), 15, V(vL))
    a.valu("v_and_b32", V(t0), 1, V(vG))
    a.valu("v_lshrrev_b32", V(t1), 1, V(vG))
    a.valu("v_lshl_add_u32", V(t0), V(t0), 1, V(t1))
    a.valu("v_lshlrev_b32", V(t1), 4, V(vI))
    a.valu("v_lshl_add_u32", V(vSt), V(t0), 8, V(t1))
    a.barrier()
    CB = 0
    PB = 4096
    a.valu("v_mov_b32", V(t2), V(NM(4)))
    a.valu("v_mov_b32", V(t3), V(LA(4)))
    a.salu("s_lshl_b32", S(sT2), S(sW), 7)
    a.valu("v_lshlrev_b32", V(t0), 3, V(vI))
    a.valu("v_add_u32", V(t1), S(sT2), V(t0))
    a.ds_write("ds_write_b64", V(t1), V(t2, 2), off=CB)
    a.waitcnt(lgkm=0)
    a.barrier()
    ml = 12
    for w in range(2):
        a.ds_read("ds_read_b64", V(ml + 2 * w, 2), V(t0), off=CB + w * 128)
    a.valu("v_min_f32", V(t1), V(ml), V(ml + 2))
    a.valu("v_mov_b32", V(t2), 0)
    for w in range(2):
        a.valu("v_sub_f32", V(t3), V(t1), V(ml + 2 * w))
        a.valu("v_exp_f32", V(t3), V(t3))
        a.valu("v_fma_f32", V(t2), V(t3), V(ml + 2 * w + 1), V(t2))
    a.valu("v_sub_f32", V(t3), V(t1), V(NM(4)))
    a.valu("v_exp_f32", V(t3), V(t3))
    a.valu("v_rcp_f32", V(t2), V(t2))
    a.valu("v_mul_f32", V(t3), V(t3), V(t2))
    NB = 32
    for k in range(32):
        a.valu("v_accvgpr_read_b32", V(NB + k), A(OA(4, 0) + k))
    for k in range(32):
        a.valu("v_mul_f32", V(NB + k), V(NB + k), V(t3))
    a.valu("v_lshlrev_b32", V(t0), 4, V(vL))
    a.salu("s_lshl_b32", S(sT2), S(sW), 13)
    a.valu("v_add_u32", V(t1), S(sT2), V(t0))
    for dt in range(8):
        a.ds_write("ds_write_b128", V(t1), V(NB + 4 * dt, 4), off=PB + dt * 1024)
    for r in range(4):
        a.valu("v_rcp_f32", V(t2), V(LA(r)))
        a.salu("s_lshl_b32", S(sT2), S(sW), 12)
        a.salu("s_add_u32", S(sT2), S(sT2), r * 1024)
        for kk in range(4):
            o = 144 + ((r * 4 + kk) % 8) * 8
            for e in range(8):
                a.valu("v_accvgpr_read_b32", V(o + e), A(OA(r, 2 * kk) + e))
            for e in range(8):
                a.valu("v_mul_f32", V(o + e), V(o + e), V(t2))
            for e in range(4):
                a.valu("v_cvt_pk_bf16_f32", V(o + e), V(o + 2 * e), V(o + 2 * e + 1))
            a.valu("v_permlane16_swap_b32", V(o), V(o + 2))
            a.valu("v_permlane16_swap_b32", V(o + 1), V(o + 3))
            a.salu("s_add_u32", S(sT3), S(sT2), kk * 9216)
            bstore("buffer_store_dwordx4", V(o, 4), V(vSt), S(sO, 4), S(sT3), flags="sc0 sc1")
    a.waitcnt(lgkm=0)
    a.barrier()
    a.salu("s_lshl_b32", S(sT2), S(sW), 12)
    a.valu("v_add_u32", V(t1), S(sT2), V(t0))
    RB = 64
    for j in range(4):
        for w in range(2):
            a.ds_read("ds_read_b128", V(RB + (j * 2 + w) * 4, 4), V(t1), off=PB + w * 8192 + j * 1024)
    a.salu("s_mul_i32", S(sT2), S(sW), 2 * 9216)
    a.salu("s_add_u32", S(sT2), S(sT2), 8 * 1024)
    for j in range(4):
        b0 = RB + j * 8
        for e in range(4):
            a.valu("v_add_f32", V(b0 + e), V(b0 + e), V(b0 + 4 + e))
    for jj in range(2):
        o = 144 + jj * 4
        b0, b1 = RB + (2 * jj) * 8, RB + (2 * jj + 1) * 8
        a.valu("v_cvt_pk_bf16_f32", V(o), V(b0), V(b0 + 1))
        a.valu("v_cvt_pk_bf16_f32", V(o + 1), V(b0 + 2), V(b0 + 3))
        a.valu("v_cvt_pk_bf16_f32", V(o + 2), V(b1), V(b1 + 1))
        a.valu("v_cvt_pk_bf16_f32", V(o + 3), V(b1 + 2), V(b1 + 3))
        a.valu("v_permlane16_swap_b32", V(o), V(o + 2))
        a.valu("v_permlane16_swap_b32", V(o + 1), V(o + 3))
        a.salu("s_add_u32", S(sT3), S(sT2), jj * 9216)
        bstore("buffer_store_dwordx4", V(o, 4), V(vSt), S(sO, 4), S(sT3), flags="sc0 sc1")
    if stamps:
        stamp()
        stamp(True)
        a.salu("s_add_u32", S(sX), "s12", 0x3000000)
        a.salu("s_addc_u32", S(sX + 1), "s13", 0)
        a.salu("s_mov_b32", S(sX + 2), 0x100000)
        a.salu("s_lshl_b32", S(sT2), "s2", 10)
        a.salu("s_lshl_b32", S(sT3), S(sW), 8)
        a.salu("s_add_u32", S(sT2), S(sT2), S(sT3))
        a.salu("s_mov_b64", "exec", 1)
        a.valu("v_mov_b32", V(t1), 0)
        for i in range(nst[0]):
            a.valu("v_mov_b32", V(t0), S(SB + 2 * i))
            a.bstore("buffer_store_dword", V(t0), V(t1), S(sX, 4), S(sT2), off=4 * i)
        for i in range(12):
            a.valu("v_mov_b32", V(t0), S(86 + i))
            a.bstore("buffer_store_dword", V(t0), V(t1), S(sX, 4), S(sT2), off=128 + 4 * i)
    a.label(f"{name}_done")
    a.misc("s_endpgm")
    a.lines += slow_lines
    return a
```
